```python
import torch

def _softmax(x, axis=-1):
    return torch.softmax(x, dim=axis)
def _gelu(x):
    return torch.nn.functional.gelu(x, approximate="tanh")
def _silu(x):
    return torch.nn.functional.silu(x)
def _sigmoid(x):
    return torch.sigmoid(x)
def _layernorm(x, axis=-1, eps=1e-5):
    m = x.mean(dim=axis, keepdim=True)
    v = x.var(dim=axis, keepdim=True, unbiased=False)
    return (x - m) / torch.sqrt(v + eps)
def _scatter_add(tgt, idx, src, axis=0):
    return tgt.clone().index_add_(axis, idx, src)
def _segment_sum(src, seg, n):
    out = torch.zeros((n,) + src.shape[1:], dtype=src.dtype)
    return out.index_add_(0, seg, src)
def _pad(x, pw):
    flat = tuple(v for pair in reversed(pw) for v in pair)
    return torch.nn.functional.pad(x, flat)

kernel_name = 'sequential_preLN__mha_block__dense_activation_gelu__prompt'

def setup_inputs():

    _w = (lambda a: (lambda t: t.to(torch.bfloat16) if t.is_floating_point() else t)(torch.as_tensor(a)))
    def _A_setup():
        B, S, D, H = 1, 2048, 512, 32
        return {
            "x": _w((lambda *s: torch.randn(*s, dtype=torch.bfloat16) * 0.05)(B, S, D)),
            "wqkv": _w((lambda *s: torch.randn(*s, dtype=torch.bfloat16) * 0.05)(D, 3 * D)),
            "wo": _w((lambda *s: torch.randn(*s, dtype=torch.bfloat16) * 0.05)(D, D)),
        }
    _A_in = _A_setup()

    def _B_setup():
        B, S, D, F = 1, 2048, 512, 1792
        return {
            "x": _w((lambda *s: torch.randn(*s, dtype=torch.bfloat16) * 0.05)(B, S, D)),
            "w1": _w((lambda *s: torch.randn(*s, dtype=torch.bfloat16) * 0.8)(D, F) * (D ** -0.5)),
            "b1": _w((lambda *s: torch.randn(*s, dtype=torch.bfloat16) * 0.2)(F) * 0.01),
            "w2": _w((lambda *s: torch.randn(*s, dtype=torch.bfloat16) * 0.2)(F, D) * (F ** -0.5)),
            "b2": _w((lambda *s: torch.randn(*s, dtype=torch.bfloat16) * 0.2)(D) * 0.01),
        }
    _B_in = _B_setup()

    return {
        "A_x": _A_in["x"],
        "A_wqkv": _A_in["wqkv"],
        "A_wo": _A_in["wo"],
        "B_x": _B_in["x"],
        "B_w1": _B_in["w1"],
        "B_b1": _B_in["b1"],
        "B_w2": _B_in["w2"],
        "B_b2": _B_in["b2"],
    }

def reference(A_x, A_wqkv, A_wo, B_x, B_w1, B_b1, B_w2, B_b2):
    def _A_ref(x, wqkv, wo):
        B, S, D = x.shape
        H = 32
        Dh = D // H
        qkv = (lambda x, *d: x.permute(*d))((x @ wqkv).reshape(B, S, 3, H, Dh), 2, 0, 3, 1, 4)
        q, k, v = qkv[0], qkv[1], qkv[2]
        scores = torch.einsum("bhqd,bhkd->bhqk", q, k) * (Dh ** -0.5)
        p = _softmax(scores, axis=-1)
        o = torch.einsum("bhqk,bhkd->bhqd", p, v)
        return (lambda x, *d: x.permute(*d))(o, 0, 2, 1, 3).reshape(B, S, D) @ wo

    def _B_ref(x, w1, b1, w2, b2):
        h = torch.einsum("bsd,df->bsf", x, w1) + b1
        h = _gelu(h)
        return torch.einsum("bsf,fd->bsd", h, w2) + b2

    x = A_x
    h = x + _A_ref(_layernorm(x, axis=-1), A_wqkv, A_wo)
    h2 = h + _B_ref(_layernorm(h, axis=-1), B_w1, B_b1, B_w2, B_b2)
    return h2
```

```python
import sys, math

NAME = "sequential_preLN__mha_block__dense_activation_gelu__prompt"
MB = 1 << 20
WS_QF, WS_KF, WS_VF, WS_KN, WS_OF, WS_HF, WS_GF = 0, 2*MB, 4*MB, 6*MB, 8*MB, 10*MB, 12*MB
WS_ST = 7*MB
WS_SIZE = 40*MB
LOG2E = 1.4426950408889634
QSCALE = 0.25 * LOG2E

def f2u(f):
    import struct
    return struct.unpack("<I", struct.pack("<f", f))[0]

class K:
    def __init__(self, name, vgprs, sgprs=96, agprs=0):
        self.name = name; self.lines = []; self.vgprs = vgprs; self.sgprs = sgprs; self.agprs = agprs
        self.lbl = 0
    def e(self, s):
        for l in s.strip("\n").split("\n"):
            self.lines.append("    " + l.strip())
    def label(self, l): self.lines.append(f"{l}:")
    def c(self, s): self.lines.append(f"    ; {s}")
    def text(self):
        return (f".globl {self.name}\n.p2align 8\n.type {self.name},@function\n{self.name}:\n" + "\n".join(self.lines) + "\n")
    def kd(self):
        acc = (self.vgprs + 3)//4*4
        nfv = acc + self.agprs if self.agprs else self.vgprs
        return f""".p2align 6
.amdhsa_kernel {self.name}
  .amdhsa_next_free_vgpr {nfv}
  .amdhsa_next_free_sgpr {self.sgprs}
  .amdhsa_accum_offset {acc}
  .amdhsa_group_segment_fixed_size 0
  .amdhsa_kernarg_size 88
  .amdhsa_user_sgpr_count 2
  .amdhsa_user_sgpr_kernarg_segment_ptr 1
  .amdhsa_system_sgpr_workgroup_id_x 1
.end_amdhsa_kernel
"""

INSTR = False
EXP = set()
WS_DBG = 32*MB
def instr_start(k):
    if not INSTR: return
    k.e("s_memtime s[88:89]\ns_memrealtime s[90:91]")
def stamp(k, n):
    if not INSTR: return
    k.e(f"s_memtime s[86:87]\ns_waitcnt lgkmcnt(0)\ns_sub_u32 s{60+n}, s86, s88")
    k.nstamps = max(getattr(k, 'nstamps', 0), n+1)
def instr_end(k, idx, sws, vtmp):
    if not INSTR: return
    a, b = vtmp, vtmp+1
    k.e(f"""s_waitcnt vmcnt(0) lgkmcnt(0)
    s_memtime s[92:93]
    s_memrealtime s[94:95]
    s_waitcnt lgkmcnt(0)
    s_sub_u32 s92, s92, s88
    v_lshrrev_b32 v{a}, 6, v0
    s_lshl_b32 s93, s2, 4
    v_add_u32 v{a}, s93, v{a}
    v_lshlrev_b32 v{a}, 4, v{a}
    v_add_u32 v{a}, {WS_DBG + idx*65536*4}, v{a}
    v_mov_b32 v{b}, s90
    buffer_store_dword v{b}, v{a}, s[{sws}:{sws+3}], 0 offen
    v_mov_b32 v{b}, s94
    buffer_store_dword v{b}, v{a}, s[{sws}:{sws+3}], 0 offen offset:4
    v_mov_b32 v{b}, s92
    buffer_store_dword v{b}, v{a}, s[{sws}:{sws+3}], 0 offen offset:8""")
    ns = getattr(k, 'nstamps', 0)
    if ns:
        k.e(f"""v_lshrrev_b32 v{a}, 6, v0
        v_add_u32 v{a}, s93, v{a}
        v_lshlrev_b32 v{a}, 7, v{a}
        v_add_u32 v{a}, {WS_DBG + 2*MB + idx*MB//2}, v{a}""")
        for i in range(ns):
            k.e(f"v_mov_b32 v{b}, s{60+i}\nbuffer_store_dword v{b}, v{a}, s[{sws}:{sws+3}], 0 offen offset:{4*i}")

def vr(b, n): return f"v[{b}:{b+n-1}]"

def srd(k, d, lo, size):
    k.e(f"""s_mov_b32 s{d}, s{lo}
    s_and_b32 s{d+1}, s{lo+1}, 0xffff
    s_mov_b32 s{d+2}, {size}
    s_mov_b32 s{d+3}, 0x20000""")

def gen_k1():
    k = K("k1_qkv_kernel", vgprs=160)
    e = k.e
    SX, SW, SWS = 12, 16, 20
    sWave, sTsub, sP, sRb, sHg = 24, 25, 26, 27, 28
    sM0X, sM0W, sOffX, sOffW, sT0, sT1 = 30, 31, 32, 33, 34, 35
    vLane, vT, vH = 1, 2, 3
    vXo = [4, 5]; vWo = 6
    vXa = [8, 9, 10, 11]; vWa = [12, 13]
    vOnes = 14
    vSum, vSq, vCs = 15, 16, [17, 18, 19]
    vTmp = [20, 21, 22, 23, 24, 25, 26, 27]
    XF = [28, 32]
    WF = [[36, 40, 44], [48, 52, 56]]
    ACC = [64, 80, 96]
    EP = 112
    e(f"""s_cmp_ge_u32 s2, 256
    s_cbranch_scc1 L_k1_end""")
    instr_start(k)
    e(f"""s_load_dwordx4 s[4:7], s[0:1], 0
    s_load_dwordx2 s[8:9], s[0:1], 80
    v_and_b32 v{vLane}, 63, v0
    v_lshrrev_b32 v{vTmp[0]}, 6, v0
    v_and_b32 v{vT}, 31, v0
    v_bfe_u32 v{vH}, v0, 5, 1
    v_readfirstlane_b32 s{sWave}, v{vTmp[0]}
    s_and_b32 s{sHg}, s2, 7
    s_lshr_b32 s{sRb}, s2, 3
    s_and_b32 s{sTsub}, s{sWave}, 1
    s_lshr_b32 s{sP}, s{sWave}, 1""")
    k.c("DMA per-lane offsets: r = lane>>3, cpos = lane&7")
    r, cp, t0, t1 = vTmp[0], vTmp[1], vTmp[2], vTmp[3]
    e(f"""v_lshrrev_b32 v{r}, 3, v{vLane}
    v_and_b32 v{cp}, 7, v{vLane}
    s_lshl_b32 s{sT0}, s{sRb}, 6
    s_lshl_b32 s{sT1}, s{sWave}, 4
    s_add_u32 s{sT0}, s{sT0}, s{sT1}""")
    for par in range(2):
        e(f"""v_lshrrev_b32 v{t0}, 1, v{r}
        v_add_u32 v{t0}, {4*par}, v{t0}
        v_xor_b32 v{t0}, v{t0}, v{cp}
        v_lshlrev_b32 v{t0}, 4, v{t0}
        v_add_u32 v{t1}, {8*par}, v{r}
        v_add_u32 v{t1}, s{sT0}, v{t1}
        v_lshl_add_u32 v{vXo[par]}, v{t1}, 10, v{t0}""")
    e(f"""v_bfe_u32 v{t0}, v{r}, 1, 1
    v_lshlrev_b32 v{t0}, 2, v{t0}
    v_xor_b32 v{t0}, v{t0}, v{cp}
    v_lshlrev_b32 v{t0}, 4, v{t0}
    v_add_u32 v{t1}, s{sT1}, v{r}
    v_mul_u32_u24 v{t1}, 3072, v{t1}
    v_add_u32 v{t0}, v{t0}, v{t1}
    s_lshl_b32 s{sT1}, s{sHg}, 7
    v_add_u32 v{vWo}, s{sT1}, v{t0}
    s_lshl_b32 s{sM0X}, s{sWave}, 11
    s_add_u32 s{sM0W}, s{sM0X}, 32768
    s_waitcnt lgkmcnt(0)""")
    srd(k, SX, 4, 2*MB); srd(k, SW, 6, 512*3072); srd(k, SWS, 8, WS_SIZE)
    def dma_chunk(c):
        slot = c % 4
        e(f"s_mov_b32 s{sOffX}, {c*128}")
        for par in range(2):
            e(f"""s_add_u32 m0, s{sM0X}, {slot*8192 + par*1024}
            s_mov_b32 s{sOffW}, {c*64*3072 + par*8*3072}
            buffer_load_dwordx4 v{vXo[par]}, s[{SX}:{SX+3}], s{sOffX} offen lds""")
            for y in range(3):
                e(f"""s_add_u32 m0, s{sM0W}, {slot*24576 + y*8192 + par*1024}
                s_mov_b32 s{sOffW}, {c*64*3072 + par*8*3072 + y*1024}
                buffer_load_dwordx4 v{vWo}, s[{SW}:{SW+3}], s{sOffW} offen lds""")
    stamp(k, 0)
    for c in range(4): dma_chunk(c)
    stamp(k, 1)
    k.c("X frag read addr: t=32*tsub+t', addr = t*128 + ((2s+h) ^ ((t>>1)&7))*16")
    e(f"""s_lshl_b32 s{sT0}, s{sTsub}, 5
    v_add_u32 v{t0}, s{sT0}, v{vT}
    v_bfe_u32 v{t1}, v{t0}, 1, 3""")
    for s in range(4):
        e(f"""v_add_u32 v{r}, {2*s}, v{vH}
        v_xor_b32 v{r}, v{r}, v{t1}
        v_lshlrev_b32 v{r}, 4, v{r}
        v_lshl_add_u32 v{vXa[s]}, v{t0}, 7, v{r}""")
    k.c("W tr read addr")
    e(f"""v_and_b32 v{t0}, 15, v{vLane}
    v_lshrrev_b32 v{t1}, 2, v{t0}
    v_lshl_add_u32 v{t1}, v{vH}, 3, v{t1}
    v_lshlrev_b32 v{t1}, 7, v{t1}
    v_lshrrev_b32 v{r}, 3, v{t0}
    v_xor_b32 v{r}, s{sP}, v{r}
    v_lshl_add_u32 v{t1}, v{r}, 6, v{t1}
    v_bfe_u32 v{r}, v{vLane}, 4, 1
    v_lshl_add_u32 v{t1}, v{r}, 5, v{t1}
    v_and_b32 v{r}, 3, v{t0}
    v_lshl_add_u32 v{t1}, v{r}, 3, v{t1}
    v_add_u32 v{vWa[0]}, 32768, v{t1}
    v_add_u32 v{vWa[1]}, {32768+49152}, v{t1}
    v_mov_b32 v{vOnes}, 0x3f803f80
    v_mov_b32 v{vSum}, 0
    v_mov_b32 v{vSq}, 0""")
    for i in range(20): e(f"v_mov_b32 v{128+i}, 0")
    for y in range(3):
        for i in range(16): e(f"v_mov_b32 v{ACC[y]+i}, 0")
    def reads(c, s, b):
        slot = c % 4
        e(f"ds_read_b128 {vr(XF[b],4)}, v{vXa[s]} offset:{slot*8192}")
        for y in range(3):
            off = (slot & 1)*24576 + y*8192 + s*2048
            op = "ds_read_b64" if 'notr' in EXP else "ds_read_b64_tr_b16"
            e(f"{op} {vr(WF[b][y],2)}, v{vWa[slot>>1]} offset:{off}")
            e(f"{op} {vr(WF[b][y]+2,2)}, v{vWa[slot>>1]} offset:{off+512}")
    SEL = 148
    CSA = [128, 132, 136]
    ST = [140, 141, 142, 143]
    UN = [144, 145, 146, 147]
    def stats(b, i):
        if 'nostats' in EXP: return
        lo, hi = UN[2*(i&1)], UN[2*(i&1)+1]
        e(f"""v_lshlrev_b32 v{lo}, 16, v{XF[b]+i}
        v_and_b32 v{hi}, 0xffff0000, v{XF[b]+i}
        v_add_f32 v{ST[0]}, v{ST[0]}, v{lo}
        v_add_f32 v{ST[1]}, v{ST[1]}, v{hi}
        v_fmac_f32 v{ST[2]}, v{lo}, v{lo}
        v_fmac_f32 v{ST[3]}, v{hi}, v{hi}""")
    def compute(b):
        e(f"v_mfma_f32_32x32x16_bf16 {vr(ACC[0],16)}, {vr(WF[b][0],4)}, {vr(XF[b],4)}, {vr(ACC[0],16)}")
        stats(b, 0)
        if 'nocs' not in EXP: e(f"v_mfma_f32_16x16x32_bf16 {vr(CSA[0],4)}, {vr(WF[b][0],4)}, {vr(SEL,4)}, {vr(CSA[0],4)}")
        e(f"v_mfma_f32_32x32x16_bf16 {vr(ACC[1],16)}, {vr(WF[b][1],4)}, {vr(XF[b],4)}, {vr(ACC[1],16)}")
        stats(b, 1)
        if 'nocs' not in EXP: e(f"v_mfma_f32_16x16x32_bf16 {vr(CSA[1],4)}, {vr(WF[b][1],4)}, {vr(SEL,4)}, {vr(CSA[1],4)}")
        stats(b, 2)
        e(f"v_mfma_f32_32x32x16_bf16 {vr(ACC[2],16)}, {vr(XF[b],4)}, {vr(WF[b][2],4)}, {vr(ACC[2],16)}")
        stats(b, 3)
        if 'nocs' not in EXP: e(f"v_mfma_f32_16x16x32_bf16 {vr(CSA[2],4)}, {vr(WF[b][2],4)}, {vr(SEL,4)}, {vr(CSA[2],4)}")
    e(f"""v_and_b32 v{t0}, 15, v{vLane}
    v_bfe_u32 v{t1}, v{vLane}, 4, 1
    v_cmp_eq_u32 vcc, v{t0}, v{t1}
    v_mov_b32 v{t0}, 0
    s_nop 1
    v_cndmask_b32 v{SEL}, v{t0}, v{vOnes}, vcc
    v_cndmask_b32 v{SEL+1}, v{t0}, v{vOnes}, vcc
    v_cndmask_b32 v{SEL+2}, v{t0}, v{vOnes}, vcc
    v_cndmask_b32 v{SEL+3}, v{t0}, v{vOnes}, vcc""")
    NC = 8
    stamp(k, 2)
    e("s_waitcnt vmcnt(24)\ns_barrier")
    stamp(k, 3)
    reads(0, 0, 0)
    step = 0
    for c in range(NC):
        for s in range(4):
            b = step & 1
            if s < 3:
                reads(c, s+1, b ^ 1)
                e("s_waitcnt lgkmcnt(7)")
            else:
                if c + 1 < NC:
                    outstanding_after = min(NC-1, c+3) - (c+1)
                    e(f"s_waitcnt vmcnt({8*outstanding_after}) lgkmcnt(0)\ns_barrier")
                    stamp(k, 4+c)
                    reads(c+1, 0, b ^ 1)
                    if c + 4 < NC: dma_chunk(c+4)
                else:
                    e("s_waitcnt lgkmcnt(0)")
            compute(b)
            step += 1
    stamp(k, 11)
    k.c("epilogue: stats")
    a0, a1, a2, a3 = vTmp[0], vTmp[1], vTmp[2], vTmp[3]
    vA, vB = vTmp[4], vTmp[5]
    e(f"v_add_f32 v{vSum}, v{ST[0]}, v{ST[1]}\nv_add_f32 v{vSq}, v{ST[2]}, v{ST[3]}")
    def xhalf(v, tmp):
        e(f"""v_mov_b32 v{tmp}, v{v}
        s_nop 1
        v_permlane32_swap_b32 v{v}, v{tmp}
        s_nop 1
        v_add_f32 v{v}, v{v}, v{tmp}""")
    xhalf(vSum, a0); xhalf(vSq, a0)
    e(f"""v_mul_f32 v{a0}, {1.0/512}, v{vSum}
    v_mul_f32 v{a1}, {1.0/512}, v{vSq}
    v_fma_f32 v{a1}, -v{a0}, v{a0}, v{a1}
    v_max_f32 v{a1}, 0, v{a1}
    v_add_f32 v{a1}, {1e-5}, v{a1}
    v_rsq_f32 v{vA}, v{a1}
    s_nop 0
    v_mul_f32 v{vB}, v{a0}, v{vA}
    v_sub_f32 v{vB}, 0, v{vB}""")
    SCR = 32768 + 2*24576
    e(f"""s_lshl_b32 s{sT0}, s{sWave}, 10
    s_add_u32 s{sT0}, s{sT0}, {SCR}
    v_lshlrev_b32 v{a0}, 2, v{vT}
    v_add_u32 v{a0}, s{sT0}, v{a0}
    v_lshlrev_b32 v{a1}, 4, v{vH}
    v_add_u32 v{a1}, s{sT0}, v{a1}
    ds_write_b32 v{a0}, v{vA}
    ds_write_b32 v{a0}, v{vB} offset:128
    v_and_b32 v{a2}, 15, v{vLane}
    v_lshrrev_b32 v{a3}, 4, v{vLane}
    v_lshlrev_b32 v{a3}, 4, v{a3}
    v_lshl_add_u32 v{a3}, v{a2}, 6, v{a3}
    v_add_u32 v{a3}, s{sT0}, v{a3}
    v_cmp_gt_u32 vcc, 2, v{a2}
    s_and_saveexec_b64 s[36:37], vcc
    ds_write_b128 v{a3}, {vr(CSA[0],4)} offset:256
    ds_write_b128 v{a3}, {vr(CSA[1],4)} offset:384
    ds_write_b128 v{a3}, {vr(CSA[2],4)} offset:512
    s_mov_b64 exec, s[36:37]
    s_waitcnt lgkmcnt(0)
    ds_read_b32 v{vCs[2]}, v{a0} offset:512""")
    vSt = vTmp[6]; vSt2 = vTmp[7]
    e(f"""s_lshl_b32 s{sT0}, s{sHg}, 2
    s_lshl_b32 s{sT1}, s{sP}, 1
    s_add_u32 s{sT0}, s{sT0}, s{sT1}
    s_lshl_b32 s{sT0}, s{sT0}, 6
    s_lshl_b32 s{sT1}, s{sRb}, 1
    s_add_u32 s{sT0}, s{sT0}, s{sT1}
    s_add_u32 s{sT0}, s{sT0}, s{sTsub}
    s_lshl_b32 s{sOffX}, s{sT0}, 10
    v_lshlrev_b32 v{vSt}, 4, v{vLane}""")
    for y in range(2):
        for g in range(4):
            e(f"ds_read_b128 {vr(EP+4*g,4)}, v{a1} offset:{256 + 128*y + 32*g}")
        if y == 0:
            e(f"v_mul_f32 v{a2}, {QSCALE}, v{vA}\nv_mul_f32 v{a3}, {QSCALE}, v{vB}")
        else:
            e(f"v_mov_b32 v{a2}, v{vA}\nv_mov_b32 v{a3}, v{vB}")
        e("s_waitcnt lgkmcnt(0)")
        for i in range(16):
            e(f"v_mul_f32 v{EP+i}, v{a3}, v{EP+i}")
            e(f"v_fma_f32 v{EP+i}, v{ACC[y]+i}, v{a2}, v{EP+i}")
        for i in range(8):
            e(f"v_cvt_pk_bf16_f32 v{ACC[y]+i}, v{EP+2*i}, v{EP+2*i+1}")
        base = WS_QF if y == 0 else WS_KF
        e(f"""s_add_u32 s{sOffW}, s{sOffX}, {base}
        buffer_store_dwordx4 {vr(ACC[y],4)}, v{vSt}, s[{SWS}:{SWS+3}], s{sOffW} offen
        s_add_u32 s{sOffW}, s{sOffX}, {base + 65536}
        buffer_store_dwordx4 {vr(ACC[y]+4,4)}, v{vSt}, s[{SWS}:{SWS+3}], s{sOffW} offen""")
    k.c("key norm max")
    n0, n1 = EP, EP+1
    e(f"v_mov_b32 v{n0}, 0\nv_mov_b32 v{n1}, 0")
    for i in range(4):
        e(f"v_dot2_f32_bf16 v{n0}, v{ACC[1]+i}, v{ACC[1]+i}, v{n0}")
        e(f"v_dot2_f32_bf16 v{n1}, v{ACC[1]+4+i}, v{ACC[1]+4+i}, v{n1}")
    e(f"""s_nop 3
    v_permlane32_swap_b32 v{n0}, v{n1}
    s_nop 1
    v_add_f32 v{n0}, v{n0}, v{n1}
    s_nop 1
    v_max_f32_dpp v{n0}, v{n0}, v{n0} row_shr:1 row_mask:0xf bank_mask:0xf
    s_nop 1
    v_max_f32_dpp v{n0}, v{n0}, v{n0} row_shr:2 row_mask:0xf bank_mask:0xf
    s_nop 1
    v_max_f32_dpp v{n0}, v{n0}, v{n0} row_shr:4 row_mask:0xf bank_mask:0xf
    s_nop 1
    v_max_f32_dpp v{n0}, v{n0}, v{n0} row_shr:8 row_mask:0xf bank_mask:0xf
    s_nop 1
    v_max_f32_dpp v{n0}, v{n0}, v{n0} row_bcast:15 row_mask:0xa bank_mask:0xf
    v_lshlrev_b32 v{n1}, 8, v{vH}
    s_lshl_b32 s{sOffW}, s{sT0}, 2
    s_add_u32 s{sOffW}, s{sOffW}, {WS_KN}
    s_mov_b32 exec_lo, 0x80000000
    s_mov_b32 exec_hi, 0x80000000
    buffer_store_dword v{n0}, v{n1}, s[{SWS}:{SWS+3}], s{sOffW} offen
    s_mov_b64 exec, -1""")
    stamp(k, 12)
    k.c("V tile")
    for g in range(4):
        e(f"ds_read_b128 {vr(EP+4*g,4)}, v{a1} offset:{128 + 32*g}")
    for g in range(4):
        e(f"ds_read_b128 {vr(XF[0]+4*g,4)}, v{a1} offset:{32*g}")
    AV = XF[0]
    e(f"""v_lshrrev_b32 v{a2}, 4, v{vT}
    v_lshlrev_b32 v{a2}, 16, v{a2}
    v_lshl_add_u32 v{a2}, v{vH}, 8, v{a2}
    v_and_b32 v{a3}, 15, v{vT}
    v_lshl_add_u32 v{vSt2}, v{a3}, 4, v{a2}
    s_waitcnt lgkmcnt(0)""")
    for i in range(16):
        e(f"v_mul_f32 v{EP+i}, v{vCs[2]}, v{EP+i}")
        e(f"v_fma_f32 v{EP+i}, v{ACC[2]+i}, v{AV+i}, v{EP+i}")
    for i in range(8):
        e(f"v_cvt_pk_bf16_f32 v{ACC[2]+i}, v{EP+2*i}, v{EP+2*i+1}")
    e(f"""s_add_u32 s{sOffW}, s{sOffX}, {WS_VF}
    buffer_store_dwordx4 {vr(ACC[2],4)}, v{vSt2}, s[{SWS}:{SWS+3}], s{sOffW} offen
    buffer_store_dwordx4 {vr(ACC[2]+4,4)}, v{vSt2}, s[{SWS}:{SWS+3}], s{sOffW} offen offset:512""")
    instr_end(k, 0, SWS, EP)
    k.label("L_k1_end")
    e("s_endpgm")
    return k, (256, 256, 131072)

def gen_k2():
    k = K("k2_attn_kernel", vgprs=128)
    e = k.e
    SWS = 12
    sWave, sHead, sQt, sT0, sT1, sOff, sLoop, sPass = 16, 17, 18, 19, 20, 21, 22, 23
    sMask = 24
    vLane, vL16, vKa, vVa, vT0, vT1, vT2 = 1, 2, 3, 4, 5, 6, 7
    QF = 8
    KF = [12, 16]
    VF = [20, 28]
    P = 36
    S = [48, 64]
    O = 80
    CI = 96
    e(f"""s_cmp_ge_u32 s2, 256
    s_cbranch_scc1 L_k2_end""")
    instr_start(k)
    e(f"""s_load_dwordx2 s[8:9], s[0:1], 80
    v_and_b32 v{vLane}, 63, v0
    v_lshrrev_b32 v{vT0}, 6, v0
    v_lshlrev_b32 v{vL16}, 4, v{vLane}
    v_readfirstlane_b32 s{sWave}, v{vT0}
    s_and_b32 s{sHead}, s2, 7
    s_lshl_b32 s{sHead}, s{sHead}, 2
    s_bfe_u32 s{sT0}, s2, 0x20003
    s_add_u32 s{sHead}, s{sHead}, s{sT0}
    s_lshr_b32 s{sQt}, s2, 5
    s_lshl_b32 s{sQt}, s{sQt}, 3
    s_add_u32 s{sQt}, s{sQt}, s{sWave}
    s_mov_b32 s{sMask}, 0x0000ffff
    s_mov_b32 s{sMask+1}, 0x0000ffff
    s_waitcnt lgkmcnt(0)""")
    srd(k, SWS, 8, WS_SIZE)
    e(f"""s_lshl_b32 s{sT0}, s{sHead}, 6
    s_add_u32 s{sT1}, s{sT0}, s{sQt}
    s_lshl_b32 s{sT1}, s{sT1}, 10
    buffer_load_dwordx4 {vr(QF,4)}, v{vL16}, s[{SWS}:{SWS+3}], s{sT1} offen
    s_lshl_b32 s{sT1}, s{sT0}, 2
    s_add_u32 s{sT1}, s{sT1}, {WS_KN}
    v_lshlrev_b32 v{vT0}, 2, v{vLane}
    buffer_load_dword v{vT1}, v{vT0}, s[{SWS}:{SWS+3}], s{sT1} offen
    s_lshl_b32 s{sT0}, s{sHead}, 16
    s_lshl_b32 s{sT1}, s{sWave}, 11
    s_add_u32 s{sT0}, s{sT0}, s{sT1}""")
    for c in range(4):
        for y in range(2):
            e(f"""s_add_u32 m0, s{sT1}, {y*65536 + c*16384}
            s_add_u32 s{sOff}, s{sT0}, {(WS_KF if y == 0 else WS_VF) + c*16384}
            buffer_load_dwordx4 v{vL16}, s[{SWS}:{SWS+3}], s{sOff} offen lds
            buffer_load_dwordx4 v{vL16}, s[{SWS}:{SWS+3}], s{sOff} offen offset:1024 lds""")
    e(f"""v_bfe_u32 v{vT0}, v{vLane}, 5, 1
    v_and_b32 v{vT2}, 15, v{vLane}
    v_lshlrev_b32 v{vT2}, 4, v{vT2}
    v_lshl_add_u32 v{vT2}, v{vT0}, 8, v{vT2}
    v_add_u32 v{vT2}, 65536, v{vT2}""")
    for b in range(2):
        for i in range(8): e(f"v_mov_b32 v{VF[b]+i}, 0x3f803f80")
    e(f"""s_waitcnt vmcnt(16)
    v_mov_b32 v{vT0}, 0
    v_max_f32_dpp v{vT1}, v{vT1}, v{vT1} row_shr:1 row_mask:0xf bank_mask:0xf
    v_dot2_f32_bf16 v{vT0}, v{QF}, v{QF}, v{vT0}
    v_dot2_f32_bf16 v{vT0}, v{QF+1}, v{QF+1}, v{vT0}
    v_max_f32_dpp v{vT1}, v{vT1}, v{vT1} row_shr:2 row_mask:0xf bank_mask:0xf
    v_dot2_f32_bf16 v{vT0}, v{QF+2}, v{QF+2}, v{vT0}
    v_dot2_f32_bf16 v{vT0}, v{QF+3}, v{QF+3}, v{vT0}
    v_max_f32_dpp v{vT1}, v{vT1}, v{vT1} row_shr:4 row_mask:0xf bank_mask:0xf
    s_nop 1
    v_max_f32_dpp v{vT1}, v{vT1}, v{vT1} row_shr:8 row_mask:0xf bank_mask:0xf
    s_nop 1
    v_max_f32_dpp v{vT1}, v{vT1}, v{vT1} row_bcast:15 row_mask:0xa bank_mask:0xf
    s_nop 1
    v_max_f32_dpp v{vT1}, v{vT1}, v{vT1} row_bcast:31 row_mask:0xc bank_mask:0xf
    v_mov_b32 v{CI}, v{vT0}
    s_nop 1
    v_readlane_b32 s{sT0}, v{vT1}, 63
    v_permlane32_swap_b32 v{vT0}, v{CI}
    s_nop 1
    v_add_f32 v{vT0}, v{vT0}, v{CI}
    v_mul_f32 v{vT0}, s{sT0}, v{vT0}
    v_sqrt_f32 v{vT0}, v{vT0}
    s_nop 0
    v_sub_f32 v{vT0}, 0, v{vT0}
    s_mov_b32 s{sPass}, 0
    s_waitcnt vmcnt(12)
    s_barrier""")
    k.label("L_k2_pass")
    for i in range(16): e(f"v_mov_b32 v{CI+i}, v{vT0}")
    for i in range(16): e(f"v_mov_b32 v{O+i}, 0")
    e(f"""v_mov_b32 v{vKa}, v{vL16}
    v_mov_b32 v{vVa}, v{vT2}
    s_mov_b32 s{sLoop}, 0""")
    def rdK(i): e(f"ds_read_b128 {vr(KF[i&1],4)}, v{vKa} offset:{i*1024}")
    def rdV(i):
        e(f"""s_mov_b64 exec, s[{sMask}:{sMask+1}]
        ds_read_b128 {vr(VF[i&1],4)}, v{vVa} offset:{i*1024}
        ds_read_b128 {vr(VF[i&1]+4,4)}, v{vVa} offset:{i*1024+512}
        s_mov_b64 exec, -1""")
    def qk(i): e(f"v_mfma_f32_32x32x16_bf16 {vr(S[i&1],16)}, {vr(KF[i&1],4)}, {vr(QF,4)}, {vr(CI,16)}")
    rdK(0); rdK(1); rdV(0)
    e("s_waitcnt lgkmcnt(3)")
    qk(0)
    e("s_nop 7\ns_nop 7")
    k.label("L_k2_loop")
    for i in range(16):
        if i == 14:
            e(f"""s_or_b32 s{sT0}, s{sLoop}, s{sPass}
            s_cmp_lg_u32 s{sT0}, 0
            s_cbranch_scc1 L_k2_nobar
            s_waitcnt vmcnt(0)
            s_barrier""")
            k.label("L_k2_nobar")
        s = S[i & 1]
        e("s_waitcnt lgkmcnt(2)")
        qk(i+1)
        rdK(i+2)
        for j in range(8):
            e(f"v_exp_f32 v{s+j}, v{s+j}")
            if j >= 2 and j % 2 == 0: e(f"v_cvt_pk_bf16_f32 v{P+(j-2)//2}, v{s+j-2}, v{s+j-1}")
        e(f"v_exp_f32 v{s+8}, v{s+8}")
        e(f"v_cvt_pk_bf16_f32 v{P+3}, v{s+6}, v{s+7}")
        e(f"v_exp_f32 v{s+9}, v{s+9}")
        e(f"v_exp_f32 v{s+10}, v{s+10}")
        e("s_waitcnt lgkmcnt(1)")
        e(f"v_mfma_f32_32x32x16_bf16 {vr(O,16)}, {vr(VF[i&1],4)}, {vr(P,4)}, {vr(O,16)}")
        rdV(i+1)
        e(f"v_cvt_pk_bf16_f32 v{P+4}, v{s+8}, v{s+9}")
        for j in range(11, 16):
            e(f"v_exp_f32 v{s+j}, v{s+j}")
            if j % 2 == 0: e(f"v_cvt_pk_bf16_f32 v{P+(j-2)//2}, v{s+j-2}, v{s+j-1}")
        e("s_nop 0")
        e(f"v_cvt_pk_bf16_f32 v{P+7}, v{s+14}, v{s+15}")
        e("s_nop 1")
        e(f"v_mfma_f32_32x32x16_bf16 {vr(O,16)}, {vr(VF[i&1]+4,4)}, {vr(P+4,4)}, {vr(O,16)}")
    e(f"""v_add_u32 v{vKa}, 16384, v{vKa}
    v_add_u32 v{vVa}, 16384, v{vVa}
    s_add_u32 s{sLoop}, s{sLoop}, 1
    s_cmp_lt_u32 s{sLoop}, 4
    s_cbranch_scc1 L_k2_loop
    s_waitcnt lgkmcnt(0)
    s_nop 7
    s_nop 7""")
    e(f"""v_cmp_nle_f32 vcc, {hex(f2u(2.0**-64))}, v{O+8}
    s_cmp_lg_u32 s{sPass}, 0
    s_cbranch_scc1 L_k2_out
    s_cbranch_vccz L_k2_chk2
    s_branch L_k2_fallback""")
    k.label("L_k2_chk2")
    e(f"""v_cmp_nlt_f32 vcc, v{O+8}, v{O+8}
    v_mov_b32 v{vT1}, 0x7f000000
    v_cmp_nlt_f32 vcc, v{O+8}, v{vT1}
    s_cbranch_vccz L_k2_out""")
    k.label("L_k2_fallback")
    k.c("fallback: exact row max over all keys, then redo")
    for i in range(16): e(f"v_mov_b32 v{CI+i}, 0")
    e(f"""v_mov_b32 v{vT0}, 0xff7fffff
    v_mov_b32 v{vKa}, v{vL16}
    s_mov_b32 s{sLoop}, 0""")
    k.label("L_k2_fbloop")
    e(f"""ds_read_b128 {vr(KF[0],4)}, v{vKa}
    s_waitcnt lgkmcnt(0)
    v_mfma_f32_32x32x16_bf16 {vr(S[0],16)}, {vr(KF[0],4)}, {vr(QF,4)}, {vr(CI,16)}
    s_nop 15
    s_nop 3""")
    for j in range(8): e(f"v_max3_f32 v{vT0}, v{vT0}, v{S[0]+2*j}, v{S[0]+2*j+1}")
    e(f"""v_add_u32 v{vKa}, 1024, v{vKa}
    s_add_u32 s{sLoop}, s{sLoop}, 1
    s_cmp_lt_u32 s{sLoop}, 64
    s_cbranch_scc1 L_k2_fbloop
    v_mov_b32 v{vT1}, v{vT0}
    s_nop 1
    v_permlane32_swap_b32 v{vT0}, v{vT1}
    s_nop 1
    v_max_f32 v{vT0}, v{vT0}, v{vT1}
    v_sub_f32 v{vT0}, 0, v{vT0}
    s_mov_b32 s{sPass}, 1
    s_branch L_k2_pass""")
    k.label("L_k2_out")
    e(f"v_rcp_f32 v{vT0}, v{O+8}\ns_nop 0")
    for i in range(8): e(f"v_mul_f32 v{O+i}, v{O+i}, v{vT0}")
    for i in range(4): e(f"v_cvt_pk_bf16_f32 v{P+i}, v{O+2*i}, v{O+2*i+1}")
    e(f"""s_lshl_b32 s{sT0}, s{sQt}, 5
    s_add_u32 s{sT0}, s{sT0}, s{sHead}
    s_lshl_b32 s{sT0}, s{sT0}, 10
    s_add_u32 s{sT0}, s{sT0}, {WS_OF}
    buffer_store_dwordx4 {vr(P,4)}, v{vL16}, s[{SWS}:{SWS+3}], s{sT0} offen""")
    instr_end(k, 1, SWS, S[0])
    k.label("L_k2_end")
    e("s_endpgm")
    return k, (256, 512, 131072)

def gen_k35(which):
    is3 = which == 3
    nm = "k3_wo_kernel" if is3 else "k5_ffn2_kernel"
    L = "L_k3" if is3 else "L_k5"
    KS = 32 if is3 else 112
    NC = KS // 4
    RING = 8
    AHEAD = 4 if is3 else 7
    ACT = WS_OF if is3 else WS_GF
    k = K(nm, vgprs=128)
    e = k.e
    SW, SWS, SX, SB = 12, 16, 20, 24
    sWave, sTsub, sFsub, sRb, sCb = 28, 29, 30, 31, 32
    sM0A, sM0W, sOffA, sOffW, sT0, sT1, sA0 = 33, 34, 35, 36, 37, 38, 39
    vLane, vT, vH, vL16, vWo = 1, 2, 3, 4, 5
    vAa = [6, 7]; vWa = [8, 9]
    t0, t1, t2, t3 = 10, 11, 12, 13
    RES = 16
    BIA = 24
    AF = [32, 48]
    WF = [64, 80]
    ACC = 96
    EP = 112
    e(f"""s_cmp_ge_u32 s2, 256
    s_cbranch_scc1 {L}_end""")
    instr_start(k)
    if is3:
        e(f"""s_load_dwordx2 s[4:5], s[0:1], 16
        s_load_dwordx2 s[6:7], s[0:1], 0""")
    else:
        e(f"""s_load_dwordx2 s[4:5], s[0:1], 48
        s_load_dwordx4 s[40:43], s[0:1], 56""")
    e(f"""s_load_dwordx2 s[8:9], s[0:1], 80
    v_and_b32 v{vLane}, 63, v0
    v_lshrrev_b32 v{t0}, 6, v0
    v_and_b32 v{vT}, 31, v0
    v_bfe_u32 v{vH}, v0, 5, 1
    v_readfirstlane_b32 s{sWave}, v{t0}
    v_lshlrev_b32 v{vL16}, 4, v{vLane}
    s_and_b32 s{sRb}, s2, 7
    s_lshl_b32 s{sRb}, s{sRb}, 2
    s_bfe_u32 s{sT0}, s2, 0x20003
    s_add_u32 s{sRb}, s{sRb}, s{sT0}
    s_lshr_b32 s{sCb}, s2, 5
    s_and_b32 s{sTsub}, s{sWave}, 1
    s_lshr_b32 s{sFsub}, s{sWave}, 1""")
    e(f"""v_lshrrev_b32 v{t0}, 3, v{vLane}
    v_and_b32 v{t1}, 7, v{vLane}
    v_bfe_u32 v{t2}, v{t0}, 1, 1
    v_lshlrev_b32 v{t2}, 2, v{t2}
    v_xor_b32 v{t2}, v{t2}, v{t1}
    v_lshlrev_b32 v{t2}, 4, v{t2}
    s_lshl_b32 s{sT0}, s{sWave}, 4
    v_add_u32 v{t0}, s{sT0}, v{t0}
    v_lshl_add_u32 v{t2}, v{t0}, 10, v{t2}
    s_lshl_b32 s{sT1}, s{sCb}, 7
    v_add_u32 v{vWo}, s{sT1}, v{t2}""")
    e(f"""s_lshl_b32 s{sA0}, s{sRb}, 1
    s_add_u32 s{sA0}, s{sA0}, s{sTsub}
    s_mul_i32 s{sA0}, s{sA0}, {KS}
    s_lshl_b32 s{sT0}, s{sFsub}, 1
    s_add_u32 s{sA0}, s{sA0}, s{sT0}
    s_lshl_b32 s{sA0}, s{sA0}, 10
    s_add_u32 s{sA0}, s{sA0}, {ACT}
    s_lshl_b32 s{sM0A}, s{sTsub}, 12
    s_lshl_b32 s{sT0}, s{sFsub}, 11
    s_add_u32 s{sM0A}, s{sM0A}, s{sT0}
    s_lshl_b32 s{sM0W}, s{sWave}, 11
    s_add_u32 s{sM0W}, s{sM0W}, 8192
    s_waitcnt lgkmcnt(0)""")
    srd(k, SW, 4, KS*16*1024); srd(k, SWS, 8, WS_SIZE)
    if is3: srd(k, SX, 6, 2*MB)
    else:
        srd(k, SB, 40, 1024); srd(k, SX, 42, 2*MB)
    def dma_chunk(c):
        slot = c % RING
        e(f"""s_add_u32 m0, s{sM0A}, {slot*16384}
        s_add_u32 s{sOffA}, s{sA0}, {c*4096}
        buffer_load_dwordx4 v{vL16}, s[{SWS}:{SWS+3}], s{sOffA} offen lds
        buffer_load_dwordx4 v{vL16}, s[{SWS}:{SWS+3}], s{sOffA} offen offset:1024 lds
        s_add_u32 m0, s{sM0W}, {slot*16384}
        s_mov_b32 s{sOffW}, {c*65536}
        buffer_load_dwordx4 v{vWo}, s[{SW}:{SW+3}], s{sOffW} offen lds
        s_add_u32 m0, s{sM0W}, {slot*16384 + 1024}
        s_mov_b32 s{sOffW}, {c*65536 + 8192}
        buffer_load_dwordx4 v{vWo}, s[{SW}:{SW+3}], s{sOffW} offen lds""")
    for c in range(AHEAD): dma_chunk(c)
    vRM = t3
    e(f"""s_lshl_b32 s{sT0}, s{sRb}, 6
    s_lshl_b32 s{sT1}, s{sTsub}, 5
    s_add_u32 s{sT0}, s{sT0}, s{sT1}
    v_add_u32 v{t0}, s{sT0}, v{vT}
    v_lshlrev_b32 v{t0}, 10, v{t0}
    v_lshlrev_b32 v{t1}, 3, v{vH}
    s_lshl_b32 s{sT0}, s{sCb}, 7
    s_lshl_b32 s{sT1}, s{sFsub}, 6
    s_add_u32 s{sT0}, s{sT0}, s{sT1}
    v_add_u32 v{t1}, s{sT0}, v{t1}
    v_add_u32 v{vRM}, v{t0}, v{t1}""")
    sHo = 44
    e(f"""s_lshl_b32 s{sHo}, s{sRb}, 1
    s_add_u32 s{sHo}, s{sHo}, s{sTsub}
    s_lshl_b32 s{sHo}, s{sHo}, 5
    s_lshl_b32 s{sT0}, s{sCb}, 2
    s_add_u32 s{sHo}, s{sHo}, s{sT0}
    s_lshl_b32 s{sT0}, s{sFsub}, 1
    s_add_u32 s{sHo}, s{sHo}, s{sT0}
    s_lshl_b32 s{sHo}, s{sHo}, 10
    s_add_u32 s{sHo}, s{sHo}, {WS_HF}""")
    if is3:
        for g in range(4): e(f"buffer_load_dwordx2 {vr(RES+2*g,2)}, v{vRM}, s[{SX}:{SX+3}], 0 offen offset:{16*g}")
        NEXTRA = 4
    else:
        e(f"""buffer_load_dwordx4 {vr(RES,4)}, v{vL16}, s[{SWS}:{SWS+3}], s{sHo} offen
        buffer_load_dwordx4 {vr(RES+4,4)}, v{vL16}, s[{SWS}:{SWS+3}], s{sHo} offen offset:1024""")
        for g in range(4): e(f"buffer_load_dwordx2 {vr(BIA+2*g,2)}, v{t1}, s[{SB}:{SB+3}], 0 offen offset:{16*g}")
        NEXTRA = 6
    e(f"""s_lshl_b32 s{sT0}, s{sTsub}, 12
    v_add_u32 v{vAa[0]}, s{sT0}, v{vL16}
    v_add_u32 v{vAa[1]}, 65536, v{vAa[0]}
    v_and_b32 v{t0}, 15, v{vLane}
    v_lshrrev_b32 v{t1}, 2, v{t0}
    v_lshl_add_u32 v{t1}, v{vH}, 2, v{t1}
    v_lshlrev_b32 v{t1}, 7, v{t1}
    v_lshrrev_b32 v{t2}, 3, v{t0}
    v_xor_b32 v{t2}, s{sFsub}, v{t2}
    v_lshl_add_u32 v{t1}, v{t2}, 6, v{t1}
    v_bfe_u32 v{t2}, v{vLane}, 4, 1
    v_lshl_add_u32 v{t1}, v{t2}, 5, v{t1}
    v_and_b32 v{t2}, 3, v{t0}
    v_lshl_add_u32 v{t1}, v{t2}, 3, v{t1}
    v_add_u32 v{vWa[0]}, 8192, v{t1}
    v_add_u32 v{vWa[1]}, {8192+65536}, v{t1}""")
    for i in range(16): e(f"v_mov_b32 v{ACC+i}, 0")
    def rd(c, s):
        slot = c % RING; b = c & 1
        off = (slot & 3)*16384
        e(f"""ds_read_b128 {vr(AF[b]+4*s,4)}, v{vAa[slot>>2]} offset:{off + s*1024}
        ds_read_b64_tr_b16 {vr(WF[b]+4*s,2)}, v{vWa[slot>>2]} offset:{off + s*2048}
        ds_read_b64_tr_b16 {vr(WF[b]+4*s+2,2)}, v{vWa[slot>>2]} offset:{off + s*2048 + 1024}""")
    def mm(c, s):
        b = c & 1
        e(f"v_mfma_f32_32x32x16_bf16 {vr(ACC,16)}, {vr(WF[b]+4*s,4)}, {vr(AF[b]+4*s,4)}, {vr(ACC,16)}")
    def vm_after(cneed, issued_upto):
        n = 4 * (issued_upto - 1 - cneed)
        if cneed < AHEAD: n += NEXTRA
        return n
    e(f"s_waitcnt vmcnt({vm_after(0, AHEAD)})\ns_barrier")
    for s in range(4): rd(0, s)
    issued = AHEAD
    for c in range(NC):
        if c + 1 < NC:
            e(f"s_waitcnt vmcnt({min(63, vm_after(c+1, issued))}) lgkmcnt(0)\ns_barrier")
            for s in range(4):
                mm(c, s)
                rd(c+1, s)
            if issued < NC and (issued - c) <= RING:
                dma_chunk(issued); issued += 1
        else:
            e("s_waitcnt lgkmcnt(0)")
            for s in range(4): mm(c, s)
    e("s_waitcnt vmcnt(0)\ns_nop 7\ns_nop 7")
    def unpack(dst, src):
        e(f"v_lshlrev_b32 v{dst}, 16, v{src}\nv_and_b32 v{dst+1}, 0xffff0000, v{src}")
    for i in range(8): unpack(EP+2*i, RES+i)
    for i in range(16): e(f"v_add_f32 v{ACC+i}, v{ACC+i}, v{EP+i}")
    if is3:
        e(f"v_mov_b32 v{t0}, 0\nv_mov_b32 v{t1}, 0")
        for i in range(16):
            e(f"v_add_f32 v{t0}, v{t0}, v{ACC+i}\nv_fmac_f32 v{t1}, v{ACC+i}, v{ACC+i}")
        for i in range(8): e(f"v_cvt_pk_bf16_f32 v{EP+i}, v{ACC+2*i}, v{ACC+2*i+1}")
        e(f"""buffer_store_dwordx4 {vr(EP,4)}, v{vL16}, s[{SWS}:{SWS+3}], s{sHo} offen
        buffer_store_dwordx4 {vr(EP+4,4)}, v{vL16}, s[{SWS}:{SWS+3}], s{sHo} offen offset:1024
        v_permlane32_swap_b32 v{t0}, v{t1}
        s_nop 1
        v_add_f32 v{t0}, v{t0}, v{t1}""")
        e(f"""s_lshl_b32 s{sT0}, s{sCb}, 1
        s_add_u32 s{sT0}, s{sT0}, s{sFsub}
        s_lshl_b32 s{sT0}, s{sT0}, 11
        s_lshl_b32 s{sT1}, s{sRb}, 6
        s_add_u32 s{sT0}, s{sT0}, s{sT1}
        s_lshl_b32 s{sT1}, s{sTsub}, 5
        s_add_u32 s{sT0}, s{sT0}, s{sT1}
        s_lshl_b32 s{sT0}, s{sT0}, 3
        s_add_u32 s{sT0}, s{sT0}, {WS_ST}
        v_lshlrev_b32 v{t1}, 3, v{vT}
        v_lshl_add_u32 v{t1}, v{vH}, 2, v{t1}
        buffer_store_dword v{t0}, v{t1}, s[{SWS}:{SWS+3}], s{sT0} offen""")
    else:
        for i in range(8): unpack(EP+2*i, BIA+i)
        for i in range(16): e(f"v_add_f32 v{ACC+i}, v{ACC+i}, v{EP+i}")
        for i in range(8): e(f"v_cvt_pk_bf16_f32 v{EP+i}, v{ACC+2*i}, v{ACC+2*i+1}")
        for g in range(4): e(f"buffer_store_dwordx2 {vr(EP+2*g,2)}, v{vRM}, s[{SX}:{SX+3}], 0 offen offset:{16*g}")
    instr_end(k, 2 if is3 else 4, SWS, AF[0])
    k.label(f"{L}_end")
    e("s_endpgm")
    return k, (256, 256, 131072)

def gen_k4():
    k = K("k4_ffn1_kernel", vgprs=200)
    e = k.e
    NC = 16; RING = 8; AHEAD = 7
    SW, SWS, SB = 12, 16, 20
    sWave, sTh, sFh, sRb, sCb = 28, 29, 30, 31, 32
    sM0A, sM0W, sOffA, sOffW, sT0, sT1, sA0 = 33, 34, 35, 36, 37, 38, 39
    vLane, vT, vH, vL16, vWo = 1, 2, 3, 4, 5
    vAa = [6, 7]; vWa = [[8, 9], [10, 11]]
    t0, t1, t2, t3 = 12, 13, 14, 15
    SEL = 16
    CSA = [20, 24]
    STA = [28, 30]
    AF = [32, 48]
    WF = [64, 80]
    ACC = 96
    EP = 160
    EB = 176
    SL = 160
    BL = 192
    e(f"""s_cmp_ge_u32 s2, 224
    s_cbranch_scc1 L_k4_end""")
    instr_start(k)
    e(f"""s_load_dwordx4 s[4:7], s[0:1], 32
    s_load_dwordx2 s[8:9], s[0:1], 80
    v_and_b32 v{vLane}, 63, v0
    v_lshrrev_b32 v{t0}, 6, v0
    v_and_b32 v{vT}, 31, v0
    v_bfe_u32 v{vH}, v0, 5, 1
    v_readfirstlane_b32 s{sWave}, v{t0}
    v_lshlrev_b32 v{vL16}, 4, v{vLane}
    s_and_b32 s{sRb}, s2, 7
    s_lshl_b32 s{sRb}, s{sRb}, 1
    s_bfe_u32 s{sT0}, s2, 0x10003
    s_add_u32 s{sRb}, s{sRb}, s{sT0}
    s_lshr_b32 s{sCb}, s2, 4
    s_and_b32 s{sTh}, s{sWave}, 1
    s_lshr_b32 s{sFh}, s{sWave}, 1""")
    e(f"""v_lshrrev_b32 v{t0}, 4, v{vLane}
    v_and_b32 v{t1}, 15, v{vLane}
    v_lshlrev_b32 v{t2}, 2, v{t0}
    v_xor_b32 v{t2}, v{t2}, v{t1}
    v_lshlrev_b32 v{t2}, 4, v{t2}
    s_lshl_b32 s{sT0}, s{sWave}, 3
    v_add_u32 v{t0}, s{sT0}, v{t0}
    v_mul_u32_u24 v{t0}, 3584, v{t0}
    v_add_u32 v{t2}, v{t2}, v{t0}
    s_lshl_b32 s{sT1}, s{sCb}, 8
    v_add_u32 v{vWo}, s{sT1}, v{t2}""")
    e(f"""s_lshl_b32 s{sA0}, s{sRb}, 2
    s_add_u32 s{sA0}, s{sA0}, s{sWave}
    s_lshl_b32 s{sA0}, s{sA0}, 15
    s_add_u32 s{sA0}, s{sA0}, {WS_HF}
    s_lshl_b32 s{sM0A}, s{sWave}, 11
    s_add_u32 s{sM0W}, s{sM0A}, 8192
    s_waitcnt lgkmcnt(0)""")
    srd(k, SW, 4, 512*3584); srd(k, SWS, 8, WS_SIZE); srd(k, SB, 6, 3584)
    def dma_chunk(c):
        slot = c % RING
        e(f"""s_add_u32 m0, s{sM0A}, {slot*16384}
        s_add_u32 s{sOffA}, s{sA0}, {c*2048}
        buffer_load_dwordx4 v{vL16}, s[{SWS}:{SWS+3}], s{sOffA} offen lds
        buffer_load_dwordx4 v{vL16}, s[{SWS}:{SWS+3}], s{sOffA} offen offset:1024 lds
        s_add_u32 m0, s{sM0W}, {slot*16384}
        s_mov_b32 s{sOffW}, {c*32*3584}
        buffer_load_dwordx4 v{vWo}, s[{SW}:{SW+3}], s{sOffW} offen lds
        s_add_u32 m0, s{sM0W}, {slot*16384 + 1024}
        s_mov_b32 s{sOffW}, {c*32*3584 + 4*3584}
        buffer_load_dwordx4 v{vWo}, s[{SW}:{SW+3}], s{sOffW} offen lds""")
    dma_chunk(0); dma_chunk(1)
    e(f"""s_lshl_b32 s{sT0}, s{sRb}, 7
    s_lshl_b32 s{sT1}, s{sTh}, 6
    s_add_u32 s{sT0}, s{sT0}, s{sT1}
    s_lshl_b32 s{sT0}, s{sT0}, 3
    s_add_u32 s{sT0}, s{sT0}, {WS_ST}
    v_lshlrev_b32 v{t0}, 3, v{vT}
    v_lshl_add_u32 v{t0}, v{vH}, 17, v{t0}""")
    for j in range(8):
        e(f"s_add_u32 s{sT1}, s{sT0}, {j*16384}")
        for ts in range(2):
            e(f"buffer_load_dwordx2 {vr(SL+16*ts+2*j,2)}, v{t0}, s[{SWS}:{SWS+3}], s{sT1} offen offset:{256*ts}")
    NEXTRA = 16
    for c in range(2, AHEAD): dma_chunk(c)
    e(f"""s_lshl_b32 s{sT0}, s{sTh}, 12
    v_add_u32 v{vAa[0]}, s{sT0}, v{vL16}
    v_add_u32 v{vAa[1]}, 65536, v{vAa[0]}
    v_and_b32 v{t0}, 15, v{vLane}
    v_lshrrev_b32 v{t1}, 2, v{t0}
    v_lshl_add_u32 v{t2}, v{vH}, 2, v{t1}
    v_lshlrev_b32 v{t2}, 8, v{t2}
    v_bfe_u32 v{t3}, v{vLane}, 4, 1
    v_lshl_add_u32 v{t2}, v{t3}, 5, v{t2}
    v_and_b32 v{t3}, 3, v{t0}
    v_lshl_add_u32 v{t2}, v{t3}, 3, v{t2}
    s_lshl_b32 s{sT0}, s{sFh}, 1""")
    for fs in range(2):
        e(f"""s_add_u32 s{sT1}, s{sT0}, {fs}
        v_xor_b32 v{t3}, s{sT1}, v{t1}
        v_lshl_add_u32 v{t3}, v{t3}, 6, v{t2}
        v_add_u32 v{vWa[fs][0]}, 8192, v{t3}
        v_add_u32 v{vWa[fs][1]}, {8192+65536}, v{t3}""")
    e(f"""v_bfe_u32 v{t1}, v{vLane}, 4, 1
    v_cmp_eq_u32 vcc, v{t0}, v{t1}
    v_mov_b32 v{t0}, 0
    v_mov_b32 v{t1}, 0x3f803f80
    v_cndmask_b32 v{SEL}, v{t0}, v{t1}, vcc
    v_cndmask_b32 v{SEL+1}, v{t0}, v{t1}, vcc
    v_cndmask_b32 v{SEL+2}, v{t0}, v{t1}, vcc
    v_cndmask_b32 v{SEL+3}, v{t0}, v{t1}, vcc""")
    for i in range(8): e(f"v_mov_b32 v{CSA[0]+i}, 0")
    for i in range(64): e(f"v_mov_b32 v{ACC+i}, 0")
    def rdA(c, s, ts):
        slot = c % RING; b = c & 1
        e(f"ds_read_b128 {vr(AF[b]+8*s+4*ts,4)}, v{vAa[slot>>2]} offset:{(slot&3)*16384 + ts*2048 + s*1024}")
    def rdW(c, s, fs):
        slot = c % RING; b = c & 1
        off = (slot & 3)*16384 + s*4096
        e(f"""ds_read_b64_tr_b16 {vr(WF[b]+8*s+4*fs,2)}, v{vWa[fs][slot>>2]} offset:{off}
        ds_read_b64_tr_b16 {vr(WF[b]+8*s+4*fs+2,2)}, v{vWa[fs][slot>>2]} offset:{off + 2048}""")
    def mm(c, s, ts, fs):
        b = c & 1; a = ACC + 32*ts + 16*fs
        e(f"v_mfma_f32_32x32x16_bf16 {vr(a,16)}, {vr(WF[b]+8*s+4*fs,4)}, {vr(AF[b]+8*s+4*ts,4)}, {vr(a,16)}")
    def cs(c, s, fs):
        b = c & 1
        e(f"v_mfma_f32_16x16x32_bf16 {vr(CSA[fs],4)}, {vr(WF[b]+8*s+4*fs,4)}, {vr(SEL,4)}, {vr(CSA[fs],4)}")
    def vm_after(cneed, issued_upto):
        n = 4 * (issued_upto - 1 - cneed)
        if cneed < 2: n += NEXTRA
        return n
    e(f"s_waitcnt vmcnt({vm_after(0, AHEAD)})\ns_barrier")
    for s in range(2):
        for x in range(2): rdA(0, s, x); rdW(0, s, x)
    issued = AHEAD
    for c in range(NC):
        last = c + 1 >= NC
        if not last:
            e(f"s_waitcnt vmcnt({min(63, vm_after(c+1, issued))}) lgkmcnt(0)\ns_barrier")
        else:
            e("s_waitcnt lgkmcnt(0)")
        for s in range(2):
            mm(c, s, 0, 0)
            if not last: rdA(c+1, s, 0)
            mm(c, s, 1, 0)
            if not last: rdW(c+1, s, 0)
            cs(c, s, 0)
            mm(c, s, 0, 1)
            if not last: rdA(c+1, s, 1)
            mm(c, s, 1, 1)
            if not last: rdW(c+1, s, 1)
            cs(c, s, 1)
        if not last and issued < NC:
            dma_chunk(issued); issued += 1
        if c == 2:
            for ts in range(2):
                b0 = SL + 16*ts
                for j in range(1, 8):
                    e(f"v_add_f32 v{b0}, v{b0}, v{b0+2*j}\nv_add_f32 v{b0+1}, v{b0+1}, v{b0+2*j+1}")
                for q in range(2):
                    e(f"""v_mov_b32 v{t0}, v{b0+q}
                    s_nop 1
                    v_permlane32_swap_b32 v{b0+q}, v{t0}
                    s_nop 1
                    v_add_f32 v{b0+q}, v{b0+q}, v{t0}""")
                e(f"""v_mul_f32 v{t0}, {1.0/512}, v{b0}
                v_mul_f32 v{t1}, {1.0/512}, v{b0+1}
                v_fma_f32 v{t1}, -v{t0}, v{t0}, v{t1}
                v_max_f32 v{t1}, 0, v{t1}
                v_add_f32 v{t1}, {1e-5}, v{t1}
                v_rsq_f32 v{STA[ts]}, v{t1}
                s_nop 0
                v_mul_f32 v{STA[ts]+1}, v{t0}, v{STA[ts]}
                v_sub_f32 v{STA[ts]+1}, 0, v{STA[ts]+1}""")
    SCR = 6*16384
    e(f"""s_lshl_b32 s{sT0}, s{sWave}, 10
    s_add_u32 s{sT0}, s{sT0}, {SCR}
    v_and_b32 v{t0}, 15, v{vLane}
    v_lshrrev_b32 v{t1}, 4, v{vLane}
    v_lshlrev_b32 v{t1}, 4, v{t1}
    v_lshl_add_u32 v{t1}, v{t0}, 6, v{t1}
    v_add_u32 v{t1}, s{sT0}, v{t1}
    v_lshlrev_b32 v{t2}, 4, v{vH}
    v_add_u32 v{t2}, s{sT0}, v{t2}
    v_cmp_gt_u32 vcc, 2, v{t0}
    s_lshl_b32 s{sT0}, s{sCb}, 8
    s_lshl_b32 s{sT1}, s{sFh}, 7
    s_add_u32 s{sT0}, s{sT0}, s{sT1}
    v_lshlrev_b32 v{t3}, 3, v{vH}
    s_nop 4
    s_and_saveexec_b64 s[40:41], vcc
    ds_write_b128 v{t1}, {vr(CSA[0],4)}
    ds_write_b128 v{t1}, {vr(CSA[1],4)} offset:128
    s_mov_b64 exec, s[40:41]""")
    sG = 42
    e(f"""s_lshl_b32 s{sG}, s{sRb}, 2
    s_lshl_b32 s{sT1}, s{sTh}, 1
    s_add_u32 s{sG}, s{sG}, s{sT1}
    s_mul_i32 s{sG}, s{sG}, 112
    s_lshl_b32 s{sT1}, s{sCb}, 3
    s_add_u32 s{sG}, s{sG}, s{sT1}
    s_lshl_b32 s{sT1}, s{sFh}, 2
    s_add_u32 s{sG}, s{sG}, s{sT1}
    s_lshl_b32 s{sG}, s{sG}, 10
    s_add_u32 s{sG}, s{sG}, {WS_GF}""")
    C0 = -2.0 * LOG2E * math.sqrt(2.0/math.pi)
    C1 = C0 * 0.044715
    sC0, sC1 = 44, 45
    e(f"s_mov_b32 s{sC0}, {hex(f2u(C0))}\ns_mov_b32 s{sC1}, {hex(f2u(C1))}")
    vC0 = t0
    e(f"v_mov_b32 v{vC0}, s{sC0}")
    TM = AF[0]
    for fs in range(2):
        for g in range(4): e(f"buffer_load_dwordx2 {vr(BL+2*g,2)}, v{t3}, s[{SB}:{SB+3}], s{sT0} offen offset:{64*fs + 16*g}")
        e("s_waitcnt lgkmcnt(0)")
        for g in range(4): e(f"ds_read_b128 {vr(EP+4*g,4)}, v{t2} offset:{128*fs + 32*g}")
        e("s_waitcnt vmcnt(0)")
        for i in range(8): e(f"v_lshlrev_b32 v{EB+2*i}, 16, v{BL+i}\nv_and_b32 v{EB+2*i+1}, 0xffff0000, v{BL+i}")
        e("s_waitcnt lgkmcnt(0)")
        for ts in range(2):
            a = ACC + 32*ts + 16*fs
            for i in range(16): e(f"v_fma_f32 v{TM+i}, v{STA[ts]+1}, v{EP+i}, v{EB+i}")
            for i in range(16): e(f"v_fma_f32 v{a+i}, v{a+i}, v{STA[ts]}, v{TM+i}")
            for i in range(16): e(f"v_mul_f32 v{TM+i}, v{a+i}, v{a+i}")
            for i in range(16): e(f"v_fma_f32 v{TM+i}, v{TM+i}, s{sC1}, v{vC0}")
            for i in range(16): e(f"v_mul_f32 v{TM+i}, v{TM+i}, v{a+i}")
            for i in range(16): e(f"v_exp_f32 v{TM+i}, v{TM+i}")
            for i in range(16): e(f"v_add_f32 v{TM+i}, 1.0, v{TM+i}")
            for i in range(16): e(f"v_rcp_f32 v{TM+i}, v{TM+i}")
            for i in range(16): e(f"v_mul_f32 v{a+i}, v{a+i}, v{TM+i}")
            for i in range(8): e(f"v_cvt_pk_bf16_f32 v{a+i}, v{a+2*i}, v{a+2*i+1}")
            e(f"""s_add_u32 s{sT1}, s{sG}, {ts*112*1024 + fs*2048}
            buffer_store_dwordx4 {vr(a,4)}, v{vL16}, s[{SWS}:{SWS+3}], s{sT1} offen
            buffer_store_dwordx4 {vr(a+4,4)}, v{vL16}, s[{SWS}:{SWS+3}], s{sT1} offen offset:1024""")
    instr_end(k, 3, SWS, AF[0])
    k.label("L_k4_end")
    e("s_endpgm")
    return k, (224, 256, 131072)

def main():
    global INSTR
    if "--instr" in sys.argv: INSTR = True; sys.argv.remove("--instr")
    for a in list(sys.argv):
        if a.startswith("--exp="): EXP.update(a[6:].split(",")); sys.argv.remove(a)
    ks = [gen_k1(), gen_k2(), gen_k35(3), gen_k4(), gen_k35(5)]
    hdr = open("cdna_kernels/" + NAME + ".s.ref").read().split("; Override launch")[0]
    out = hdr
    for k, (g, b, lds) in ks:
        out += f"; @launch kernel={k.name} grid=({g},1,1) block=({b},1,1) lds={lds}\n"
    out += '.amdgcn_target "amdgcn-amd-amdhsa--gfx950"\n.text\n'
    for k, _ in ks: out += k.text()
    out += '.section .rodata,"a"\n'
    for k, _ in ks: out += k.kd()
    open(sys.argv[1] if len(sys.argv) > 1 else "out.s", "w").write(out)

if __name__ == "__main__":
    main()
```

```python
import sys, math

NAME = "sequential_preLN__mha_block__dense_activation_gelu__prompt"
MB = 1 << 20
WS_QF, WS_KF, WS_VF, WS_KN, WS_OF, WS_HF, WS_GF = 0, 2*MB, 4*MB, 6*MB, 8*MB, 10*MB, 12*MB
WS_ST = 7*MB
WS_SIZE = 40*MB
LOG2E = 1.4426950408889634
QSCALE = 0.25 * LOG2E

def f2u(f):
    import struct
    return struct.unpack("<I", struct.pack("<f", f))[0]

class K:
    def __init__(self, name, vgprs, sgprs=96, agprs=0):
        self.name = name; self.lines = []; self.vgprs = vgprs; self.sgprs = sgprs; self.agprs = agprs
        self.lbl = 0
    def e(self, s):
        for l in s.strip("\n").split("\n"):
            self.lines.append("    " + l.strip())
    def label(self, l): self.lines.append(f"{l}:")
    def c(self, s): self.lines.append(f"    ; {s}")
    def text(self):
        return (f".globl {self.name}\n.p2align 8\n.type {self.name},@function\n{self.name}:\n" + "\n".join(self.lines) + "\n")
    def kd(self):
        acc = (self.vgprs + 3)//4*4
        nfv = acc + self.agprs if self.agprs else self.vgprs
        return f""".p2align 6
.amdhsa_kernel {self.name}
  .amdhsa_next_free_vgpr {nfv}
  .amdhsa_next_free_sgpr {self.sgprs}
  .amdhsa_accum_offset {acc}
  .amdhsa_group_segment_fixed_size 0
  .amdhsa_kernarg_size 88
  .amdhsa_user_sgpr_count 2
  .amdhsa_user_sgpr_kernarg_segment_ptr 1
  .amdhsa_system_sgpr_workgroup_id_x 1
.end_amdhsa_kernel
"""

INSTR = False
EXP = set()
PARAM = {}
WS_DBG = 32*MB
def instr_start(k):
    if not INSTR: return
    k.e("s_memtime s[88:89]\ns_memrealtime s[90:91]")
def stamp(k, n):
    if not INSTR: return
    k.e(f"s_memtime s[86:87]\ns_waitcnt lgkmcnt(0)\ns_sub_u32 s{60+n}, s86, s88")
    k.nstamps = max(getattr(k, 'nstamps', 0), n+1)
def instr_end(k, idx, sws, vtmp):
    if not INSTR: return
    a, b = vtmp, vtmp+1
    k.e(f"""s_waitcnt vmcnt(0) lgkmcnt(0)
    s_memtime s[92:93]
    s_memrealtime s[94:95]
    s_waitcnt lgkmcnt(0)
    s_sub_u32 s92, s92, s88
    v_lshrrev_b32 v{a}, 6, v0
    s_lshl_b32 s93, s2, 4
    v_add_u32 v{a}, s93, v{a}
    v_lshlrev_b32 v{a}, 4, v{a}
    v_add_u32 v{a}, {WS_DBG + idx*65536*4}, v{a}
    v_mov_b32 v{b}, s90
    buffer_store_dword v{b}, v{a}, s[{sws}:{sws+3}], 0 offen
    v_mov_b32 v{b}, s94
    buffer_store_dword v{b}, v{a}, s[{sws}:{sws+3}], 0 offen offset:4
    v_mov_b32 v{b}, s92
    buffer_store_dword v{b}, v{a}, s[{sws}:{sws+3}], 0 offen offset:8""")
    ns = getattr(k, 'nstamps', 0)
    if ns:
        k.e(f"""v_lshrrev_b32 v{a}, 6, v0
        v_add_u32 v{a}, s93, v{a}
        v_lshlrev_b32 v{a}, 7, v{a}
        v_add_u32 v{a}, {WS_DBG + 2*MB + idx*MB//2}, v{a}""")
        for i in range(ns):
            k.e(f"v_mov_b32 v{b}, s{60+i}\nbuffer_store_dword v{b}, v{a}, s[{sws}:{sws+3}], 0 offen offset:{4*i}")

def vr(b, n): return f"v[{b}:{b+n-1}]"

def srd(k, d, lo, size):
    k.e(f"""s_mov_b32 s{d}, s{lo}
    s_and_b32 s{d+1}, s{lo+1}, 0xffff
    s_mov_b32 s{d+2}, {size}
    s_mov_b32 s{d+3}, 0x20000""")

def gen_k1():
    k = K("k1_qkv_kernel", vgprs=160)
    e = k.e
    SX, SW, SWS = 12, 16, 20
    sWave, sTsub, sP, sRb, sHg, sKh = 24, 25, 26, 27, 28, 29
    sM0, sOffX, sOffW, sT0, sT1, sCC, sW0 = 30, 32, 33, 34, 35, 38, 39
    vLane, vT, vH = 1, 2, 3
    vXo, vWo = 4, 6
    vXa = [8, 9]; vWa = [12, 13]
    vOnes = 14
    vSum, vSq, vCsV = 16, 17, 18
    vTmp = [20, 21, 22, 23, 24, 25, 26, 27]
    XF = [28, 32]
    WF = [[36, 40, 44], [48, 52, 56]]
    ACC = [64, 80, 96]
    EP = 112
    CSA = [128, 132, 136]
    ST = [140, 141, 142, 143]
    UN = [144, 145, 146, 147]
    SEL = 148
    AHEAD = 2
    e(f"""s_cmp_ge_u32 s2, 256
    s_cbranch_scc1 L_k1_end""")
    instr_start(k)
    e(f"""s_load_dwordx4 s[4:7], s[0:1], 0
    s_load_dwordx2 s[8:9], s[0:1], 80
    v_and_b32 v{vLane}, 63, v0
    v_lshrrev_b32 v{vTmp[0]}, 6, v0
    v_and_b32 v{vT}, 31, v0
    v_bfe_u32 v{vH}, v0, 5, 1
    v_readfirstlane_b32 s{sWave}, v{vTmp[0]}
    s_and_b32 s{sHg}, s2, 7
    s_lshr_b32 s{sRb}, s2, 3
    s_and_b32 s{sTsub}, s{sWave}, 1
    s_bfe_u32 s{sP}, s{sWave}, 0x10001
    s_lshr_b32 s{sKh}, s{sWave}, 2
    s_add_u32 s{sCC}, s{sHg}, s{sRb}""")
    r, cp, t0, t1 = vTmp[0], vTmp[1], vTmp[2], vTmp[3]
    e(f"""v_lshrrev_b32 v{r}, 3, v{vLane}
    v_and_b32 v{cp}, 7, v{vLane}
    s_lshl_b32 s{sT1}, s{sWave}, 3
    v_add_u32 v{t1}, s{sT1}, v{r}
    v_bfe_u32 v{t0}, v{t1}, 1, 3
    v_xor_b32 v{t0}, v{t0}, v{cp}
    v_lshlrev_b32 v{t0}, 4, v{t0}
    s_lshl_b32 s{sT0}, s{sRb}, 6
    v_add_u32 v{vXo}, s{sT0}, v{t1}
    v_lshl_add_u32 v{vXo}, v{vXo}, 10, v{t0}""")
    e(f"""v_bfe_u32 v{t0}, v{r}, 1, 1
    v_lshlrev_b32 v{t0}, 2, v{t0}
    v_xor_b32 v{t0}, v{t0}, v{cp}
    v_lshlrev_b32 v{t0}, 4, v{t0}
    v_mul_u32_u24 v{t1}, 3072, v{t1}
    v_add_u32 v{t0}, v{t0}, v{t1}
    s_lshl_b32 s{sT1}, s{sHg}, 7
    v_add_u32 v{vWo}, s{sT1}, v{t0}
    s_lshl_b32 s{sM0}, s{sWave}, 10
    s_waitcnt lgkmcnt(0)""")
    srd(k, SX, 4, 2*MB); srd(k, SW, 6, 512*3072); srd(k, SWS, 8, WS_SIZE)
    def dma_chunk(c):
        slot = c % 4
        out = [f"s_and_b32 s{sCC}, s{sCC}, 7",
               f"s_lshl_b32 s{sOffX}, s{sCC}, 7",
               f"s_add_u32 m0, s{sM0}, {slot*8192}",
               f"s_mul_i32 s{sW0}, s{sCC}, {64*3072}",
               f"buffer_load_dwordx4 v{vXo}, s[{SX}:{SX+3}], s{sOffX} offen lds"]
        for y in range(3):
            out += [f"s_add_u32 m0, s{sM0}, {32768 + slot*24576 + y*8192}",
                    f"s_add_u32 s{sOffW}, s{sW0}, {y*1024}",
                    f"buffer_load_dwordx4 v{vWo}, s[{SW}:{SW+3}], s{sOffW} offen lds"]
        out.append(f"s_add_u32 s{sCC}, s{sCC}, 1")
        return out
    stamp(k, 0)
    for c in range(AHEAD):
        for l in dma_chunk(c): e(l)
    stamp(k, 1)
    k.c("X frag read addr: t=32*tsub+t', addr = t*128 + ((2s+h) ^ ((t>>1)&7))*16, s = kh, kh+2")
    e(f"""s_lshl_b32 s{sT0}, s{sTsub}, 5
    v_add_u32 v{t0}, s{sT0}, v{vT}
    v_bfe_u32 v{t1}, v{t0}, 1, 3
    s_lshl_b32 s{sT0}, s{sKh}, 1""")
    for s in range(2):
        e(f"""v_add_u32 v{r}, {4*s}, v{vH}
        v_add_u32 v{r}, s{sT0}, v{r}
        v_xor_b32 v{r}, v{r}, v{t1}
        v_lshlrev_b32 v{r}, 4, v{r}
        v_lshl_add_u32 v{vXa[s]}, v{t0}, 7, v{r}""")
    k.c("W tr read addr")
    e(f"""v_and_b32 v{t0}, 15, v{vLane}
    v_lshrrev_b32 v{t1}, 2, v{t0}
    v_lshl_add_u32 v{t1}, v{vH}, 3, v{t1}
    v_lshlrev_b32 v{t1}, 7, v{t1}
    v_lshrrev_b32 v{r}, 3, v{t0}
    v_xor_b32 v{r}, s{sP}, v{r}
    v_lshl_add_u32 v{t1}, v{r}, 6, v{t1}
    v_bfe_u32 v{r}, v{vLane}, 4, 1
    v_lshl_add_u32 v{t1}, v{r}, 5, v{t1}
    v_and_b32 v{r}, 3, v{t0}
    v_lshl_add_u32 v{t1}, v{r}, 3, v{t1}
    s_lshl_b32 s{sT0}, s{sKh}, 11
    v_add_u32 v{t1}, s{sT0}, v{t1}
    v_add_u32 v{vWa[0]}, 32768, v{t1}
    v_add_u32 v{vWa[1]}, {32768+49152}, v{t1}
    v_mov_b32 v{vOnes}, 0x3f803f80
    v_bfe_u32 v{t1}, v{vLane}, 4, 1
    v_cmp_eq_u32 vcc, v{t0}, v{t1}
    v_mov_b32 v{t0}, 0
    s_nop 1""")
    for i in range(4): e(f"v_cndmask_b32 v{SEL+i}, v{t0}, v{vOnes}, vcc")
    for i in range(16): e(f"v_mov_b32 v{128+i}, 0")
    for y in range(3):
        for i in range(16): e(f"v_mov_b32 v{ACC[y]+i}, 0")
    def reads(c, s, b):
        slot = c % 4
        out = [f"ds_read_b128 {vr(XF[b],4)}, v{vXa[s]} offset:{slot*8192}"]
        for y in range(3):
            off = (slot & 1)*24576 + y*8192 + s*4096
            out.append(f"ds_read_b64_tr_b16 {vr(WF[b][y],2)}, v{vWa[slot>>1]} offset:{off}")
            out.append(f"ds_read_b64_tr_b16 {vr(WF[b][y]+2,2)}, v{vWa[slot>>1]} offset:{off+512}")
        return out
    def stats(b, i):
        lo, hi = UN[2*(i&1)], UN[2*(i&1)+1]
        e(f"""v_lshlrev_b32 v{lo}, 16, v{XF[b]+i}
        v_and_b32 v{hi}, 0xffff0000, v{XF[b]+i}
        v_add_f32 v{ST[0]}, v{ST[0]}, v{lo}
        v_add_f32 v{ST[1]}, v{ST[1]}, v{hi}
        v_fmac_f32 v{ST[2]}, v{lo}, v{lo}
        v_fmac_f32 v{ST[3]}, v{hi}, v{hi}""")
    def compute(b, extra):
        n = (len(extra) + 5)//6
        def x():
            for _ in range(n):
                if extra: e(extra.pop(0))
        e(f"v_mfma_f32_32x32x16_bf16 {vr(ACC[0],16)}, {vr(WF[b][0],4)}, {vr(XF[b],4)}, {vr(ACC[0],16)}"); x()
        stats(b, 0)
        e(f"v_mfma_f32_16x16x32_bf16 {vr(CSA[0],4)}, {vr(WF[b][0],4)}, {vr(SEL,4)}, {vr(CSA[0],4)}"); x()
        e(f"v_mfma_f32_32x32x16_bf16 {vr(ACC[1],16)}, {vr(WF[b][1],4)}, {vr(XF[b],4)}, {vr(ACC[1],16)}"); x()
        stats(b, 1)
        e(f"v_mfma_f32_16x16x32_bf16 {vr(CSA[1],4)}, {vr(WF[b][1],4)}, {vr(SEL,4)}, {vr(CSA[1],4)}"); x()
        stats(b, 2)
        e(f"v_mfma_f32_32x32x16_bf16 {vr(ACC[2],16)}, {vr(XF[b],4)}, {vr(WF[b][2],4)}, {vr(ACC[2],16)}"); x()
        stats(b, 3)
        e(f"v_mfma_f32_16x16x32_bf16 {vr(CSA[2],4)}, {vr(WF[b][2],4)}, {vr(SEL,4)}, {vr(CSA[2],4)}"); x()
        assert not extra
    NC = 8
    stamp(k, 2)
    e(f"s_waitcnt vmcnt({4*(AHEAD-1)})\ns_barrier")
    stamp(k, 3)
    for l in reads(0, 0, 0): e(l)
    for l in dma_chunk(AHEAD): e(l)
    issued = AHEAD + 1
    for c in range(NC):
        e("s_waitcnt lgkmcnt(0)")
        compute(0, reads(c, 1, 1))
        if c + 1 < NC:
            e(f"s_waitcnt vmcnt({4*(issued-1-(c+1))}) lgkmcnt(0)\ns_barrier")
            stamp(k, 4+c)
            ex = reads(c+1, 0, 0)
            if issued < NC:
                ex += dma_chunk(issued); issued += 1
            compute(1, ex)
        else:
            e("s_waitcnt lgkmcnt(0)")
            compute(1, [])
    stamp(k, 11)
    a0, a1, a2, a3 = vTmp[0], vTmp[1], vTmp[2], vTmp[3]
    vA, vB = vTmp[4], vTmp[5]
    vSt = vTmp[6]; vSt2 = vTmp[7]
    XCH = 32768
    e(f"""v_add_f32 v{vSum}, v{ST[0]}, v{ST[1]}
    v_add_f32 v{vSq}, v{ST[2]}, v{ST[3]}
    s_lshl_b32 s{sT0}, s{sWave}, 13
    s_add_u32 s{sT0}, s{sT0}, {XCH}
    s_xor_b32 s{sT1}, s{sWave}, 4
    s_lshl_b32 s{sT1}, s{sT1}, 13
    s_add_u32 s{sT1}, s{sT1}, {XCH}
    v_lshlrev_b32 v{vSt}, 4, v{vLane}
    v_add_u32 v{a0}, s{sT0}, v{vSt}
    v_add_u32 v{a1}, s{sT1}, v{vSt}
    v_lshlrev_b32 v{a2}, 3, v{vLane}
    v_add_u32 v{a3}, s{sT1}, v{a2}
    v_add_u32 v{a2}, s{sT0}, v{a2}
    ds_write_b64 v{a2}, v[{vSum}:{vSq}] offset:6144""")
    e(f"""v_and_b32 v{vA}, 15, v{vLane}
    v_lshrrev_b32 v{vB}, 4, v{vLane}
    v_lshlrev_b32 v{vB}, 4, v{vB}
    v_lshl_add_u32 v{vB}, v{vA}, 6, v{vB}
    v_add_u32 v{vB}, s{sT0}, v{vB}
    v_cmp_gt_u32 vcc, 2, v{vA}
    s_and_saveexec_b64 s[36:37], vcc
    ds_write_b128 v{vB}, {vr(CSA[0],4)} offset:7168
    ds_write_b128 v{vB}, {vr(CSA[1],4)} offset:{7168+128}
    ds_write_b128 v{vB}, {vr(CSA[2],4)} offset:{7168+256}
    s_mov_b64 exec, s[36:37]""")
    sTile = 40
    e(f"""s_lshl_b32 s{sTile}, s{sHg}, 2
    s_lshl_b32 s{sOffW}, s{sP}, 1
    s_add_u32 s{sTile}, s{sTile}, s{sOffW}
    s_lshl_b32 s{sTile}, s{sTile}, 6
    s_lshl_b32 s{sOffW}, s{sRb}, 1
    s_add_u32 s{sTile}, s{sTile}, s{sOffW}
    s_add_u32 s{sTile}, s{sTile}, s{sTsub}
    s_lshl_b32 s{sOffX}, s{sTile}, 10
    v_lshrrev_b32 v{vA}, 4, v{vT}
    v_lshlrev_b32 v{vA}, 16, v{vA}
    v_lshl_add_u32 v{vA}, v{vH}, 8, v{vA}
    v_and_b32 v{vB}, 15, v{vT}
    v_lshl_add_u32 v{vSt2}, v{vB}, 4, v{vA}
    s_cmp_lg_u32 s{sKh}, 0
    s_cbranch_scc1 L_k1_ep1""")
    def xhalf(v, tmp):
        e(f"""v_mov_b32 v{tmp}, v{v}
        s_nop 1
        v_permlane32_swap_b32 v{v}, v{tmp}
        s_nop 1
        v_add_f32 v{v}, v{v}, v{tmp}""")
    RC = 36
    CS2 = 128
    for kh in range(2):
        if kh == 1: k.label("L_k1_ep1")
        mine = kh
        other = 1 - kh
        vk = ACC[2] + 8*kh
        vo = ACC[2] + 8*other
        for g in range(4): e(f"ds_write_b128 v{a0}, {vr(ACC[other]+4*g,4)} offset:{1024*g}")
        for g in range(2): e(f"ds_write_b128 v{a0}, {vr(vo+4*g,4)} offset:{4096+1024*g}")
        e("s_waitcnt lgkmcnt(0)\ns_barrier")
        e(f"ds_read_b64 v[{UN[0]}:{UN[1]}], v{a3} offset:6144")
        e(f"""v_lshlrev_b32 v{vA}, 4, v{vH}
        v_add_u32 v{vB}, s{sT1}, v{vA}
        v_add_u32 v{vA}, s{sT0}, v{vA}""")
        for g in range(4): e(f"ds_read_b128 {vr(EP+4*g,4)}, v{vA} offset:{7168 + 128*mine + 32*g}")
        for g in range(4): e(f"ds_read_b128 {vr(CS2+4*g,4)}, v{vB} offset:{7168 + 128*mine + 32*g}")
        e(f"""v_lshlrev_b32 v{a2}, 2, v{vT}
        v_add_u32 v{a3}, s{sT1}, v{a2}
        v_add_u32 v{a2}, s{sT0}, v{a2}
        ds_read_b32 v{vCsV}, v{a2} offset:{7168+256}
        ds_read_b32 v{UN[2]}, v{a3} offset:{7168+256}
        s_waitcnt lgkmcnt(6)""")
        for g in range(6): e(f"ds_read_b128 {vr(RC+4*g,4)}, v{a1} offset:{1024*g}")
        e(f"""v_add_f32 v{vSum}, v{vSum}, v{UN[0]}
        v_add_f32 v{vSq}, v{vSq}, v{UN[1]}""")
        xhalf(vSum, UN[0]); xhalf(vSq, UN[0])
        va, vb = UN[0], UN[1]
        e(f"""v_mul_f32 v{vSum}, {1.0/512}, v{vSum}
        v_mul_f32 v{vSq}, {1.0/512}, v{vSq}
        v_fma_f32 v{vSq}, -v{vSum}, v{vSum}, v{vSq}
        v_max_f32 v{vSq}, 0, v{vSq}
        v_add_f32 v{vSq}, {1e-5}, v{vSq}
        v_rsq_f32 v{va}, v{vSq}
        s_nop 0
        v_mul_f32 v{vb}, v{vSum}, v{va}
        v_sub_f32 v{vb}, 0, v{vb}
        ds_write_b32 v{a2}, v{va} offset:7680
        ds_write_b32 v{a2}, v{vb} offset:{7680+128}
        s_waitcnt lgkmcnt(2)""")
        for i in range(16): e(f"v_add_f32 v{ACC[mine]+i}, v{ACC[mine]+i}, v{RC+i}")
        for i in range(8): e(f"v_add_f32 v{vk+i}, v{vk+i}, v{RC+16+i}")
        for i in range(16): e(f"v_add_f32 v{EP+i}, v{EP+i}, v{CS2+i}")
        e(f"v_add_f32 v{vCsV}, v{vCsV}, v{UN[2]}")
        for g in range(2):
            e(f"ds_read_b128 {vr(RC+4*g,4)}, v{vA} offset:{7680 + 32*(2*kh+g)}")
            e(f"ds_read_b128 {vr(RC+8+4*g,4)}, v{vA} offset:{7680 + 128 + 32*(2*kh+g)}")
        if kh == 0: e(f"v_mul_f32 v{va}, {QSCALE}, v{va}\nv_mul_f32 v{vb}, {QSCALE}, v{vb}")
        for i in range(16):
            e(f"v_mul_f32 v{EP+i}, v{vb}, v{EP+i}")
            e(f"v_fma_f32 v{EP+i}, v{ACC[mine]+i}, v{va}, v{EP+i}")
        for i in range(8): e(f"v_cvt_pk_bf16_f32 v{ACC[mine]+i}, v{EP+2*i}, v{EP+2*i+1}")
        base = WS_QF if kh == 0 else WS_KF
        e(f"""s_add_u32 s{sOffW}, s{sOffX}, {base}
        buffer_store_dwordx4 {vr(ACC[mine],4)}, v{vSt}, s[{SWS}:{SWS+3}], s{sOffW} offen
        s_add_u32 s{sOffW}, s{sOffX}, {base + 65536}
        buffer_store_dwordx4 {vr(ACC[mine]+4,4)}, v{vSt}, s[{SWS}:{SWS+3}], s{sOffW} offen
        s_waitcnt lgkmcnt(0)""")
        for i in range(8):
            e(f"v_mul_f32 v{EP+i}, v{vCsV}, v{RC+8+i}")
            e(f"v_fma_f32 v{EP+i}, v{vk+i}, v{RC+i}, v{EP+i}")
        for i in range(4): e(f"v_cvt_pk_bf16_f32 v{vk+i}, v{EP+2*i}, v{EP+2*i+1}")
        e(f"""s_add_u32 s{sOffW}, s{sOffX}, {WS_VF + 512*kh}
        buffer_store_dwordx4 {vr(vk,4)}, v{vSt2}, s[{SWS}:{SWS+3}], s{sOffW} offen""")
        if kh == 0:
            e("s_branch L_k1_done")
        else:
            n0, n1 = EP+8, EP+9
            e(f"v_mov_b32 v{n0}, 0\nv_mov_b32 v{n1}, 0")
            for i in range(4):
                e(f"v_dot2_f32_bf16 v{n0}, v{ACC[1]+i}, v{ACC[1]+i}, v{n0}")
                e(f"v_dot2_f32_bf16 v{n1}, v{ACC[1]+4+i}, v{ACC[1]+4+i}, v{n1}")
            e(f"""s_nop 3
            v_permlane32_swap_b32 v{n0}, v{n1}
            s_nop 1
            v_add_f32 v{n0}, v{n0}, v{n1}
            s_nop 1
            v_max_f32_dpp v{n0}, v{n0}, v{n0} row_shr:1 row_mask:0xf bank_mask:0xf
            s_nop 1
            v_max_f32_dpp v{n0}, v{n0}, v{n0} row_shr:2 row_mask:0xf bank_mask:0xf
            s_nop 1
            v_max_f32_dpp v{n0}, v{n0}, v{n0} row_shr:4 row_mask:0xf bank_mask:0xf
            s_nop 1
            v_max_f32_dpp v{n0}, v{n0}, v{n0} row_shr:8 row_mask:0xf bank_mask:0xf
            s_nop 1
            v_max_f32_dpp v{n0}, v{n0}, v{n0} row_bcast:15 row_mask:0xa bank_mask:0xf
            v_lshlrev_b32 v{n1}, 8, v{vH}
            s_lshl_b32 s{sOffW}, s{sTile}, 2
            s_add_u32 s{sOffW}, s{sOffW}, {WS_KN}
            s_mov_b32 exec_lo, 0x80000000
            s_mov_b32 exec_hi, 0x80000000
            buffer_store_dword v{n0}, v{n1}, s[{SWS}:{SWS+3}], s{sOffW} offen
            s_mov_b64 exec, -1""")
    k.label("L_k1_done")
    instr_end(k, 0, SWS, EP)
    k.label("L_k1_end")
    e("s_endpgm")
    return k, (256, 512, 131072)

VST = 1040
def gen_k2():
    k = K("k2_attn_kernel", vgprs=128)
    e = k.e
    SWS = 12
    sWave, sHead, sQt, sT0, sT1, sOff, sLoop, sPass = 16, 17, 18, 19, 20, 21, 22, 23
    sG0, sM0, sM0V = 26, 27, 28
    SPF = 32
    vLane, vL16, vKa, vVa, vVb, vT0, vT1, vT2, vT3 = 1, 2, 3, 4, 5, 6, 7, 44, 45
    QF = 8
    KF = [12, 16]
    VF = [20, 28]
    P2 = [36, 112]
    S = [48, 64]
    O = 80
    CI = 96
    PFD = 120
    e(f"""s_cmp_ge_u32 s2, 256
    s_cbranch_scc1 L_k2_end""")
    instr_start(k)
    e(f"""s_load_dwordx2 s[8:9], s[0:1], 80
    s_load_dwordx2 s[36:37], s[0:1], 16
    s_load_dwordx2 s[38:39], s[0:1], 32
    s_load_dwordx2 s[40:41], s[0:1], 48
    v_and_b32 v{vLane}, 63, v0
    v_lshrrev_b32 v{vT0}, 6, v0
    v_lshlrev_b32 v{vL16}, 4, v{vLane}
    v_readfirstlane_b32 s{sWave}, v{vT0}
    s_and_b32 s{sHead}, s2, 7
    s_lshl_b32 s{sHead}, s{sHead}, 2
    s_bfe_u32 s{sT0}, s2, 0x20003
    s_add_u32 s{sHead}, s{sHead}, s{sT0}
    s_lshr_b32 s{sQt}, s2, 5
    s_lshl_b32 s{sQt}, s{sQt}, 3
    s_add_u32 s{sQt}, s{sQt}, s{sWave}
    s_lshl_b32 s{sG0}, s{sHead}, 16
    s_lshl_b32 s{sM0}, s{sWave}, 10
    s_add_u32 s{sG0}, s{sG0}, s{sM0}
    s_mul_i32 s{sM0V}, s{sWave}, {VST}
    s_lshl_b32 s{sT0}, s{sHead}, 6
    s_add_u32 s{sT1}, s{sT0}, s{sQt}
    s_lshl_b32 s{sT1}, s{sT1}, 10
    v_lshlrev_b32 v{vT0}, 2, v{vLane}
    s_waitcnt lgkmcnt(0)""")
    srd(k, SWS, 8, WS_SIZE)
    def dma(p, y):
        if y == 0: e(f"s_add_u32 m0, s{sM0}, {p*8192}")
        else: e(f"s_add_u32 m0, s{sM0V}, {65536 + p*8*VST}")
        e(f"""s_add_u32 s{sOff}, s{sG0}, {(WS_KF if y == 0 else WS_VF) + p*8192}
        buffer_load_dwordx4 v{vL16}, s[{SWS}:{SWS+3}], s{sOff} offen lds""")
    e(f"""buffer_load_dwordx4 {vr(QF,4)}, v{vL16}, s[{SWS}:{SWS+3}], s{sT1} offen
    s_lshl_b32 s{sT1}, s{sT0}, 2
    s_add_u32 s{sT1}, s{sT1}, {WS_KN}
    buffer_load_dword v{vT1}, v{vT0}, s[{SWS}:{SWS+3}], s{sT1} offen""")
    dma(0, 0); dma(0, 1); dma(1, 0); dma(1, 1)
    e(f"""v_mov_b32 v{PFD}, 0x3f803f80
    v_mov_b32 v{PFD+1}, 0x3f803f80
    v_mov_b32 v{PFD+2}, 0x3f803f80
    v_mov_b32 v{PFD+3}, 0x3f803f80
    v_mul_u32_u24 v{vT2}, {VST}, v{vLane}
    v_add_u32 v{vT2}, {65536+1024}, v{vT2}
    ds_write_b128 v{vT2}, {vr(PFD,4)}""")
    e(f"""v_bfe_u32 v{vT0}, v{vLane}, 5, 1
    v_and_b32 v{vT2}, 15, v{vLane}
    v_lshlrev_b32 v{vT2}, 4, v{vT2}
    v_lshl_add_u32 v{vT2}, v{vT0}, 8, v{vT2}
    v_add_u32 v{vT2}, 65536, v{vT2}
    v_add_u32 v{vT3}, 512, v{vT2}
    v_bfe_u32 v{vT0}, v{vLane}, 4, 1
    v_cmp_eq_u32 vcc, 1, v{vT0}
    v_mov_b32 v{vT0}, {65536+1024}
    s_nop 0
    v_cndmask_b32 v{vT2}, v{vT2}, v{vT0}, vcc
    v_cndmask_b32 v{vT3}, v{vT3}, v{vT0}, vcc""")
    e(f"""s_waitcnt vmcnt(4)
    v_mov_b32 v{vT0}, 0
    v_max_f32_dpp v{vT1}, v{vT1}, v{vT1} row_shr:1 row_mask:0xf bank_mask:0xf
    v_dot2_f32_bf16 v{vT0}, v{QF}, v{QF}, v{vT0}
    v_dot2_f32_bf16 v{vT0}, v{QF+1}, v{QF+1}, v{vT0}
    v_max_f32_dpp v{vT1}, v{vT1}, v{vT1} row_shr:2 row_mask:0xf bank_mask:0xf
    v_dot2_f32_bf16 v{vT0}, v{QF+2}, v{QF+2}, v{vT0}
    v_dot2_f32_bf16 v{vT0}, v{QF+3}, v{QF+3}, v{vT0}
    v_max_f32_dpp v{vT1}, v{vT1}, v{vT1} row_shr:4 row_mask:0xf bank_mask:0xf
    s_nop 1
    v_max_f32_dpp v{vT1}, v{vT1}, v{vT1} row_shr:8 row_mask:0xf bank_mask:0xf
    s_nop 1
    v_max_f32_dpp v{vT1}, v{vT1}, v{vT1} row_bcast:15 row_mask:0xa bank_mask:0xf
    s_nop 1
    v_max_f32_dpp v{vT1}, v{vT1}, v{vT1} row_bcast:31 row_mask:0xc bank_mask:0xf
    v_mov_b32 v{CI}, v{vT0}
    s_nop 1
    v_readlane_b32 s{sT0}, v{vT1}, 63
    v_permlane32_swap_b32 v{vT0}, v{CI}
    s_nop 1
    v_add_f32 v{vT0}, v{vT0}, v{CI}
    v_mul_f32 v{vT0}, s{sT0}, v{vT0}
    v_sqrt_f32 v{vT0}, v{vT0}
    s_nop 0
    v_sub_f32 v{vT0}, 0, v{vT0}
    s_mov_b32 s{sPass}, 0""")
    def init_pass():
        for i in range(16): e(f"v_mov_b32 v{CI+i}, v{vT0}")
        for i in range(16): e(f"v_mov_b32 v{O+i}, 0")
        for i in range(4): e(f"v_mov_b32 v{P2[1]+4+i}, 0")
        for i in range(4): e(f"v_mov_b32 v{VF[1]+4+i}, 0")
        e(f"""v_mov_b32 v{vKa}, v{vL16}
        v_mov_b32 v{vVa}, v{vT2}
        v_mov_b32 v{vVb}, v{vT3}
        s_mov_b32 s{sLoop}, 0""")
    init_pass()
    e(f"""s_waitcnt vmcnt(2) lgkmcnt(0)
    s_barrier""")
    stamp(k, 0)
    def rdK(i):
        if 'nolds' in EXP and i >= 2: return
        e(f"ds_read_b128 {vr(KF[i&1],4)}, v{vKa} offset:{i*1024}")
    def rdVa(i):
        if 'nolds' in EXP and i >= 2: return
        e(f"ds_read_b128 {vr(VF[i&1],4)}, v{vVa} offset:{i*VST}")
    def rdVb(i):
        if 'nolds' in EXP and i >= 2: return
        e(f"ds_read_b128 {vr(VF[i&1]+4,4)}, v{vVb} offset:{i*VST}")
    def qk(i): e(f"v_mfma_f32_32x32x16_bf16 {vr(S[i&1],16)}, {vr(KF[i&1],4)}, {vr(QF,4)}, {vr(CI,16)}")
    def tile(i, extra=None):
        s = S[i & 1]; pc = P2[i & 1]; pp = P2[(i+1) & 1]
        extra = list(extra or [])
        def x():
            if extra: e(extra.pop(0))
        e(f"v_exp_f32 v{s}, v{s}")
        e(f"v_exp_f32 v{s+1}, v{s+1}")
        e(f"v_mfma_f32_32x32x16_bf16 {vr(O,16)}, {vr(VF[(i+1)&1]+4,4)}, {vr(pp+4,4)}, {vr(O,16)}")
        for j in range(2, 16):
            e(f"v_exp_f32 v{s+j}, v{s+j}")
            if j == 5: e("s_waitcnt lgkmcnt(1)")
            if j == 8: rdVa(i+1)
            if j == 10: rdK(i+2)
            if j == 14: rdVb(i+1)
            if j in (2, 3, 4): x()
            if j >= 3 and j % 2 == 1: e(f"v_cvt_pk_bf16_f32 v{pc+(j-3)//2}, v{s+j-3}, v{s+j-2}")
            if j == 6: qk(i+1)
            if j == 12: e(f"v_mfma_f32_32x32x16_bf16 {vr(O,16)}, {vr(VF[i&1],4)}, {vr(pc,4)}, {vr(O,16)}")
        e("s_waitcnt lgkmcnt(3)")
        e(f"v_cvt_pk_bf16_f32 v{pc+7}, v{s+14}, v{s+15}")
        while extra: x()
    def pipe_pro():
        rdK(0); rdVa(0); rdK(1); rdVb(0)
        e("s_waitcnt lgkmcnt(3)")
        qk(0)
        e("s_nop 7\ns_nop 7")
    def dma_lines(p, y):
        n0 = len(k.lines); dma(p, y); l = k.lines[n0:]; del k.lines[n0:]; return [x.strip() for x in l]
    pipe_pro()
    pf = []
    for i in range(16):
        if i == 6:
            e("s_waitcnt vmcnt(6)\ns_barrier")
        if i == 14:
            e("s_waitcnt vmcnt(0)\ns_barrier")
        ex = []
        if i < 12: ex = dma_lines(2 + i//2, i & 1)
        tile(i, ex)
    e(f"""v_add_u32 v{vKa}, 16384, v{vKa}
    v_add_u32 v{vVa}, {16*VST}, v{vVa}
    v_add_u32 v{vVb}, {16*VST}, v{vVb}
    s_mov_b32 s{sLoop}, 1""")
    if 'nopf' not in EXP:
        e(f"""s_lshl_b32 s{sT0}, s2, 3
        s_add_u32 s{sT0}, s{sT0}, s{sWave}
        s_lshl_b32 s{sT0}, s{sT0}, 10""")
        for (lo, size) in ((38, 512*3584), (40, 1792*1024), (36, 512*1024)):
            srd(k, SPF, lo, size)
            e(f"buffer_load_dwordx4 {vr(PFD,4)}, v{vL16}, s[{SPF}:{SPF+3}], s{sT0} offen")
    stamp(k, 2)
    k.label("L_k2_loop")
    for i in range(16): tile(i)
    e(f"""v_add_u32 v{vKa}, 16384, v{vKa}
    v_add_u32 v{vVa}, {16*VST}, v{vVa}
    v_add_u32 v{vVb}, {16*VST}, v{vVb}
    s_add_u32 s{sLoop}, s{sLoop}, 1
    s_cmp_lt_u32 s{sLoop}, 4
    s_cbranch_scc1 L_k2_loop
    v_mfma_f32_32x32x16_bf16 {vr(O,16)}, {vr(VF[1]+4,4)}, {vr(P2[1]+4,4)}, {vr(O,16)}
    s_waitcnt lgkmcnt(0)
    s_nop 7
    s_nop 7""")
    stamp(k, 1)
    e(f"""v_cmp_nle_f32 vcc, {hex(f2u(2.0**-64))}, v{O+8}
    s_cmp_lg_u32 s{sPass}, 0
    s_cbranch_scc1 L_k2_out
    s_cbranch_vccnz L_k2_fallback
    v_mov_b32 v{vT1}, 0x7f000000
    v_cmp_nlt_f32 vcc, v{O+8}, v{vT1}
    s_cbranch_vccz L_k2_out""")
    k.label("L_k2_fallback")
    k.c("fallback: exact row max over all keys, then redo")
    for i in range(16): e(f"v_mov_b32 v{CI+i}, 0")
    e(f"""v_mov_b32 v{vT0}, 0xff7fffff
    v_mov_b32 v{vKa}, v{vL16}
    s_mov_b32 s{sLoop}, 0""")
    k.label("L_k2_fbloop")
    e(f"""ds_read_b128 {vr(KF[0],4)}, v{vKa}
    s_waitcnt lgkmcnt(0)
    v_mfma_f32_32x32x16_bf16 {vr(S[0],16)}, {vr(KF[0],4)}, {vr(QF,4)}, {vr(CI,16)}
    s_nop 15
    s_nop 3""")
    for j in range(8): e(f"v_max3_f32 v{vT0}, v{vT0}, v{S[0]+2*j}, v{S[0]+2*j+1}")
    e(f"""v_add_u32 v{vKa}, 1024, v{vKa}
    s_add_u32 s{sLoop}, s{sLoop}, 1
    s_cmp_lt_u32 s{sLoop}, 64
    s_cbranch_scc1 L_k2_fbloop
    v_mov_b32 v{vT1}, v{vT0}
    s_nop 1
    v_permlane32_swap_b32 v{vT0}, v{vT1}
    s_nop 1
    v_max_f32 v{vT0}, v{vT0}, v{vT1}
    v_sub_f32 v{vT0}, 0, v{vT0}
    s_mov_b32 s{sPass}, 1""")
    init_pass()
    pipe_pro()
    e("s_branch L_k2_loop")
    k.label("L_k2_out")
    e(f"v_rcp_f32 v{vT0}, v{O+8}\ns_nop 0")
    for i in range(8): e(f"v_mul_f32 v{O+i}, v{O+i}, v{vT0}")
    for i in range(4): e(f"v_cvt_pk_bf16_f32 v{P2[0]+i}, v{O+2*i}, v{O+2*i+1}")
    e(f"""s_lshl_b32 s{sT0}, s{sQt}, 5
    s_add_u32 s{sT0}, s{sT0}, s{sHead}
    s_lshl_b32 s{sT0}, s{sT0}, 10
    s_add_u32 s{sT0}, s{sT0}, {WS_OF}
    buffer_store_dwordx4 {vr(P2[0],4)}, v{vL16}, s[{SWS}:{SWS+3}], s{sT0} offen""")
    instr_end(k, 1, SWS, S[0])
    k.label("L_k2_end")
    e("s_endpgm")
    return k, (256, 512, 65536 + 64*VST + 3072)

def gen_k35(which):
    is3 = which == 3
    nm = "k3_wo_kernel" if is3 else "k5_ffn2_kernel"
    L = "L_k3" if is3 else "L_k5"
    KS = 32 if is3 else 112
    NC = KS // 4
    RING = 8
    AHEAD = int(PARAM.get('ah35', 5))
    ACT = WS_OF if is3 else WS_GF
    k = K(nm, vgprs=128)
    e = k.e
    SW, SWS, SX, SB = 12, 16, 20, 24
    sWave, sTsub, sFsub, sRb, sCb = 28, 29, 30, 31, 32
    sM0A, sM0W, sOffA, sOffW, sT0, sT1, sA0 = 33, 34, 35, 36, 37, 38, 39
    vLane, vT, vH, vL16, vWo = 1, 2, 3, 4, 5
    vAa = [6, 7]; vWa = [8, 9]
    t0, t1, t2, t3 = 10, 11, 12, 13
    RES = 16
    BIA = 24
    AF = [32, 48]
    WF = [64, 80]
    ACC = 96
    EP = 112
    e(f"""s_cmp_ge_u32 s2, 256
    s_cbranch_scc1 {L}_end""")
    instr_start(k)
    if is3:
        e(f"""s_load_dwordx2 s[4:5], s[0:1], 16
        s_load_dwordx2 s[6:7], s[0:1], 0""")
    else:
        e(f"""s_load_dwordx2 s[4:5], s[0:1], 48
        s_load_dwordx4 s[40:43], s[0:1], 56""")
    e(f"""s_load_dwordx2 s[8:9], s[0:1], 80
    v_and_b32 v{vLane}, 63, v0
    v_lshrrev_b32 v{t0}, 6, v0
    v_and_b32 v{vT}, 31, v0
    v_bfe_u32 v{vH}, v0, 5, 1
    v_readfirstlane_b32 s{sT1}, v{t0}
    v_lshlrev_b32 v{vL16}, 4, v{vLane}
    s_and_b32 s{sRb}, s2, 7
    s_lshl_b32 s{sRb}, s{sRb}, 2
    s_bfe_u32 s{sT0}, s2, 0x20003
    s_add_u32 s{sRb}, s{sRb}, s{sT0}
    s_lshr_b32 s{sCb}, s2, 5
    s_and_b32 s{sWave}, s{sT1}, 3
    s_and_b32 s{sTsub}, s{sWave}, 1
    s_lshr_b32 s{sFsub}, s{sWave}, 1
    s_cmp_ge_u32 s{sT1}, 4
    s_cbranch_scc1 {L}_loader""")
    vRM = t3
    e(f"""s_lshl_b32 s{sT0}, s{sRb}, 6
    s_lshl_b32 s{sT1}, s{sTsub}, 5
    s_add_u32 s{sT0}, s{sT0}, s{sT1}
    v_add_u32 v{t0}, s{sT0}, v{vT}
    v_lshlrev_b32 v{t0}, 10, v{t0}
    v_lshlrev_b32 v{t1}, 3, v{vH}
    s_lshl_b32 s{sT0}, s{sCb}, 7
    s_lshl_b32 s{sT1}, s{sFsub}, 6
    s_add_u32 s{sT0}, s{sT0}, s{sT1}
    v_add_u32 v{t1}, s{sT0}, v{t1}
    v_add_u32 v{vRM}, v{t0}, v{t1}""")
    sHo = 44
    e(f"""s_lshl_b32 s{sHo}, s{sRb}, 1
    s_add_u32 s{sHo}, s{sHo}, s{sTsub}
    s_lshl_b32 s{sHo}, s{sHo}, 5
    s_lshl_b32 s{sT0}, s{sCb}, 2
    s_add_u32 s{sHo}, s{sHo}, s{sT0}
    s_lshl_b32 s{sT0}, s{sFsub}, 1
    s_add_u32 s{sHo}, s{sHo}, s{sT0}
    s_lshl_b32 s{sHo}, s{sHo}, 10
    s_add_u32 s{sHo}, s{sHo}, {WS_HF}
    s_waitcnt lgkmcnt(0)""")
    srd(k, SWS, 8, WS_SIZE)
    if is3:
        srd(k, SX, 6, 2*MB)
        for g in range(4): e(f"buffer_load_dwordx2 {vr(RES+2*g,2)}, v{vRM}, s[{SX}:{SX+3}], 0 offen offset:{16*g}")
    else:
        srd(k, SB, 40, 1024); srd(k, SX, 42, 2*MB)
        e(f"""buffer_load_dwordx4 {vr(RES,4)}, v{vL16}, s[{SWS}:{SWS+3}], s{sHo} offen
        buffer_load_dwordx4 {vr(RES+4,4)}, v{vL16}, s[{SWS}:{SWS+3}], s{sHo} offen offset:1024""")
        for g in range(4): e(f"buffer_load_dwordx2 {vr(BIA+2*g,2)}, v{t1}, s[{SB}:{SB+3}], 0 offen offset:{16*g}")
    e(f"""s_lshl_b32 s{sT0}, s{sTsub}, 12
    v_add_u32 v{vAa[0]}, s{sT0}, v{vL16}
    v_add_u32 v{vAa[1]}, 65536, v{vAa[0]}
    v_and_b32 v{t0}, 15, v{vLane}
    v_lshrrev_b32 v{t1}, 2, v{t0}
    v_lshl_add_u32 v{t1}, v{vH}, 2, v{t1}
    v_lshlrev_b32 v{t1}, 7, v{t1}
    v_lshrrev_b32 v{t2}, 3, v{t0}
    v_xor_b32 v{t2}, s{sFsub}, v{t2}
    v_lshl_add_u32 v{t1}, v{t2}, 6, v{t1}
    v_bfe_u32 v{t2}, v{vLane}, 4, 1
    v_lshl_add_u32 v{t1}, v{t2}, 5, v{t1}
    v_and_b32 v{t2}, 3, v{t0}
    v_lshl_add_u32 v{t1}, v{t2}, 3, v{t1}
    v_add_u32 v{vWa[0]}, 8192, v{t1}
    v_add_u32 v{vWa[1]}, {8192+65536}, v{t1}""")
    for i in range(16): e(f"v_mov_b32 v{ACC+i}, 0")
    def rd(c, s):
        slot = c % RING; b = c & 1
        off = (slot & 3)*16384
        e(f"""ds_read_b128 {vr(AF[b]+4*s,4)}, v{vAa[slot>>2]} offset:{off + s*1024}
        ds_read_b64_tr_b16 {vr(WF[b]+4*s,2)}, v{vWa[slot>>2]} offset:{off + s*2048}
        ds_read_b64_tr_b16 {vr(WF[b]+4*s+2,2)}, v{vWa[slot>>2]} offset:{off + s*2048 + 1024}""")
    def mm(c, s):
        b = c & 1
        e(f"v_mfma_f32_32x32x16_bf16 {vr(ACC,16)}, {vr(WF[b]+4*s,4)}, {vr(AF[b]+4*s,4)}, {vr(ACC,16)}")
    stamp(k, 1)
    e("s_barrier")
    stamp(k, 2)
    for s in range(4): rd(0, s)
    for c in range(NC):
        if c + 1 < NC:
            e(f"s_waitcnt lgkmcnt(0)\ns_barrier")
            if is3 or c % 2 == 0: stamp(k, 3 + (c if is3 else c//2))
            for s in range(4):
                mm(c, s)
                rd(c+1, s)
        else:
            e("s_waitcnt lgkmcnt(0)")
            for s in range(4): mm(c, s)
    def unpack(dst, src):
        e(f"v_lshlrev_b32 v{dst}, 16, v{src}\nv_and_b32 v{dst+1}, 0xffff0000, v{src}")
    e("s_waitcnt vmcnt(0)")
    for i in range(8): unpack(EP+2*i, RES+i)
    if not is3:
        for i in range(8): unpack(AF[0]+2*i, BIA+i)
        for i in range(16): e(f"v_add_f32 v{EP+i}, v{EP+i}, v{AF[0]+i}")
    stamp(k, 20)
    for i in range(16): e(f"v_add_f32 v{ACC+i}, v{ACC+i}, v{EP+i}")
    for i in range(8): e(f"v_cvt_pk_bf16_f32 v{EP+i}, v{ACC+2*i}, v{ACC+2*i+1}")
    if is3:
        e(f"""buffer_store_dwordx4 {vr(EP,4)}, v{vL16}, s[{SWS}:{SWS+3}], s{sHo} offen
        buffer_store_dwordx4 {vr(EP+4,4)}, v{vL16}, s[{SWS}:{SWS+3}], s{sHo} offen offset:1024""")
        e(f"v_add_f32 v{t0}, v{ACC}, v{ACC+1}\nv_mul_f32 v{t1}, v{ACC}, v{ACC}\nv_mul_f32 v{t2}, v{ACC+1}, v{ACC+1}")
        for i in range(2, 16):
            e(f"v_add_f32 v{t0}, v{t0}, v{ACC+i}\nv_fmac_f32 v{t1 + (i&1)}, v{ACC+i}, v{ACC+i}")
        e(f"""v_add_f32 v{t1}, v{t1}, v{t2}
        s_lshl_b32 s{sT0}, s{sCb}, 1
        s_add_u32 s{sT0}, s{sT0}, s{sFsub}
        v_permlane32_swap_b32 v{t0}, v{t1}
        s_lshl_b32 s{sT0}, s{sT0}, 11
        s_lshl_b32 s{sT1}, s{sRb}, 6
        v_add_f32 v{t0}, v{t0}, v{t1}
        s_add_u32 s{sT0}, s{sT0}, s{sT1}
        s_lshl_b32 s{sT1}, s{sTsub}, 5
        s_add_u32 s{sT0}, s{sT0}, s{sT1}
        s_lshl_b32 s{sT0}, s{sT0}, 3
        s_add_u32 s{sT0}, s{sT0}, {WS_ST}
        v_lshlrev_b32 v{t1}, 3, v{vT}
        v_lshl_add_u32 v{t1}, v{vH}, 2, v{t1}
        buffer_store_dword v{t0}, v{t1}, s[{SWS}:{SWS+3}], s{sT0} offen""")
    else:
        for g in range(4): e(f"buffer_store_dwordx2 {vr(EP+2*g,2)}, v{vRM}, s[{SX}:{SX+3}], 0 offen offset:{16*g}")
    instr_end(k, 2 if is3 else 4, SWS, AF[0])
    e("s_endpgm")
    k.label(f"{L}_loader")
    e(f"""v_lshrrev_b32 v{t0}, 3, v{vLane}
    v_and_b32 v{t1}, 7, v{vLane}
    v_bfe_u32 v{t2}, v{t0}, 1, 1
    v_lshlrev_b32 v{t2}, 2, v{t2}
    v_xor_b32 v{t2}, v{t2}, v{t1}
    v_lshlrev_b32 v{t2}, 4, v{t2}
    s_lshl_b32 s{sT0}, s{sWave}, 4
    v_add_u32 v{t0}, s{sT0}, v{t0}
    v_lshl_add_u32 v{t2}, v{t0}, 10, v{t2}
    s_lshl_b32 s{sT1}, s{sCb}, 7
    v_add_u32 v{vWo}, s{sT1}, v{t2}
    s_lshl_b32 s{sA0}, s{sRb}, 1
    s_add_u32 s{sA0}, s{sA0}, s{sTsub}
    s_mul_i32 s{sA0}, s{sA0}, {KS}
    s_lshl_b32 s{sT0}, s{sFsub}, 1
    s_add_u32 s{sA0}, s{sA0}, s{sT0}
    s_lshl_b32 s{sA0}, s{sA0}, 10
    s_add_u32 s{sA0}, s{sA0}, {ACT}
    s_lshl_b32 s{sM0A}, s{sTsub}, 12
    s_lshl_b32 s{sT0}, s{sFsub}, 11
    s_add_u32 s{sM0A}, s{sM0A}, s{sT0}
    s_lshl_b32 s{sM0W}, s{sWave}, 11
    s_add_u32 s{sM0W}, s{sM0W}, 8192
    s_waitcnt lgkmcnt(0)""")
    srd(k, SW, 4, KS*16*1024); srd(k, SWS, 8, WS_SIZE)
    def dma_chunk(c):
        slot = c % RING
        e(f"""s_add_u32 m0, s{sM0A}, {slot*16384}
        s_add_u32 s{sOffA}, s{sA0}, {c*4096}
        buffer_load_dwordx4 v{vL16}, s[{SWS}:{SWS+3}], s{sOffA} offen lds
        buffer_load_dwordx4 v{vL16}, s[{SWS}:{SWS+3}], s{sOffA} offen offset:1024 lds
        s_add_u32 m0, s{sM0W}, {slot*16384}
        s_mov_b32 s{sOffW}, {c*65536}
        buffer_load_dwordx4 v{vWo}, s[{SW}:{SW+3}], s{sOffW} offen lds
        s_add_u32 m0, s{sM0W}, {slot*16384 + 1024}
        s_mov_b32 s{sOffW}, {c*65536 + 8192}
        buffer_load_dwordx4 v{vWo}, s[{SW}:{SW+3}], s{sOffW} offen lds""")
    FIRST = min(AHEAD, int(PARAM.get('first35', 3)))
    for c in range(FIRST): dma_chunk(c)
    issued = FIRST
    for c in range(NC):
        e(f"s_waitcnt vmcnt({4*(issued-1-c)})\ns_barrier")
        n = 0
        while issued < NC and issued < c + AHEAD and issued - (c-1) <= RING and n < 2:
            dma_chunk(issued); issued += 1; n += 1
    k.label(f"{L}_end")
    e("s_endpgm")
    return k, (256, 512, 131072)

def gen_k4():
    k = K("k4_ffn1_kernel", vgprs=216)
    e = k.e
    NC = 16; RING = 8; AHEAD = int(PARAM.get('ah4', 5))
    SW, SWS, SB = 12, 16, 20
    sWave, sTh, sFh, sRb, sCb = 28, 29, 30, 31, 32
    sM0A, sM0W, sOffA, sOffW, sT0, sT1, sA0 = 33, 34, 35, 36, 37, 38, 39
    vLane, vT, vH, vL16, vWo = 1, 2, 3, 4, 5
    vAa = [6, 7]; vWa = [[8, 9], [10, 11]]
    t0, t1, t2, t3 = 12, 13, 14, 15
    SEL = 16
    CSA = [20, 24]
    STA = [28, 30]
    AF = [32, 48]
    WF = [64, 80]
    ACC = 96
    EP = 160
    EB = 176
    SL = 160
    BL = 192
    PK = 208
    e(f"""s_cmp_ge_u32 s2, 224
    s_cbranch_scc1 L_k4_end""")
    instr_start(k)
    e(f"""s_load_dwordx4 s[4:7], s[0:1], 32
    s_load_dwordx2 s[8:9], s[0:1], 80
    v_and_b32 v{vLane}, 63, v0
    v_lshrrev_b32 v{t0}, 6, v0
    v_and_b32 v{vT}, 31, v0
    v_bfe_u32 v{vH}, v0, 5, 1
    v_readfirstlane_b32 s{sT1}, v{t0}
    v_lshlrev_b32 v{vL16}, 4, v{vLane}
    s_and_b32 s{sRb}, s2, 7
    s_lshl_b32 s{sRb}, s{sRb}, 1
    s_bfe_u32 s{sT0}, s2, 0x10003
    s_add_u32 s{sRb}, s{sRb}, s{sT0}
    s_lshr_b32 s{sCb}, s2, 4
    s_and_b32 s{sWave}, s{sT1}, 3
    s_and_b32 s{sTh}, s{sWave}, 1
    s_lshr_b32 s{sFh}, s{sWave}, 1
    s_cmp_ge_u32 s{sT1}, 4
    s_cbranch_scc1 L_k4_loader""")
    e(f"""s_lshl_b32 s{sT0}, s{sRb}, 7
    s_lshl_b32 s{sT1}, s{sTh}, 6
    s_add_u32 s{sT0}, s{sT0}, s{sT1}
    s_lshl_b32 s{sT0}, s{sT0}, 3
    s_add_u32 s{sT0}, s{sT0}, {WS_ST}
    v_lshlrev_b32 v{t0}, 3, v{vT}
    v_lshl_add_u32 v{t0}, v{vH}, 17, v{t0}
    v_lshlrev_b32 v{t3}, 3, v{vH}
    s_waitcnt lgkmcnt(0)""")
    srd(k, SWS, 8, WS_SIZE); srd(k, SB, 6, 3584)
    for j in range(8):
        e(f"s_add_u32 s{sT1}, s{sT0}, {j*16384}")
        for ts in range(2):
            e(f"buffer_load_dwordx2 {vr(SL+16*ts+2*j,2)}, v{t0}, s[{SWS}:{SWS+3}], s{sT1} offen offset:{256*ts}")
    e(f"""s_lshl_b32 s{sT0}, s{sCb}, 8
    s_lshl_b32 s{sT1}, s{sFh}, 7
    s_add_u32 s{sT0}, s{sT0}, s{sT1}""")
    for fs in range(2):
        for g in range(4): e(f"buffer_load_dwordx2 {vr(BL+8*fs+2*g,2)}, v{t3}, s[{SB}:{SB+3}], s{sT0} offen offset:{64*fs + 16*g}")
    e(f"""s_lshl_b32 s{sT0}, s{sTh}, 12
    v_add_u32 v{vAa[0]}, s{sT0}, v{vL16}
    v_add_u32 v{vAa[1]}, 65536, v{vAa[0]}
    v_and_b32 v{t0}, 15, v{vLane}
    v_lshrrev_b32 v{t1}, 2, v{t0}
    v_lshl_add_u32 v{t2}, v{vH}, 2, v{t1}
    v_lshlrev_b32 v{t2}, 8, v{t2}
    v_bfe_u32 v{t3}, v{vLane}, 4, 1
    v_lshl_add_u32 v{t2}, v{t3}, 5, v{t2}
    v_and_b32 v{t3}, 3, v{t0}
    v_lshl_add_u32 v{t2}, v{t3}, 3, v{t2}
    s_lshl_b32 s{sT0}, s{sFh}, 1""")
    for fs in range(2):
        e(f"""s_add_u32 s{sT1}, s{sT0}, {fs}
        v_xor_b32 v{t3}, s{sT1}, v{t1}
        v_lshl_add_u32 v{t3}, v{t3}, 6, v{t2}
        v_add_u32 v{vWa[fs][0]}, 8192, v{t3}
        v_add_u32 v{vWa[fs][1]}, {8192+65536}, v{t3}""")
    e(f"""v_bfe_u32 v{t1}, v{vLane}, 4, 1
    v_cmp_eq_u32 vcc, v{t0}, v{t1}
    v_mov_b32 v{t0}, 0
    v_mov_b32 v{t1}, 0x3f803f80
    v_cndmask_b32 v{SEL}, v{t0}, v{t1}, vcc
    v_cndmask_b32 v{SEL+1}, v{t0}, v{t1}, vcc
    v_cndmask_b32 v{SEL+2}, v{t0}, v{t1}, vcc
    v_cndmask_b32 v{SEL+3}, v{t0}, v{t1}, vcc""")
    for i in range(8): e(f"v_mov_b32 v{CSA[0]+i}, 0")
    for i in range(64): e(f"v_mov_b32 v{ACC+i}, 0")
    e("s_waitcnt vmcnt(8)")
    for ts in range(2):
        b0 = SL + 16*ts
        for j in range(1, 8):
            e(f"v_add_f32 v{b0}, v{b0}, v{b0+2*j}\nv_add_f32 v{b0+1}, v{b0+1}, v{b0+2*j+1}")
        for q in range(2):
            e(f"""v_mov_b32 v{t0}, v{b0+q}
            s_nop 1
            v_permlane32_swap_b32 v{b0+q}, v{t0}
            s_nop 1
            v_add_f32 v{b0+q}, v{b0+q}, v{t0}""")
        e(f"""v_mul_f32 v{t0}, {1.0/512}, v{b0}
        v_mul_f32 v{t1}, {1.0/512}, v{b0+1}
        v_fma_f32 v{t1}, -v{t0}, v{t0}, v{t1}
        v_max_f32 v{t1}, 0, v{t1}
        v_add_f32 v{t1}, {1e-5}, v{t1}
        v_rsq_f32 v{PK+4*ts}, v{t1}
        s_nop 0
        v_mov_b32 v{PK+4*ts+1}, v{PK+4*ts}
        v_mul_f32 v{PK+4*ts+2}, v{t0}, v{PK+4*ts}
        v_sub_f32 v{PK+4*ts+2}, 0, v{PK+4*ts+2}
        v_mov_b32 v{PK+4*ts+3}, v{PK+4*ts+2}""")
    def rdA(c, s, ts):
        slot = c % RING; b = c & 1
        e(f"ds_read_b128 {vr(AF[b]+8*s+4*ts,4)}, v{vAa[slot>>2]} offset:{(slot&3)*16384 + ts*2048 + s*1024}")
    def rdW(c, s, fs):
        slot = c % RING; b = c & 1
        off = (slot & 3)*16384 + s*4096
        e(f"""ds_read_b64_tr_b16 {vr(WF[b]+8*s+4*fs,2)}, v{vWa[fs][slot>>2]} offset:{off}
        ds_read_b64_tr_b16 {vr(WF[b]+8*s+4*fs+2,2)}, v{vWa[fs][slot>>2]} offset:{off + 2048}""")
    def mm(c, s, ts, fs):
        b = c & 1; a = ACC + 32*ts + 16*fs
        e(f"v_mfma_f32_32x32x16_bf16 {vr(a,16)}, {vr(WF[b]+8*s+4*fs,4)}, {vr(AF[b]+8*s+4*ts,4)}, {vr(a,16)}")
    def cs(c, s, fs):
        b = c & 1
        e(f"v_mfma_f32_16x16x32_bf16 {vr(CSA[fs],4)}, {vr(WF[b]+8*s+4*fs,4)}, {vr(SEL,4)}, {vr(CSA[fs],4)}")
    stamp(k, 1)
    e(f"s_barrier")
    stamp(k, 2)
    for s in range(2):
        for x in range(2): rdA(0, s, x); rdW(0, s, x)
    for c in range(NC):
        last = c + 1 >= NC
        if not last:
            e(f"s_waitcnt lgkmcnt(0)\ns_barrier")
            stamp(k, 3 + c)
        else:
            e("s_waitcnt lgkmcnt(0)")
        for s in range(2):
            mm(c, s, 0, 0)
            if not last: rdA(c+1, s, 0)
            mm(c, s, 1, 0)
            if not last: rdW(c+1, s, 0)
            cs(c, s, 0)
            mm(c, s, 0, 1)
            if not last: rdA(c+1, s, 1)
            mm(c, s, 1, 1)
            if not last: rdW(c+1, s, 1)
            cs(c, s, 1)
    SCR = 6*16384
    stamp(k, 20)
    e(f"""s_waitcnt vmcnt(0)
    s_lshl_b32 s{sT0}, s{sWave}, 10
    s_add_u32 s{sT0}, s{sT0}, {SCR}
    v_and_b32 v{t0}, 15, v{vLane}
    v_lshrrev_b32 v{t1}, 4, v{vLane}
    v_lshlrev_b32 v{t1}, 4, v{t1}
    v_lshl_add_u32 v{t1}, v{t0}, 6, v{t1}
    v_add_u32 v{t1}, s{sT0}, v{t1}
    v_lshlrev_b32 v{t2}, 4, v{vH}
    v_add_u32 v{t2}, s{sT0}, v{t2}
    v_cmp_gt_u32 vcc, 2, v{t0}
    s_nop 4
    s_and_saveexec_b64 s[40:41], vcc
    ds_write_b128 v{t1}, {vr(CSA[0],4)}
    ds_write_b128 v{t1}, {vr(CSA[1],4)} offset:128
    s_mov_b64 exec, s[40:41]""")
    EPS = [EP, AF[0]+32]
    for fs in range(2):
        for g in range(4): e(f"ds_read_b128 {vr(EPS[fs]+4*g,4)}, v{t2} offset:{128*fs + 32*g}")
    sG = 42
    e(f"""s_lshl_b32 s{sG}, s{sRb}, 2
    s_lshl_b32 s{sT1}, s{sTh}, 1
    s_add_u32 s{sG}, s{sG}, s{sT1}
    s_mul_i32 s{sG}, s{sG}, 112
    s_lshl_b32 s{sT1}, s{sCb}, 3
    s_add_u32 s{sG}, s{sG}, s{sT1}
    s_lshl_b32 s{sT1}, s{sFh}, 2
    s_add_u32 s{sG}, s{sG}, s{sT1}
    s_lshl_b32 s{sG}, s{sG}, 10
    s_add_u32 s{sG}, s{sG}, {WS_GF}""")
    C0 = -2.0 * LOG2E * math.sqrt(2.0/math.pi)
    C1 = C0 * 0.044715
    CC = 16
    e(f"""v_mov_b32 v{CC}, {hex(f2u(C0))}
    v_mov_b32 v{CC+1}, {hex(f2u(C0))}
    v_mov_b32 v{CC+2}, {hex(f2u(C1))}
    v_mov_b32 v{CC+3}, {hex(f2u(C1))}
    v_mov_b32 v{CC+4}, 1.0
    v_mov_b32 v{CC+5}, 1.0""")
    TM = AF[0]
    def p2(r): return f"v[{r}:{r+1}]"
    for fs in range(2):
        for i in range(8): e(f"v_lshlrev_b32 v{EB+2*i}, 16, v{BL+8*fs+i}\nv_and_b32 v{EB+2*i+1}, 0xffff0000, v{BL+8*fs+i}")
        if fs == 0: e("s_waitcnt lgkmcnt(0)")
        for ts in range(2):
            a = ACC + 32*ts + 16*fs
            tm = TM + 16*ts
            for i in range(0, 16, 2): e(f"v_pk_fma_f32 {p2(tm+i)}, {p2(PK+4*ts+2)}, {p2(EPS[fs]+i)}, {p2(EB+i)}")
            for i in range(0, 16, 2): e(f"v_pk_fma_f32 {p2(a+i)}, {p2(a+i)}, {p2(PK+4*ts)}, {p2(tm+i)}")
            for i in range(0, 16, 2): e(f"v_pk_mul_f32 {p2(tm+i)}, {p2(a+i)}, {p2(a+i)}")
            for i in range(0, 16, 2): e(f"v_pk_fma_f32 {p2(tm+i)}, {p2(tm+i)}, {p2(CC+2)}, {p2(CC)}")
            for i in range(0, 16, 2): e(f"v_pk_mul_f32 {p2(tm+i)}, {p2(tm+i)}, {p2(a+i)}")
            for i in range(16): e(f"v_exp_f32 v{tm+i}, v{tm+i}")
            for i in range(0, 16, 2): e(f"v_pk_add_f32 {p2(tm+i)}, {p2(tm+i)}, {p2(CC+4)}")
            for i in range(16): e(f"v_rcp_f32 v{tm+i}, v{tm+i}")
            for i in range(0, 16, 2): e(f"v_pk_mul_f32 {p2(a+i)}, {p2(a+i)}, {p2(tm+i)}")
            for i in range(8): e(f"v_cvt_pk_bf16_f32 v{a+i}, v{a+2*i}, v{a+2*i+1}")
            e(f"""s_add_u32 s{sT1}, s{sG}, {ts*112*1024 + fs*2048}
            buffer_store_dwordx4 {vr(a,4)}, v{vL16}, s[{SWS}:{SWS+3}], s{sT1} offen
            buffer_store_dwordx4 {vr(a+4,4)}, v{vL16}, s[{SWS}:{SWS+3}], s{sT1} offen offset:1024""")
    stamp(k, 21)
    instr_end(k, 3, SWS, AF[0])
    e("s_endpgm")
    k.label("L_k4_loader")
    e(f"""v_lshrrev_b32 v{t0}, 4, v{vLane}
    v_and_b32 v{t1}, 15, v{vLane}
    v_lshlrev_b32 v{t2}, 2, v{t0}
    v_xor_b32 v{t2}, v{t2}, v{t1}
    v_lshlrev_b32 v{t2}, 4, v{t2}
    s_lshl_b32 s{sT0}, s{sWave}, 3
    v_add_u32 v{t0}, s{sT0}, v{t0}
    v_mul_u32_u24 v{t0}, 3584, v{t0}
    v_add_u32 v{t2}, v{t2}, v{t0}
    s_lshl_b32 s{sT1}, s{sCb}, 8
    v_add_u32 v{vWo}, s{sT1}, v{t2}
    s_lshl_b32 s{sA0}, s{sRb}, 2
    s_add_u32 s{sA0}, s{sA0}, s{sWave}
    s_lshl_b32 s{sA0}, s{sA0}, 15
    s_add_u32 s{sA0}, s{sA0}, {WS_HF}
    s_lshl_b32 s{sM0A}, s{sWave}, 11
    s_add_u32 s{sM0W}, s{sM0A}, 8192
    s_waitcnt lgkmcnt(0)""")
    srd(k, SW, 4, 512*3584); srd(k, SWS, 8, WS_SIZE)
    def dma_chunk(c):
        slot = c % RING
        e(f"""s_add_u32 m0, s{sM0A}, {slot*16384}
        s_add_u32 s{sOffA}, s{sA0}, {c*2048}
        buffer_load_dwordx4 v{vL16}, s[{SWS}:{SWS+3}], s{sOffA} offen lds
        buffer_load_dwordx4 v{vL16}, s[{SWS}:{SWS+3}], s{sOffA} offen offset:1024 lds
        s_add_u32 m0, s{sM0W}, {slot*16384}
        s_mov_b32 s{sOffW}, {c*32*3584}
        buffer_load_dwordx4 v{vWo}, s[{SW}:{SW+3}], s{sOffW} offen lds
        s_add_u32 m0, s{sM0W}, {slot*16384 + 1024}
        s_mov_b32 s{sOffW}, {c*32*3584 + 4*3584}
        buffer_load_dwordx4 v{vWo}, s[{SW}:{SW+3}], s{sOffW} offen lds""")
    FIRST = min(AHEAD, int(PARAM.get('first4', 3)))
    for c in range(FIRST): dma_chunk(c)
    issued = FIRST
    for c in range(NC):
        e(f"s_waitcnt vmcnt({4*(issued-1-c)})\ns_barrier")
        n = 0
        while issued < NC and issued < c + AHEAD and issued - (c-1) <= RING and n < 2:
            dma_chunk(issued); issued += 1; n += 1
    k.label("L_k4_end")
    e("s_endpgm")
    return k, (224, 512, 131072)

def main():
    global INSTR
    if "--instr" in sys.argv: INSTR = True; sys.argv.remove("--instr")
    for a in list(sys.argv):
        if a.startswith("--exp="): EXP.update(a[6:].split(",")); sys.argv.remove(a)
        if a.startswith("--p="):
            for kv in a[4:].split(","): PARAM[kv.split(":")[0]] = kv.split(":")[1]
            sys.argv.remove(a)
    ks = [gen_k1(), gen_k2(), gen_k35(3), gen_k4(), gen_k35(5)]
    hdr = open("cdna_kernels/" + NAME + ".s.ref").read().split("; Override launch")[0]
    out = hdr
    for k, (g, b, lds) in ks:
        out += f"; @launch kernel={k.name} grid=({g},1,1) block=({b},1,1) lds={lds}\n"
    out += '.amdgcn_target "amdgcn-amd-amdhsa--gfx950"\n.text\n'
    for k, _ in ks: out += k.text()
    out += '.section .rodata,"a"\n'
    for k, _ in ks: out += k.kd()
    open(sys.argv[1] if len(sys.argv) > 1 else "out.s", "w").write(out)

if __name__ == "__main__":
    main()
```

```python
import sys, math

NAME = "sequential_preLN__mha_block__dense_activation_gelu__prompt"
MB = 1 << 20
WS_QF, WS_KF, WS_VF, WS_KN, WS_OF, WS_HF, WS_GF = 0, 2*MB, 4*MB, 6*MB, 8*MB, 10*MB, 12*MB
WS_ST = 7*MB
WS_SIZE = 40*MB
LOG2E = 1.4426950408889634
QSCALE = 0.25 * LOG2E

def f2u(f):
    import struct
    return struct.unpack("<I", struct.pack("<f", f))[0]

class K:
    def __init__(self, name, vgprs, sgprs=96, agprs=0):
        self.name = name; self.lines = []; self.vgprs = vgprs; self.sgprs = sgprs; self.agprs = agprs
        self.lbl = 0
    def e(self, s):
        for l in s.strip("\n").split("\n"):
            self.lines.append("    " + l.strip())
    def label(self, l): self.lines.append(f"{l}:")
    def c(self, s): self.lines.append(f"    ; {s}")
    def text(self):
        return (f".globl {self.name}\n.p2align 8\n.type {self.name},@function\n{self.name}:\n" + "\n".join(self.lines) + "\n")
    def kd(self):
        acc = (self.vgprs + 3)//4*4
        nfv = acc + self.agprs if self.agprs else self.vgprs
        return f""".p2align 6
.amdhsa_kernel {self.name}
  .amdhsa_next_free_vgpr {nfv}
  .amdhsa_next_free_sgpr {self.sgprs}
  .amdhsa_accum_offset {acc}
  .amdhsa_group_segment_fixed_size 0
  .amdhsa_kernarg_size 88
  .amdhsa_user_sgpr_count 2
  .amdhsa_user_sgpr_kernarg_segment_ptr 1
  .amdhsa_system_sgpr_workgroup_id_x 1
.end_amdhsa_kernel
"""

INSTR = False
ZERO_FLAGS = None
ZERO_FLAGS1 = None
EXP = set()
PARAM = {}
WS_DBG = 32*MB
def instr_start(k):
    if not INSTR: return
    k.e("s_memtime s[88:89]\ns_memrealtime s[90:91]")
def stamp(k, n):
    if not INSTR: return
    k.e(f"s_memtime s[86:87]\ns_waitcnt lgkmcnt(0)\ns_sub_u32 s{60+n}, s86, s88")
    k.nstamps = max(getattr(k, 'nstamps', 0), n+1)
def instr_end(k, idx, sws, vtmp):
    if not INSTR: return
    a, b = vtmp, vtmp+1
    k.e(f"""s_waitcnt vmcnt(0) lgkmcnt(0)
    s_memtime s[92:93]
    s_memrealtime s[94:95]
    s_waitcnt lgkmcnt(0)
    s_sub_u32 s92, s92, s88
    v_lshrrev_b32 v{a}, 6, v0
    s_lshl_b32 s93, s2, 4
    v_add_u32 v{a}, s93, v{a}
    v_lshlrev_b32 v{a}, 4, v{a}
    v_add_u32 v{a}, {WS_DBG + idx*65536*4}, v{a}
    v_mov_b32 v{b}, s90
    buffer_store_dword v{b}, v{a}, s[{sws}:{sws+3}], 0 offen
    v_mov_b32 v{b}, s94
    buffer_store_dword v{b}, v{a}, s[{sws}:{sws+3}], 0 offen offset:4
    v_mov_b32 v{b}, s92
    buffer_store_dword v{b}, v{a}, s[{sws}:{sws+3}], 0 offen offset:8""")
    ns = getattr(k, 'nstamps', 0)
    if ns:
        k.e(f"""v_lshrrev_b32 v{a}, 6, v0
        v_add_u32 v{a}, s93, v{a}
        v_lshlrev_b32 v{a}, 7, v{a}
        v_add_u32 v{a}, {WS_DBG + 2*MB + idx*MB//2}, v{a}""")
        for i in range(ns):
            k.e(f"v_mov_b32 v{b}, s{60+i}\nbuffer_store_dword v{b}, v{a}, s[{sws}:{sws+3}], 0 offen offset:{4*i}")

def vr(b, n): return f"v[{b}:{b+n-1}]"

def srd(k, d, lo, size):
    k.e(f"""s_mov_b32 s{d}, s{lo}
    s_and_b32 s{d+1}, s{lo+1}, 0xffff
    s_mov_b32 s{d+2}, {size}
    s_mov_b32 s{d+3}, 0x20000""")

def gen_k1():
    k = K("k1_qkv_kernel", vgprs=152)
    e = k.e
    SX, SW, SWS = 12, 16, 20
    sWave, sTsub, sP, sRb, sHg = 24, 25, 26, 27, 28
    sM0, sOffX, sOffW, sT0, sT1, sCC, sW0 = 30, 32, 33, 34, 35, 38, 39
    vLane, vT, vH = 1, 2, 3
    vXo = [4, 5]; vWo = 6
    vXa = [8, 9, 10, 11]; vWa = [12, 13]
    vOnes = 14
    vCsV = 15
    vTmp = [20, 21, 22, 23, 24, 25, 26, 27]
    XF = [28, 32]
    WF = [[36, 40, 44], [48, 52, 56]]
    ACC = [64, 80, 96]
    EP = 112
    CSA = [128, 132, 136]
    AB = 140
    SEL = 148
    NC = 8
    STAT = 32768 + 2*24576 + 8192
    SCR = 32768 + 2*24576
    e(f"""s_cmp_ge_u32 s2, 256
    s_cbranch_scc1 L_k1_end""")
    instr_start(k)
    e(f"""s_load_dwordx4 s[4:7], s[0:1], 0
    s_load_dwordx2 s[8:9], s[0:1], 80
    v_and_b32 v{vLane}, 63, v0
    v_lshrrev_b32 v{vTmp[0]}, 6, v0
    v_and_b32 v{vT}, 31, v0
    v_bfe_u32 v{vH}, v0, 5, 1
    v_readfirstlane_b32 s{sT1}, v{vTmp[0]}
    s_and_b32 s{sHg}, s2, 7
    s_lshr_b32 s{sRb}, s2, 3
    s_and_b32 s{sWave}, s{sT1}, 3
    s_and_b32 s{sTsub}, s{sWave}, 1
    s_lshr_b32 s{sP}, s{sWave}, 1
    s_cmp_ge_u32 s{sT1}, 4
    s_cbranch_scc1 L_k1_helper""")
    r, cp, t0, t1 = vTmp[0], vTmp[1], vTmp[2], vTmp[3]
    e(f"""s_lshl_b32 s{sT0}, s{sTsub}, 5
    v_add_u32 v{t0}, s{sT0}, v{vT}
    v_bfe_u32 v{t1}, v{t0}, 1, 3""")
    for s in range(4):
        e(f"""v_add_u32 v{r}, {2*s}, v{vH}
        v_xor_b32 v{r}, v{r}, v{t1}
        v_lshlrev_b32 v{r}, 4, v{r}
        v_lshl_add_u32 v{vXa[s]}, v{t0}, 7, v{r}""")
    e(f"""v_and_b32 v{t0}, 15, v{vLane}
    v_lshrrev_b32 v{t1}, 2, v{t0}
    v_lshl_add_u32 v{t1}, v{vH}, 3, v{t1}
    v_lshlrev_b32 v{t1}, 7, v{t1}
    v_lshrrev_b32 v{r}, 3, v{t0}
    v_xor_b32 v{r}, s{sP}, v{r}
    v_lshl_add_u32 v{t1}, v{r}, 6, v{t1}
    v_bfe_u32 v{r}, v{vLane}, 4, 1
    v_lshl_add_u32 v{t1}, v{r}, 5, v{t1}
    v_and_b32 v{r}, 3, v{t0}
    v_lshl_add_u32 v{t1}, v{r}, 3, v{t1}
    v_add_u32 v{vWa[0]}, 32768, v{t1}
    v_add_u32 v{vWa[1]}, {32768+49152}, v{t1}
    v_mov_b32 v{vOnes}, 0x3f803f80
    v_bfe_u32 v{t1}, v{vLane}, 4, 1
    v_cmp_eq_u32 vcc, v{t0}, v{t1}
    v_mov_b32 v{t0}, 0
    s_nop 1""")
    for i in range(4): e(f"v_cndmask_b32 v{SEL+i}, v{t0}, v{vOnes}, vcc")
    for i in range(12): e(f"v_mov_b32 v{128+i}, 0")
    for y in range(3):
        for i in range(16): e(f"v_mov_b32 v{ACC[y]+i}, 0")
    a0, a1, a2, a3 = vTmp[0], vTmp[1], vTmp[2], vTmp[3]
    vSt = vTmp[6]; vSt2 = vTmp[7]; a4 = vTmp[4]; a5 = vTmp[5]
    sTile = 40
    e(f"""s_lshl_b32 s{sT0}, s{sWave}, 10
    s_add_u32 s{sT0}, s{sT0}, {SCR}
    v_lshlrev_b32 v{a0}, 2, v{vT}
    s_lshl_b32 s{sT1}, s{sTsub}, 7
    s_add_u32 s{sT1}, s{sT1}, {STAT}
    v_add_u32 v{a4}, s{sT1}, v{a0}
    v_add_u32 v{a0}, s{sT0}, v{a0}
    v_lshlrev_b32 v{a1}, 4, v{vH}
    v_add_u32 v{a5}, s{sT1}, v{a1}
    v_add_u32 v{a1}, s{sT0}, v{a1}
    v_and_b32 v{a2}, 15, v{vLane}
    v_lshrrev_b32 v{a3}, 4, v{vLane}
    v_lshlrev_b32 v{a3}, 4, v{a3}
    v_lshl_add_u32 v{a3}, v{a2}, 6, v{a3}
    v_add_u32 v{a3}, s{sT0}, v{a3}
    v_cmp_gt_u32 s[36:37], 2, v{a2}
    s_lshl_b32 s{sTile}, s{sHg}, 2
    s_lshl_b32 s{sOffW}, s{sP}, 1
    s_add_u32 s{sTile}, s{sTile}, s{sOffW}
    s_lshl_b32 s{sTile}, s{sTile}, 6
    s_lshl_b32 s{sOffW}, s{sRb}, 1
    s_add_u32 s{sTile}, s{sTile}, s{sOffW}
    s_add_u32 s{sTile}, s{sTile}, s{sTsub}
    s_lshl_b32 s{sOffX}, s{sTile}, 10
    v_lshlrev_b32 v{vSt}, 4, v{vLane}
    v_lshrrev_b32 v{a2}, 4, v{vT}
    v_lshlrev_b32 v{a2}, 16, v{a2}
    v_lshl_add_u32 v{a2}, v{vH}, 8, v{a2}
    v_and_b32 v{vSt2}, 15, v{vT}
    v_lshl_add_u32 v{vSt2}, v{vSt2}, 4, v{a2}
    s_waitcnt lgkmcnt(0)""")
    srd(k, SWS, 8, WS_SIZE)
    def reads(c, s, b):
        slot = c % 4
        out = [f"ds_read_b128 {vr(XF[b],4)}, v{vXa[s]} offset:{slot*8192}"]
        for y in range(3):
            off = (slot & 1)*24576 + y*8192 + s*2048
            out.append(f"ds_read_b64_tr_b16 {vr(WF[b][y],2)}, v{vWa[slot>>1]} offset:{off}")
            out.append(f"ds_read_b64_tr_b16 {vr(WF[b][y]+2,2)}, v{vWa[slot>>1]} offset:{off+512}")
        return out
    def compute(b, ex):
        def x(n):
            for _ in range(n):
                if ex: e(ex.pop(0))
        e(f"v_mfma_f32_32x32x16_bf16 {vr(ACC[0],16)}, {vr(WF[b][0],4)}, {vr(XF[b],4)}, {vr(ACC[0],16)}"); x(2)
        e(f"v_mfma_f32_16x16x32_bf16 {vr(CSA[0],4)}, {vr(WF[b][0],4)}, {vr(SEL,4)}, {vr(CSA[0],4)}"); x(1)
        e(f"v_mfma_f32_32x32x16_bf16 {vr(ACC[1],16)}, {vr(WF[b][1],4)}, {vr(XF[b],4)}, {vr(ACC[1],16)}"); x(2)
        e(f"v_mfma_f32_16x16x32_bf16 {vr(CSA[1],4)}, {vr(WF[b][1],4)}, {vr(SEL,4)}, {vr(CSA[1],4)}"); x(1)
        e(f"v_mfma_f32_32x32x16_bf16 {vr(ACC[2],16)}, {vr(XF[b],4)}, {vr(WF[b][2],4)}, {vr(ACC[2],16)}"); x(1)
        e(f"v_mfma_f32_16x16x32_bf16 {vr(CSA[2],4)}, {vr(WF[b][2],4)}, {vr(SEL,4)}, {vr(CSA[2],4)}")
        assert not ex
    if ZERO_FLAGS1 is not None:
        e(f"""s_cmp_ge_u32 s2, 16
        s_cbranch_scc1 L_k1_nz
        s_lshl_b32 s{sT0}, s2, 2
        s_add_u32 s{sT0}, s{sT0}, s{sWave}
        s_lshl_b32 s{sT0}, s{sT0}, 10
        s_add_u32 s{sT0}, s{sT0}, {ZERO_FLAGS1}
        buffer_store_dwordx4 {vr(ACC[0],4)}, v{vSt}, s[{SWS}:{SWS+3}], s{sT0} offen""")
        k.label("L_k1_nz")
    stamp(k, 2)
    e("s_barrier")
    stamp(k, 3)
    for l in reads(0, 0, 0): e(l)
    step = 0
    for c in range(NC):
        for s in range(4):
            b = step & 1
            if s < 3:
                e("s_waitcnt lgkmcnt(0)")
                compute(b, reads(c, s+1, b ^ 1))
            elif c + 1 < NC:
                e("s_waitcnt lgkmcnt(0)\ns_barrier")
                stamp(k, 4+c)
                compute(b, reads(c+1, 0, b ^ 1))
            else:
                e("s_waitcnt lgkmcnt(0)\ns_barrier")
                compute(b, [])
            step += 1
    stamp(k, 11)
    def p2(r): return f"v[{r}:{r+1}]"
    e(f"""ds_read_b32 v{AB}, v{a4}
    ds_read_b32 v{AB+2}, v{a4} offset:256""")
    AV = XF[0]
    for g in range(4): e(f"ds_read_b128 {vr(AV+4*g,4)}, v{a5} offset:{32*g}")
    for g in range(4): e(f"ds_read_b128 {vr(AV+16+4*g,4)}, v{a5} offset:{256+32*g}")
    e(f"""s_mov_b64 exec, s[36:37]
    ds_write_b128 v{a3}, {vr(CSA[0],4)}
    ds_write_b128 v{a3}, {vr(CSA[1],4)} offset:128
    ds_write_b128 v{a3}, {vr(CSA[2],4)} offset:256
    s_mov_b64 exec, -1
    ds_read_b32 v{vCsV}, v{a0} offset:256
    s_waitcnt lgkmcnt(12)
    v_mov_b32 v{AB+1}, v{AB}
    v_mov_b32 v{AB+3}, v{AB+2}
    v_mul_f32 v{AB+4}, {QSCALE}, v{AB}
    v_mul_f32 v{AB+5}, {QSCALE}, v{AB}
    v_mul_f32 v{AB+6}, {QSCALE}, v{AB+2}
    v_mul_f32 v{AB+7}, {QSCALE}, v{AB+2}""")
    CS2 = 128 - 16
    for g in range(4): e(f"ds_read_b128 {vr(EP+4*g,4)}, v{a1} offset:{32*g}")
    e(f"s_waitcnt lgkmcnt(4)\nv_mov_b32 v{vOnes}, v{vCsV}")
    for i in range(0, 16, 2):
        e(f"v_pk_mul_f32 {p2(AV+16+i)}, {p2(AV+16+i)}, {p2(vOnes)}")
        e(f"v_pk_fma_f32 {p2(ACC[2]+i)}, {p2(ACC[2]+i)}, {p2(AV+i)}, {p2(AV+16+i)}")
    for i in range(8): e(f"v_cvt_pk_bf16_f32 v{ACC[2]+i}, v{ACC[2]+2*i}, v{ACC[2]+2*i+1}")
    for g in range(4): e(f"ds_read_b128 {vr(AV+4*g,4)}, v{a1} offset:{128+32*g}")
    e(f"""s_add_u32 s{sOffW}, s{sOffX}, {WS_VF}
    buffer_store_dwordx4 {vr(ACC[2],4)}, v{vSt2}, s[{SWS}:{SWS+3}], s{sOffW} offen
    buffer_store_dwordx4 {vr(ACC[2]+4,4)}, v{vSt2}, s[{SWS}:{SWS+3}], s{sOffW} offen offset:512
    s_waitcnt lgkmcnt(0)""")
    for y in (1, 0):
        cs = AV if y == 1 else EP
        pa, pb = (AB, AB+2) if y == 1 else (AB+4, AB+6)
        for i in range(0, 16, 2):
            e(f"v_pk_mul_f32 {p2(cs+i)}, {p2(cs+i)}, {p2(pb)}")
            e(f"v_pk_fma_f32 {p2(ACC[y]+i)}, {p2(ACC[y]+i)}, {p2(pa)}, {p2(cs+i)}")
        for i in range(8): e(f"v_cvt_pk_bf16_f32 v{ACC[y]+i}, v{ACC[y]+2*i}, v{ACC[y]+2*i+1}")
        base = WS_QF if y == 0 else WS_KF
        e(f"""s_add_u32 s{sOffW}, s{sOffX}, {base}
        buffer_store_dwordx4 {vr(ACC[y],4)}, v{vSt}, s[{SWS}:{SWS+3}], s{sOffW} offen
        s_add_u32 s{sOffW}, s{sOffX}, {base + 65536}
        buffer_store_dwordx4 {vr(ACC[y]+4,4)}, v{vSt}, s[{SWS}:{SWS+3}], s{sOffW} offen""")
    n0, n1 = 16, 17
    e(f"v_mov_b32 v{n0}, 0\nv_mov_b32 v{n1}, 0")
    for i in range(4):
        e(f"v_dot2_f32_bf16 v{n0}, v{ACC[1]+i}, v{ACC[1]+i}, v{n0}")
        e(f"v_dot2_f32_bf16 v{n1}, v{ACC[1]+4+i}, v{ACC[1]+4+i}, v{n1}")
    e(f"""s_nop 3
    v_permlane32_swap_b32 v{n0}, v{n1}
    s_nop 1
    v_add_f32 v{n0}, v{n0}, v{n1}
    s_nop 1
    v_max_f32_dpp v{n0}, v{n0}, v{n0} row_shr:1 row_mask:0xf bank_mask:0xf
    s_nop 1
    v_max_f32_dpp v{n0}, v{n0}, v{n0} row_shr:2 row_mask:0xf bank_mask:0xf
    s_nop 1
    v_max_f32_dpp v{n0}, v{n0}, v{n0} row_shr:4 row_mask:0xf bank_mask:0xf
    s_nop 1
    v_max_f32_dpp v{n0}, v{n0}, v{n0} row_shr:8 row_mask:0xf bank_mask:0xf
    s_nop 1
    v_max_f32_dpp v{n0}, v{n0}, v{n0} row_bcast:15 row_mask:0xa bank_mask:0xf
    v_lshlrev_b32 v{n1}, 8, v{vH}
    s_lshl_b32 s{sOffW}, s{sTile}, 2
    s_add_u32 s{sOffW}, s{sOffW}, {WS_KN}
    s_mov_b32 exec_lo, 0x80000000
    s_mov_b32 exec_hi, 0x80000000
    buffer_store_dword v{n0}, v{n1}, s[{SWS}:{SWS+3}], s{sOffW} offen
    s_mov_b64 exec, -1""")
    stamp(k, 12)
    instr_end(k, 0, SWS, EP)
    e("s_endpgm")
    k.label("L_k1_helper")
    e(f"""v_lshrrev_b32 v{r}, 3, v{vLane}
    v_and_b32 v{cp}, 7, v{vLane}
    s_lshl_b32 s{sT0}, s{sRb}, 6
    s_lshl_b32 s{sT1}, s{sWave}, 4
    s_add_u32 s{sT0}, s{sT0}, s{sT1}
    s_add_u32 s{sCC}, s{sHg}, s{sRb}""")
    rot = PARAM.get('rot', 'both')
    if rot == 'none': e(f"s_mov_b32 s{sCC}, 0")
    if rot == 'hg': e(f"s_mov_b32 s{sCC}, s{sHg}")
    if rot == 'rb2': e(f"s_and_b32 s{sCC}, s{sRb}, 1\ns_lshl_b32 s{sCC}, s{sCC}, 2\ns_add_u32 s{sCC}, s{sCC}, s{sHg}")
    for par in range(2):
        e(f"""v_lshrrev_b32 v{t0}, 1, v{r}
        v_add_u32 v{t0}, {4*par}, v{t0}
        v_xor_b32 v{t0}, v{t0}, v{cp}
        v_lshlrev_b32 v{t0}, 4, v{t0}
        v_add_u32 v{t1}, {8*par}, v{r}
        v_add_u32 v{t1}, s{sT0}, v{t1}
        v_lshl_add_u32 v{vXo[par]}, v{t1}, 10, v{t0}""")
    e(f"""v_bfe_u32 v{t0}, v{r}, 1, 1
    v_lshlrev_b32 v{t0}, 2, v{t0}
    v_xor_b32 v{t0}, v{t0}, v{cp}
    v_lshlrev_b32 v{t0}, 4, v{t0}
    v_add_u32 v{t1}, s{sT1}, v{r}
    v_mul_u32_u24 v{t1}, 3072, v{t1}
    v_add_u32 v{t0}, v{t0}, v{t1}
    s_lshl_b32 s{sT1}, s{sHg}, 7
    v_add_u32 v{vWo}, s{sT1}, v{t0}
    s_lshl_b32 s{sM0}, s{sWave}, 11
    s_waitcnt lgkmcnt(0)""")
    srd(k, SX, 4, 2*MB); srd(k, SW, 6, 512*3072)
    def dma_chunk(c):
        slot = c % 4
        out = [f"s_and_b32 s{sCC}, s{sCC}, 7",
               f"s_lshl_b32 s{sOffX}, s{sCC}, 7",
               f"s_mul_i32 s{sW0}, s{sCC}, {64*3072}"]
        for par in range(2):
            out += [f"s_add_u32 m0, s{sM0}, {slot*8192 + par*1024}",
                    f"s_nop 0",
                    f"buffer_load_dwordx4 v{vXo[par]}, s[{SX}:{SX+3}], s{sOffX} offen lds"]
            for y in range(3):
                out += [f"s_add_u32 m0, s{sM0}, {32768 + slot*24576 + y*8192 + par*1024}",
                        f"s_add_u32 s{sOffW}, s{sW0}, {y*1024 + par*8*3072}",
                        f"buffer_load_dwordx4 v{vWo}, s[{SW}:{SW+3}], s{sOffW} offen lds"]
        out.append(f"s_add_u32 s{sCC}, s{sCC}, 1")
        for l in out: e(l)
    FIRST = int(PARAM.get('first1', 2))
    for c in range(FIRST): dma_chunk(c)
    issued = FIRST
    vSa = 8; SD = 28; ST = [16, 17, 18, 19]; UN = [40, 41, 42, 43]
    e(f"""v_lshlrev_b32 v{vSa}, 5, v{vLane}
    v_add_u32 v{vSa}, s{sM0}, v{vSa}""")
    for i in range(4): e(f"v_mov_b32 v{ST[i]}, 0")
    for c in range(NC):
        e(f"s_waitcnt vmcnt({8*(issued-1-c)})\ns_barrier")
        slot = c % 4
        e(f"""ds_read_b128 {vr(SD,4)}, v{vSa} offset:{slot*8192}
        ds_read_b128 {vr(SD+4,4)}, v{vSa} offset:{slot*8192+16}""")
        n = 0
        while issued < NC and issued - (c-1) <= 4 and n < (2 if c == 0 else 1):
            dma_chunk(issued); issued += 1; n += 1
        e("s_waitcnt lgkmcnt(0)")
        for i in range(8):
            lo, hi = UN[2*(i&1)], UN[2*(i&1)+1]
            e(f"""v_lshlrev_b32 v{lo}, 16, v{SD+i}
            v_and_b32 v{hi}, 0xffff0000, v{SD+i}
            v_add_f32 v{ST[0]}, v{ST[0]}, v{lo}
            v_add_f32 v{ST[1]}, v{ST[1]}, v{hi}
            v_fmac_f32 v{ST[2]}, v{lo}, v{lo}
            v_fmac_f32 v{ST[3]}, v{hi}, v{hi}""")
    e(f"""v_add_f32 v{ST[0]}, v{ST[0]}, v{ST[1]}
    v_add_f32 v{ST[2]}, v{ST[2]}, v{ST[3]}
    s_nop 1
    v_add_f32_dpp v{ST[0]}, v{ST[0]}, v{ST[0]} quad_perm:[1,0,3,2] row_mask:0xf bank_mask:0xf
    v_add_f32_dpp v{ST[2]}, v{ST[2]}, v{ST[2]} quad_perm:[1,0,3,2] row_mask:0xf bank_mask:0xf
    s_nop 1
    v_add_f32_dpp v{ST[0]}, v{ST[0]}, v{ST[0]} quad_perm:[2,3,0,1] row_mask:0xf bank_mask:0xf
    v_add_f32_dpp v{ST[2]}, v{ST[2]}, v{ST[2]} quad_perm:[2,3,0,1] row_mask:0xf bank_mask:0xf
    s_nop 0
    v_mul_f32 v{ST[0]}, {1.0/512}, v{ST[0]}
    v_mul_f32 v{ST[2]}, {1.0/512}, v{ST[2]}
    v_fma_f32 v{ST[2]}, -v{ST[0]}, v{ST[0]}, v{ST[2]}
    v_max_f32 v{ST[2]}, 0, v{ST[2]}
    v_add_f32 v{ST[2]}, {1e-5}, v{ST[2]}
    v_rsq_f32 v{ST[1]}, v{ST[2]}
    v_lshrrev_b32 v{t0}, 2, v{vLane}
    v_lshlrev_b32 v{t0}, 2, v{t0}
    s_lshl_b32 s{sT0}, s{sWave}, 6
    s_add_u32 s{sT0}, s{sT0}, {STAT}
    v_add_u32 v{t0}, s{sT0}, v{t0}
    v_mul_f32 v{ST[3]}, v{ST[0]}, v{ST[1]}
    v_sub_f32 v{ST[3]}, 0, v{ST[3]}
    ds_write_b32 v{t0}, v{ST[1]}
    ds_write_b32 v{t0}, v{ST[3]} offset:256
    s_waitcnt lgkmcnt(0)
    s_barrier""")
    k.label("L_k1_end")
    e("s_endpgm")
    return k, (256, 512, 131072)

VST = 1040
def gen_k2():
    k = K("k2_attn_kernel", vgprs=128)
    e = k.e
    SWS = 12
    sWave, sHead, sQt, sT0, sT1, sOff, sLoop, sPass = 16, 17, 18, 19, 20, 21, 22, 23
    sG0, sM0, sM0V = 26, 27, 28
    SPF = 32
    vLane, vL16, vKa, vVa, vVb, vT0, vT1, vT2, vT3 = 1, 2, 3, 4, 5, 6, 7, 44, 45
    QF = 8
    KF = [12, 16]
    VF = [20, 28]
    P2 = [36, 112]
    S = [48, 64]
    O = 80
    CI = 96
    PFD = 120
    e(f"""s_cmp_ge_u32 s2, 256
    s_cbranch_scc1 L_k2_end""")
    instr_start(k)
    e(f"""s_load_dwordx2 s[8:9], s[0:1], 80
    s_load_dwordx2 s[36:37], s[0:1], 16
    s_load_dwordx2 s[38:39], s[0:1], 32
    s_load_dwordx2 s[40:41], s[0:1], 48
    v_and_b32 v{vLane}, 63, v0
    v_lshrrev_b32 v{vT0}, 6, v0
    v_lshlrev_b32 v{vL16}, 4, v{vLane}
    v_readfirstlane_b32 s{sWave}, v{vT0}
    s_and_b32 s{sHead}, s2, 7
    s_lshl_b32 s{sHead}, s{sHead}, 2
    s_bfe_u32 s{sT0}, s2, 0x20003
    s_add_u32 s{sHead}, s{sHead}, s{sT0}
    s_lshr_b32 s{sQt}, s2, 5
    s_lshl_b32 s{sQt}, s{sQt}, 3
    s_add_u32 s{sQt}, s{sQt}, s{sWave}
    s_lshl_b32 s{sG0}, s{sHead}, 16
    s_lshl_b32 s{sM0}, s{sWave}, 10
    s_add_u32 s{sG0}, s{sG0}, s{sM0}
    s_mul_i32 s{sM0V}, s{sWave}, {VST}
    s_lshl_b32 s{sT0}, s{sHead}, 6
    s_add_u32 s{sT1}, s{sT0}, s{sQt}
    s_lshl_b32 s{sT1}, s{sT1}, 10
    v_lshlrev_b32 v{vT0}, 2, v{vLane}
    s_waitcnt lgkmcnt(0)""")
    srd(k, SWS, 8, WS_SIZE)
    def dma(p, y):
        if y == 0: e(f"s_add_u32 m0, s{sM0}, {p*8192}")
        else: e(f"s_add_u32 m0, s{sM0V}, {65536 + p*8*VST}")
        e(f"""s_add_u32 s{sOff}, s{sG0}, {(WS_KF if y == 0 else WS_VF) + p*8192}
        buffer_load_dwordx4 v{vL16}, s[{SWS}:{SWS+3}], s{sOff} offen lds""")
    e(f"""buffer_load_dwordx4 {vr(QF,4)}, v{vL16}, s[{SWS}:{SWS+3}], s{sT1} offen
    s_lshl_b32 s{sT1}, s{sT0}, 2
    s_add_u32 s{sT1}, s{sT1}, {WS_KN}
    buffer_load_dword v{vT1}, v{vT0}, s[{SWS}:{SWS+3}], s{sT1} offen""")
    dma(0, 0); dma(0, 1); dma(1, 0); dma(1, 1)
    e(f"""v_mov_b32 v{PFD}, 0x3f803f80
    v_mov_b32 v{PFD+1}, 0x3f803f80
    v_mov_b32 v{PFD+2}, 0x3f803f80
    v_mov_b32 v{PFD+3}, 0x3f803f80
    v_mul_u32_u24 v{vT2}, {VST}, v{vLane}
    v_add_u32 v{vT2}, {65536+1024}, v{vT2}
    ds_write_b128 v{vT2}, {vr(PFD,4)}""")
    e(f"""v_bfe_u32 v{vT0}, v{vLane}, 5, 1
    v_and_b32 v{vT2}, 15, v{vLane}
    v_lshlrev_b32 v{vT2}, 4, v{vT2}
    v_lshl_add_u32 v{vT2}, v{vT0}, 8, v{vT2}
    v_add_u32 v{vT2}, 65536, v{vT2}
    v_add_u32 v{vT3}, 512, v{vT2}
    v_bfe_u32 v{vT0}, v{vLane}, 4, 1
    v_cmp_eq_u32 vcc, 1, v{vT0}
    v_mov_b32 v{vT0}, {65536+1024}
    s_nop 0
    v_cndmask_b32 v{vT2}, v{vT2}, v{vT0}, vcc
    v_cndmask_b32 v{vT3}, v{vT3}, v{vT0}, vcc""")
    e(f"""s_waitcnt vmcnt(4)
    v_mov_b32 v{vT0}, 0
    v_max_f32_dpp v{vT1}, v{vT1}, v{vT1} row_shr:1 row_mask:0xf bank_mask:0xf
    v_dot2_f32_bf16 v{vT0}, v{QF}, v{QF}, v{vT0}
    v_dot2_f32_bf16 v{vT0}, v{QF+1}, v{QF+1}, v{vT0}
    v_max_f32_dpp v{vT1}, v{vT1}, v{vT1} row_shr:2 row_mask:0xf bank_mask:0xf
    v_dot2_f32_bf16 v{vT0}, v{QF+2}, v{QF+2}, v{vT0}
    v_dot2_f32_bf16 v{vT0}, v{QF+3}, v{QF+3}, v{vT0}
    v_max_f32_dpp v{vT1}, v{vT1}, v{vT1} row_shr:4 row_mask:0xf bank_mask:0xf
    s_nop 1
    v_max_f32_dpp v{vT1}, v{vT1}, v{vT1} row_shr:8 row_mask:0xf bank_mask:0xf
    s_nop 1
    v_max_f32_dpp v{vT1}, v{vT1}, v{vT1} row_bcast:15 row_mask:0xa bank_mask:0xf
    s_nop 1
    v_max_f32_dpp v{vT1}, v{vT1}, v{vT1} row_bcast:31 row_mask:0xc bank_mask:0xf
    v_mov_b32 v{CI}, v{vT0}
    s_nop 1
    v_readlane_b32 s{sT0}, v{vT1}, 63
    v_permlane32_swap_b32 v{vT0}, v{CI}
    s_nop 1
    v_add_f32 v{vT0}, v{vT0}, v{CI}
    v_mul_f32 v{vT0}, s{sT0}, v{vT0}
    v_sqrt_f32 v{vT0}, v{vT0}
    s_nop 0
    v_sub_f32 v{vT0}, 0, v{vT0}
    s_mov_b32 s{sPass}, 0""")
    def init_pass():
        for i in range(16): e(f"v_mov_b32 v{CI+i}, v{vT0}")
        for i in range(16): e(f"v_mov_b32 v{O+i}, 0")
        for i in range(4): e(f"v_mov_b32 v{P2[1]+4+i}, 0")
        for i in range(4): e(f"v_mov_b32 v{VF[1]+4+i}, 0")
        e(f"""v_mov_b32 v{vKa}, v{vL16}
        v_mov_b32 v{vVa}, v{vT2}
        v_mov_b32 v{vVb}, v{vT3}
        s_mov_b32 s{sLoop}, 0""")
    init_pass()
    e(f"""s_waitcnt vmcnt(2) lgkmcnt(0)
    s_barrier""")
    stamp(k, 0)
    def rdK(i):
        if 'nolds' in EXP and i >= 2: return
        e(f"ds_read_b128 {vr(KF[i&1],4)}, v{vKa} offset:{i*1024}")
    def rdVa(i):
        if 'nolds' in EXP and i >= 2: return
        e(f"ds_read_b128 {vr(VF[i&1],4)}, v{vVa} offset:{i*VST}")
    def rdVb(i):
        if 'nolds' in EXP and i >= 2: return
        e(f"ds_read_b128 {vr(VF[i&1]+4,4)}, v{vVb} offset:{i*VST}")
    def qk(i): e(f"v_mfma_f32_32x32x16_bf16 {vr(S[i&1],16)}, {vr(KF[i&1],4)}, {vr(QF,4)}, {vr(CI,16)}")
    def tile(i, extra=None):
        s = S[i & 1]; pc = P2[i & 1]; pp = P2[(i+1) & 1]
        extra = list(extra or [])
        def x():
            if extra: e(extra.pop(0))
        e(f"v_exp_f32 v{s}, v{s}")
        e(f"v_exp_f32 v{s+1}, v{s+1}")
        e(f"v_mfma_f32_32x32x16_bf16 {vr(O,16)}, {vr(VF[(i+1)&1]+4,4)}, {vr(pp+4,4)}, {vr(O,16)}")
        for j in range(2, 16):
            e(f"v_exp_f32 v{s+j}, v{s+j}")
            if j == 5: e("s_waitcnt lgkmcnt(1)")
            if j == 8: rdVa(i+1)
            if j == 10: rdK(i+2)
            if j == 14: rdVb(i+1)
            if j in (2, 3, 4): x()
            if j >= 3 and j % 2 == 1: e(f"v_cvt_pk_bf16_f32 v{pc+(j-3)//2}, v{s+j-3}, v{s+j-2}")
            if j == 6: qk(i+1)
            if j == 12: e(f"v_mfma_f32_32x32x16_bf16 {vr(O,16)}, {vr(VF[i&1],4)}, {vr(pc,4)}, {vr(O,16)}")
        e("s_waitcnt lgkmcnt(3)")
        e(f"v_cvt_pk_bf16_f32 v{pc+7}, v{s+14}, v{s+15}")
        while extra: x()
    def pipe_pro():
        rdK(0); rdVa(0); rdK(1); rdVb(0)
        e("s_waitcnt lgkmcnt(3)")
        qk(0)
        e("s_nop 7\ns_nop 7")
    def dma_lines(p, y):
        n0 = len(k.lines); dma(p, y); l = k.lines[n0:]; del k.lines[n0:]; return [x.strip() for x in l]
    pipe_pro()
    pf = []
    for i in range(16):
        if i == 6:
            e("s_waitcnt vmcnt(6)\ns_barrier")
        if i == 14:
            e("s_waitcnt vmcnt(0)\ns_barrier")
        ex = []
        if i < 12: ex = dma_lines(2 + i//2, i & 1)
        tile(i, ex)
    e(f"""v_add_u32 v{vKa}, 16384, v{vKa}
    v_add_u32 v{vVa}, {16*VST}, v{vVa}
    v_add_u32 v{vVb}, {16*VST}, v{vVb}
    s_mov_b32 s{sLoop}, 1""")
    if 'nopf' not in EXP:
        e(f"""s_lshl_b32 s{sT0}, s2, 3
        s_add_u32 s{sT0}, s{sT0}, s{sWave}
        s_lshl_b32 s{sT0}, s{sT0}, 10""")
        for (lo, size) in ((38, 512*3584), (40, 1792*1024), (36, 512*1024)):
            srd(k, SPF, lo, size)
            e(f"buffer_load_dwordx4 {vr(PFD,4)}, v{vL16}, s[{SPF}:{SPF+3}], s{sT0} offen")
    if ZERO_FLAGS is not None and 'notouch2' not in EXP:
        sg, sj, sa, sb, sh, sgo = 44, 45, 46, 47, 48, 49
        e(f"""s_and_b32 s{sg}, s2, 7
        s_lshl_b32 s{sg}, s{sg}, 1
        s_bfe_u32 s{sT0}, s2, 0x10003
        s_add_u32 s{sg}, s{sg}, s{sT0}
        s_lshr_b32 s{sj}, s2, 4
        s_and_b32 s{sa}, s{sWave}, 1
        s_bfe_u32 s{sb}, s{sWave}, 0x10001
        s_lshl_b32 s{sh}, s{sg}, 1
        s_and_b32 s{sT0}, s{sj}, 1
        s_add_u32 s{sh}, s{sh}, s{sT0}
        s_lshl_b32 s{sh}, s{sh}, 1
        s_add_u32 s{sh}, s{sh}, s{sa}
        s_lshl_b32 s{sh}, s{sh}, 5
        s_lshr_b32 s{sT0}, s{sj}, 1
        s_lshl_b32 s{sT0}, s{sT0}, 2
        s_add_u32 s{sh}, s{sh}, s{sT0}
        s_lshl_b32 s{sT0}, s{sb}, 1
        s_add_u32 s{sh}, s{sh}, s{sT0}
        s_lshl_b32 s{sh}, s{sh}, 10
        s_add_u32 s{sh}, s{sh}, {WS_HF}
        s_lshl_b32 s{sgo}, s{sg}, 2
        s_lshl_b32 s{sT0}, s{sa}, 1
        s_add_u32 s{sgo}, s{sgo}, s{sT0}
        s_mul_i32 s{sgo}, s{sgo}, 112
        s_lshl_b32 s{sT0}, s{sj}, 3
        s_add_u32 s{sgo}, s{sgo}, s{sT0}
        s_lshl_b32 s{sT0}, s{sb}, 2
        s_add_u32 s{sgo}, s{sgo}, s{sT0}
        s_lshl_b32 s{sgo}, s{sgo}, 10
        s_add_u32 s{sgo}, s{sgo}, {WS_GF}
        s_cmp_ge_u32 s{sWave}, 4
        s_cbranch_scc1 L_k2_ntouch
        v_and_b32 v{PFD+4}, 15, v{vLane}
        v_lshlrev_b32 v{PFD+4}, 7, v{PFD+4}
        buffer_load_dword v{PFD+6}, v{PFD+4}, s[{SWS}:{SWS+3}], s{sh} offen
        v_and_b32 v{PFD+4}, 31, v{vLane}
        v_lshlrev_b32 v{PFD+4}, 7, v{PFD+4}
        v_lshrrev_b32 v{PFD+5}, 5, v{vLane}
        v_mul_u32_u24 v{PFD+5}, {112*1024}, v{PFD+5}
        v_add_u32 v{PFD+4}, v{PFD+4}, v{PFD+5}
        buffer_load_dword v{PFD+6}, v{PFD+4}, s[{SWS}:{SWS+3}], s{sgo} offen""")
        k.label("L_k2_ntouch")
    stamp(k, 2)
    k.label("L_k2_loop")
    for i in range(16): tile(i)
    e(f"""v_add_u32 v{vKa}, 16384, v{vKa}
    v_add_u32 v{vVa}, {16*VST}, v{vVa}
    v_add_u32 v{vVb}, {16*VST}, v{vVb}
    s_add_u32 s{sLoop}, s{sLoop}, 1
    s_cmp_lt_u32 s{sLoop}, 4
    s_cbranch_scc1 L_k2_loop
    v_mfma_f32_32x32x16_bf16 {vr(O,16)}, {vr(VF[1]+4,4)}, {vr(P2[1]+4,4)}, {vr(O,16)}
    s_waitcnt lgkmcnt(0)
    s_nop 7
    s_nop 7""")
    stamp(k, 1)
    e(f"""v_cmp_nle_f32 vcc, {hex(f2u(2.0**-64))}, v{O+8}
    s_cmp_lg_u32 s{sPass}, 0
    s_cbranch_scc1 L_k2_out
    s_cbranch_vccnz L_k2_fallback
    v_mov_b32 v{vT1}, 0x7f000000
    v_cmp_nlt_f32 vcc, v{O+8}, v{vT1}
    s_cbranch_vccz L_k2_out""")
    k.label("L_k2_fallback")
    k.c("fallback: exact row max over all keys, then redo")
    for i in range(16): e(f"v_mov_b32 v{CI+i}, 0")
    e(f"""v_mov_b32 v{vT0}, 0xff7fffff
    v_mov_b32 v{vKa}, v{vL16}
    s_mov_b32 s{sLoop}, 0""")
    k.label("L_k2_fbloop")
    e(f"""ds_read_b128 {vr(KF[0],4)}, v{vKa}
    s_waitcnt lgkmcnt(0)
    v_mfma_f32_32x32x16_bf16 {vr(S[0],16)}, {vr(KF[0],4)}, {vr(QF,4)}, {vr(CI,16)}
    s_nop 15
    s_nop 3""")
    for j in range(8): e(f"v_max3_f32 v{vT0}, v{vT0}, v{S[0]+2*j}, v{S[0]+2*j+1}")
    e(f"""v_add_u32 v{vKa}, 1024, v{vKa}
    s_add_u32 s{sLoop}, s{sLoop}, 1
    s_cmp_lt_u32 s{sLoop}, 64
    s_cbranch_scc1 L_k2_fbloop
    v_mov_b32 v{vT1}, v{vT0}
    s_nop 1
    v_permlane32_swap_b32 v{vT0}, v{vT1}
    s_nop 1
    v_max_f32 v{vT0}, v{vT0}, v{vT1}
    v_sub_f32 v{vT0}, 0, v{vT0}
    s_mov_b32 s{sPass}, 1""")
    init_pass()
    pipe_pro()
    e("s_branch L_k2_loop")
    k.label("L_k2_out")
    if ZERO_FLAGS is not None:
        e(f"""s_lshl_b32 s{sT0}, s2, 3
        s_add_u32 s{sT0}, s{sT0}, s{sWave}
        s_cmp_ge_u32 s{sT0}, 32
        s_cbranch_scc1 L_k2_nz
        s_lshl_b32 s{sT0}, s{sT0}, 11
        s_add_u32 s{sT0}, s{sT0}, {ZERO_FLAGS}
        v_mov_b32 v{S[0]}, 0
        v_mov_b32 v{S[0]+1}, 0
        v_mov_b32 v{S[0]+2}, 0
        v_mov_b32 v{S[0]+3}, 0
        buffer_store_dwordx4 {vr(S[0],4)}, v{vL16}, s[{SWS}:{SWS+3}], s{sT0} offen""")
        k.label("L_k2_nz")
    e(f"v_rcp_f32 v{vT0}, v{O+8}\ns_nop 0")
    for i in range(8): e(f"v_mul_f32 v{O+i}, v{O+i}, v{vT0}")
    for i in range(4): e(f"v_cvt_pk_bf16_f32 v{P2[0]+i}, v{O+2*i}, v{O+2*i+1}")
    e(f"""s_lshl_b32 s{sT0}, s{sQt}, 5
    s_add_u32 s{sT0}, s{sT0}, s{sHead}
    s_lshl_b32 s{sT0}, s{sT0}, 10
    s_add_u32 s{sT0}, s{sT0}, {WS_OF}
    buffer_store_dwordx4 {vr(P2[0],4)}, v{vL16}, s[{SWS}:{SWS+3}], s{sT0} offen""")
    instr_end(k, 1, SWS, S[0])
    k.label("L_k2_end")
    e("s_endpgm")
    return k, (256, 512, 65536 + 64*VST + 3072)

def gen_k35(which):
    is3 = which == 3
    nm = "k3_wo_kernel" if is3 else "k5_ffn2_kernel"
    L = "L_k3" if is3 else "L_k5"
    KS = 32 if is3 else 112
    NC = KS // 4
    RING = 8
    AHEAD = int(PARAM.get('ah35', 5))
    ACT = WS_OF if is3 else WS_GF
    k = K(nm, vgprs=128)
    e = k.e
    SW, SWS, SX, SB = 12, 16, 20, 24
    sWave, sTsub, sFsub, sRb, sCb = 28, 29, 30, 31, 32
    sM0A, sM0W, sOffA, sOffW, sT0, sT1, sA0 = 33, 34, 35, 36, 37, 38, 39
    vLane, vT, vH, vL16, vWo = 1, 2, 3, 4, 5
    vAa = [6, 7]; vWa = [8, 9]
    t0, t1, t2, t3 = 10, 11, 12, 13
    RES = 16
    BIA = 24
    AF = [32, 48]
    WF = [64, 80]
    ACC = 96
    EP = 112
    e(f"""s_cmp_ge_u32 s2, 256
    s_cbranch_scc1 {L}_end""")
    instr_start(k)
    if is3:
        e(f"""s_load_dwordx2 s[4:5], s[0:1], 16
        s_load_dwordx2 s[6:7], s[0:1], 0""")
    else:
        e(f"""s_load_dwordx2 s[4:5], s[0:1], 48
        s_load_dwordx4 s[40:43], s[0:1], 56""")
    e(f"""s_load_dwordx2 s[8:9], s[0:1], 80
    v_and_b32 v{vLane}, 63, v0
    v_lshrrev_b32 v{t0}, 6, v0
    v_and_b32 v{vT}, 31, v0
    v_bfe_u32 v{vH}, v0, 5, 1
    v_readfirstlane_b32 s{sT1}, v{t0}
    v_lshlrev_b32 v{vL16}, 4, v{vLane}
    s_and_b32 s{sRb}, s2, 7
    s_lshl_b32 s{sRb}, s{sRb}, 2
    s_bfe_u32 s{sT0}, s2, 0x20003
    s_add_u32 s{sRb}, s{sRb}, s{sT0}
    s_lshr_b32 s{sCb}, s2, 5
    s_and_b32 s{sWave}, s{sT1}, 3
    s_and_b32 s{sTsub}, s{sWave}, 1
    s_lshr_b32 s{sFsub}, s{sWave}, 1
    s_cmp_ge_u32 s{sT1}, 4
    s_cbranch_scc1 {L}_loader""")
    vRM = t3
    e(f"""s_lshl_b32 s{sT0}, s{sRb}, 6
    s_lshl_b32 s{sT1}, s{sTsub}, 5
    s_add_u32 s{sT0}, s{sT0}, s{sT1}
    v_add_u32 v{t0}, s{sT0}, v{vT}
    v_lshlrev_b32 v{t0}, 10, v{t0}
    v_lshlrev_b32 v{t1}, 3, v{vH}
    s_lshl_b32 s{sT0}, s{sCb}, 7
    s_lshl_b32 s{sT1}, s{sFsub}, 6
    s_add_u32 s{sT0}, s{sT0}, s{sT1}
    v_add_u32 v{t1}, s{sT0}, v{t1}
    v_add_u32 v{vRM}, v{t0}, v{t1}""")
    sHo = 44
    e(f"""s_lshl_b32 s{sHo}, s{sRb}, 1
    s_add_u32 s{sHo}, s{sHo}, s{sTsub}
    s_lshl_b32 s{sHo}, s{sHo}, 5
    s_lshl_b32 s{sT0}, s{sCb}, 2
    s_add_u32 s{sHo}, s{sHo}, s{sT0}
    s_lshl_b32 s{sT0}, s{sFsub}, 1
    s_add_u32 s{sHo}, s{sHo}, s{sT0}
    s_lshl_b32 s{sHo}, s{sHo}, 10
    s_add_u32 s{sHo}, s{sHo}, {WS_HF}
    s_waitcnt lgkmcnt(0)""")
    srd(k, SWS, 8, WS_SIZE)
    if is3:
        srd(k, SX, 6, 2*MB)
        for g in range(4): e(f"buffer_load_dwordx2 {vr(RES+2*g,2)}, v{vRM}, s[{SX}:{SX+3}], 0 offen offset:{16*g}")
    else:
        srd(k, SB, 40, 1024); srd(k, SX, 42, 2*MB)
        e(f"""buffer_load_dwordx4 {vr(RES,4)}, v{vL16}, s[{SWS}:{SWS+3}], s{sHo} offen
        buffer_load_dwordx4 {vr(RES+4,4)}, v{vL16}, s[{SWS}:{SWS+3}], s{sHo} offen offset:1024""")
        for g in range(4): e(f"buffer_load_dwordx2 {vr(BIA+2*g,2)}, v{t1}, s[{SB}:{SB+3}], 0 offen offset:{16*g}")
    e(f"""s_lshl_b32 s{sT0}, s{sTsub}, 12
    v_add_u32 v{vAa[0]}, s{sT0}, v{vL16}
    v_add_u32 v{vAa[1]}, 65536, v{vAa[0]}
    v_and_b32 v{t0}, 15, v{vLane}
    v_lshrrev_b32 v{t1}, 2, v{t0}
    v_lshl_add_u32 v{t1}, v{vH}, 2, v{t1}
    v_lshlrev_b32 v{t1}, 7, v{t1}
    v_lshrrev_b32 v{t2}, 3, v{t0}
    v_xor_b32 v{t2}, s{sFsub}, v{t2}
    v_lshl_add_u32 v{t1}, v{t2}, 6, v{t1}
    v_bfe_u32 v{t2}, v{vLane}, 4, 1
    v_lshl_add_u32 v{t1}, v{t2}, 5, v{t1}
    v_and_b32 v{t2}, 3, v{t0}
    v_lshl_add_u32 v{t1}, v{t2}, 3, v{t1}
    v_add_u32 v{vWa[0]}, 8192, v{t1}
    v_add_u32 v{vWa[1]}, {8192+65536}, v{t1}""")
    for i in range(16): e(f"v_mov_b32 v{ACC+i}, 0")
    def rd(c, s):
        slot = c % RING; b = c & 1
        off = (slot & 3)*16384
        e(f"""ds_read_b128 {vr(AF[b]+4*s,4)}, v{vAa[slot>>2]} offset:{off + s*1024}
        ds_read_b64_tr_b16 {vr(WF[b]+4*s,2)}, v{vWa[slot>>2]} offset:{off + s*2048}
        ds_read_b64_tr_b16 {vr(WF[b]+4*s+2,2)}, v{vWa[slot>>2]} offset:{off + s*2048 + 1024}""")
    def mm(c, s):
        b = c & 1
        e(f"v_mfma_f32_32x32x16_bf16 {vr(ACC,16)}, {vr(WF[b]+4*s,4)}, {vr(AF[b]+4*s,4)}, {vr(ACC,16)}")
    stamp(k, 1)
    e("s_barrier")
    stamp(k, 2)
    for s in range(4): rd(0, s)
    for c in range(NC):
        if c + 1 < NC:
            e(f"s_waitcnt lgkmcnt(0)\ns_barrier")
            if is3 or c % 2 == 0: stamp(k, 3 + (c if is3 else c//2))
            for s in range(4):
                mm(c, s)
                rd(c+1, s)
        else:
            e("s_waitcnt lgkmcnt(0)")
            for s in range(4): mm(c, s)
    def unpack(dst, src):
        e(f"v_lshlrev_b32 v{dst}, 16, v{src}\nv_and_b32 v{dst+1}, 0xffff0000, v{src}")
    e("s_waitcnt vmcnt(0)")
    for i in range(8): unpack(EP+2*i, RES+i)
    if not is3:
        for i in range(8): unpack(AF[0]+2*i, BIA+i)
        for i in range(16): e(f"v_add_f32 v{EP+i}, v{EP+i}, v{AF[0]+i}")
    stamp(k, 20)
    for i in range(16): e(f"v_add_f32 v{ACC+i}, v{ACC+i}, v{EP+i}")
    for i in range(8): e(f"v_cvt_pk_bf16_f32 v{EP+i}, v{ACC+2*i}, v{ACC+2*i+1}")
    if is3:
        e(f"""buffer_store_dwordx4 {vr(EP,4)}, v{vL16}, s[{SWS}:{SWS+3}], s{sHo} offen
        buffer_store_dwordx4 {vr(EP+4,4)}, v{vL16}, s[{SWS}:{SWS+3}], s{sHo} offen offset:1024""")
        e(f"v_add_f32 v{t0}, v{ACC}, v{ACC+1}\nv_mul_f32 v{t1}, v{ACC}, v{ACC}\nv_mul_f32 v{t2}, v{ACC+1}, v{ACC+1}")
        for i in range(2, 16):
            e(f"v_add_f32 v{t0}, v{t0}, v{ACC+i}\nv_fmac_f32 v{t1 + (i&1)}, v{ACC+i}, v{ACC+i}")
        e(f"""v_add_f32 v{t1}, v{t1}, v{t2}
        s_lshl_b32 s{sT0}, s{sCb}, 1
        s_add_u32 s{sT0}, s{sT0}, s{sFsub}
        v_permlane32_swap_b32 v{t0}, v{t1}
        s_lshl_b32 s{sT0}, s{sT0}, 11
        s_lshl_b32 s{sT1}, s{sRb}, 6
        v_add_f32 v{t0}, v{t0}, v{t1}
        s_add_u32 s{sT0}, s{sT0}, s{sT1}
        s_lshl_b32 s{sT1}, s{sTsub}, 5
        s_add_u32 s{sT0}, s{sT0}, s{sT1}
        s_lshl_b32 s{sT0}, s{sT0}, 3
        s_add_u32 s{sT0}, s{sT0}, {WS_ST}
        v_lshlrev_b32 v{t1}, 3, v{vT}
        v_lshl_add_u32 v{t1}, v{vH}, 2, v{t1}
        buffer_store_dword v{t0}, v{t1}, s[{SWS}:{SWS+3}], s{sT0} offen""")
    else:
        for g in range(4): e(f"buffer_store_dwordx2 {vr(EP+2*g,2)}, v{vRM}, s[{SX}:{SX+3}], 0 offen offset:{16*g}")
    instr_end(k, 2 if is3 else 4, SWS, AF[0])
    e("s_endpgm")
    k.label(f"{L}_loader")
    e(f"""v_lshrrev_b32 v{t0}, 3, v{vLane}
    v_and_b32 v{t1}, 7, v{vLane}
    v_bfe_u32 v{t2}, v{t0}, 1, 1
    v_lshlrev_b32 v{t2}, 2, v{t2}
    v_xor_b32 v{t2}, v{t2}, v{t1}
    v_lshlrev_b32 v{t2}, 4, v{t2}
    s_lshl_b32 s{sT0}, s{sWave}, 4
    v_add_u32 v{t0}, s{sT0}, v{t0}
    v_lshl_add_u32 v{t2}, v{t0}, 10, v{t2}
    s_lshl_b32 s{sT1}, s{sCb}, 7
    v_add_u32 v{vWo}, s{sT1}, v{t2}
    s_lshl_b32 s{sA0}, s{sRb}, 1
    s_add_u32 s{sA0}, s{sA0}, s{sTsub}
    s_mul_i32 s{sA0}, s{sA0}, {KS}
    s_lshl_b32 s{sT0}, s{sFsub}, 1
    s_add_u32 s{sA0}, s{sA0}, s{sT0}
    s_lshl_b32 s{sA0}, s{sA0}, 10
    s_add_u32 s{sA0}, s{sA0}, {ACT}
    s_lshl_b32 s{sM0A}, s{sTsub}, 12
    s_lshl_b32 s{sT0}, s{sFsub}, 11
    s_add_u32 s{sM0A}, s{sM0A}, s{sT0}
    s_lshl_b32 s{sM0W}, s{sWave}, 11
    s_add_u32 s{sM0W}, s{sM0W}, 8192
    s_waitcnt lgkmcnt(0)""")
    srd(k, SW, 4, KS*16*1024); srd(k, SWS, 8, WS_SIZE)
    def dma_chunk(c):
        slot = c % RING
        e(f"""s_add_u32 m0, s{sM0A}, {slot*16384}
        s_add_u32 s{sOffA}, s{sA0}, {c*4096}
        buffer_load_dwordx4 v{vL16}, s[{SWS}:{SWS+3}], s{sOffA} offen lds
        buffer_load_dwordx4 v{vL16}, s[{SWS}:{SWS+3}], s{sOffA} offen offset:1024 lds
        s_add_u32 m0, s{sM0W}, {slot*16384}
        s_mov_b32 s{sOffW}, {c*65536}
        buffer_load_dwordx4 v{vWo}, s[{SW}:{SW+3}], s{sOffW} offen lds
        s_add_u32 m0, s{sM0W}, {slot*16384 + 1024}
        s_mov_b32 s{sOffW}, {c*65536 + 8192}
        buffer_load_dwordx4 v{vWo}, s[{SW}:{SW+3}], s{sOffW} offen lds""")
    FIRST = min(AHEAD, int(PARAM.get('first35', 3)))
    for c in range(FIRST): dma_chunk(c)
    issued = FIRST
    for c in range(NC):
        e(f"s_waitcnt vmcnt({4*(issued-1-c)})\ns_barrier")
        n = 0
        while issued < NC and issued < c + AHEAD and issued - (c-1) <= RING and n < 2:
            dma_chunk(issued); issued += 1; n += 1
    k.label(f"{L}_end")
    e("s_endpgm")
    return k, (256, 512, 131072)

def gen_k4():
    k = K("k4_ffn1_kernel", vgprs=216)
    e = k.e
    NC = 16; RING = 8; AHEAD = int(PARAM.get('ah4', 5))
    SW, SWS, SB = 12, 16, 20
    sWave, sTh, sFh, sRb, sCb = 28, 29, 30, 31, 32
    sM0A, sM0W, sOffA, sOffW, sT0, sT1, sA0 = 33, 34, 35, 36, 37, 38, 39
    vLane, vT, vH, vL16, vWo = 1, 2, 3, 4, 5
    vAa = [6, 7]; vWa = [[8, 9], [10, 11]]
    t0, t1, t2, t3 = 12, 13, 14, 15
    SEL = 16
    CSA = [20, 24]
    STA = [28, 30]
    AF = [32, 48]
    WF = [64, 80]
    ACC = 96
    EP = 160
    EB = 176
    SL = 160
    BL = 192
    PK = 208
    e(f"""s_cmp_ge_u32 s2, 224
    s_cbranch_scc1 L_k4_end""")
    instr_start(k)
    e(f"""s_load_dwordx4 s[4:7], s[0:1], 32
    s_load_dwordx2 s[8:9], s[0:1], 80
    v_and_b32 v{vLane}, 63, v0
    v_lshrrev_b32 v{t0}, 6, v0
    v_and_b32 v{vT}, 31, v0
    v_bfe_u32 v{vH}, v0, 5, 1
    v_readfirstlane_b32 s{sT1}, v{t0}
    v_lshlrev_b32 v{vL16}, 4, v{vLane}
    s_and_b32 s{sRb}, s2, 7
    s_lshl_b32 s{sRb}, s{sRb}, 1
    s_bfe_u32 s{sT0}, s2, 0x10003
    s_add_u32 s{sRb}, s{sRb}, s{sT0}
    s_lshr_b32 s{sCb}, s2, 4
    s_and_b32 s{sWave}, s{sT1}, 3
    s_and_b32 s{sTh}, s{sWave}, 1
    s_lshr_b32 s{sFh}, s{sWave}, 1
    s_cmp_ge_u32 s{sT1}, 4
    s_cbranch_scc1 L_k4_loader""")
    e(f"""s_lshl_b32 s{sT0}, s{sRb}, 7
    s_lshl_b32 s{sT1}, s{sTh}, 6
    s_add_u32 s{sT0}, s{sT0}, s{sT1}
    s_lshl_b32 s{sT0}, s{sT0}, 3
    s_add_u32 s{sT0}, s{sT0}, {WS_ST}
    v_lshlrev_b32 v{t0}, 3, v{vT}
    v_lshl_add_u32 v{t0}, v{vH}, 17, v{t0}
    v_lshlrev_b32 v{t3}, 3, v{vH}
    s_waitcnt lgkmcnt(0)""")
    srd(k, SWS, 8, WS_SIZE); srd(k, SB, 6, 3584)
    for j in range(8):
        e(f"s_add_u32 s{sT1}, s{sT0}, {j*16384}")
        for ts in range(2):
            e(f"buffer_load_dwordx2 {vr(SL+16*ts+2*j,2)}, v{t0}, s[{SWS}:{SWS+3}], s{sT1} offen offset:{256*ts}")
    e(f"""s_lshl_b32 s{sT0}, s{sCb}, 8
    s_lshl_b32 s{sT1}, s{sFh}, 7
    s_add_u32 s{sT0}, s{sT0}, s{sT1}""")
    for fs in range(2):
        for g in range(4): e(f"buffer_load_dwordx2 {vr(BL+8*fs+2*g,2)}, v{t3}, s[{SB}:{SB+3}], s{sT0} offen offset:{64*fs + 16*g}")
    e(f"""s_lshl_b32 s{sT0}, s{sTh}, 12
    v_add_u32 v{vAa[0]}, s{sT0}, v{vL16}
    v_add_u32 v{vAa[1]}, 65536, v{vAa[0]}
    v_and_b32 v{t0}, 15, v{vLane}
    v_lshrrev_b32 v{t1}, 2, v{t0}
    v_lshl_add_u32 v{t2}, v{vH}, 2, v{t1}
    v_lshlrev_b32 v{t2}, 8, v{t2}
    v_bfe_u32 v{t3}, v{vLane}, 4, 1
    v_lshl_add_u32 v{t2}, v{t3}, 5, v{t2}
    v_and_b32 v{t3}, 3, v{t0}
    v_lshl_add_u32 v{t2}, v{t3}, 3, v{t2}
    s_lshl_b32 s{sT0}, s{sFh}, 1""")
    for fs in range(2):
        e(f"""s_add_u32 s{sT1}, s{sT0}, {fs}
        v_xor_b32 v{t3}, s{sT1}, v{t1}
        v_lshl_add_u32 v{t3}, v{t3}, 6, v{t2}
        v_add_u32 v{vWa[fs][0]}, 8192, v{t3}
        v_add_u32 v{vWa[fs][1]}, {8192+65536}, v{t3}""")
    e(f"""v_bfe_u32 v{t1}, v{vLane}, 4, 1
    v_cmp_eq_u32 vcc, v{t0}, v{t1}
    v_mov_b32 v{t0}, 0
    v_mov_b32 v{t1}, 0x3f803f80
    v_cndmask_b32 v{SEL}, v{t0}, v{t1}, vcc
    v_cndmask_b32 v{SEL+1}, v{t0}, v{t1}, vcc
    v_cndmask_b32 v{SEL+2}, v{t0}, v{t1}, vcc
    v_cndmask_b32 v{SEL+3}, v{t0}, v{t1}, vcc""")
    for i in range(8): e(f"v_mov_b32 v{CSA[0]+i}, 0")
    for i in range(64): e(f"v_mov_b32 v{ACC+i}, 0")
    e("s_waitcnt vmcnt(8)")
    for ts in range(2):
        b0 = SL + 16*ts
        for j in range(1, 8):
            e(f"v_add_f32 v{b0}, v{b0}, v{b0+2*j}\nv_add_f32 v{b0+1}, v{b0+1}, v{b0+2*j+1}")
        for q in range(2):
            e(f"""v_mov_b32 v{t0}, v{b0+q}
            s_nop 1
            v_permlane32_swap_b32 v{b0+q}, v{t0}
            s_nop 1
            v_add_f32 v{b0+q}, v{b0+q}, v{t0}""")
        e(f"""v_mul_f32 v{t0}, {1.0/512}, v{b0}
        v_mul_f32 v{t1}, {1.0/512}, v{b0+1}
        v_fma_f32 v{t1}, -v{t0}, v{t0}, v{t1}
        v_max_f32 v{t1}, 0, v{t1}
        v_add_f32 v{t1}, {1e-5}, v{t1}
        v_rsq_f32 v{PK+4*ts}, v{t1}
        s_nop 0
        v_mov_b32 v{PK+4*ts+1}, v{PK+4*ts}
        v_mul_f32 v{PK+4*ts+2}, v{t0}, v{PK+4*ts}
        v_sub_f32 v{PK+4*ts+2}, 0, v{PK+4*ts+2}
        v_mov_b32 v{PK+4*ts+3}, v{PK+4*ts+2}""")
    def rdA(c, s, ts):
        slot = c % RING; b = c & 1
        e(f"ds_read_b128 {vr(AF[b]+8*s+4*ts,4)}, v{vAa[slot>>2]} offset:{(slot&3)*16384 + ts*2048 + s*1024}")
    def rdW(c, s, fs):
        slot = c % RING; b = c & 1
        off = (slot & 3)*16384 + s*4096
        e(f"""ds_read_b64_tr_b16 {vr(WF[b]+8*s+4*fs,2)}, v{vWa[fs][slot>>2]} offset:{off}
        ds_read_b64_tr_b16 {vr(WF[b]+8*s+4*fs+2,2)}, v{vWa[fs][slot>>2]} offset:{off + 2048}""")
    def mm(c, s, ts, fs):
        b = c & 1; a = ACC + 32*ts + 16*fs
        e(f"v_mfma_f32_32x32x16_bf16 {vr(a,16)}, {vr(WF[b]+8*s+4*fs,4)}, {vr(AF[b]+8*s+4*ts,4)}, {vr(a,16)}")
    def cs(c, s, fs):
        b = c & 1
        e(f"v_mfma_f32_16x16x32_bf16 {vr(CSA[fs],4)}, {vr(WF[b]+8*s+4*fs,4)}, {vr(SEL,4)}, {vr(CSA[fs],4)}")
    stamp(k, 1)
    e(f"s_barrier")
    stamp(k, 2)
    for s in range(2):
        for x in range(2): rdA(0, s, x); rdW(0, s, x)
    for c in range(NC):
        last = c + 1 >= NC
        if not last:
            e(f"s_waitcnt lgkmcnt(0)\ns_barrier")
            stamp(k, 3 + c)
        else:
            e("s_waitcnt lgkmcnt(0)")
        for s in range(2):
            mm(c, s, 0, 0)
            if not last: rdA(c+1, s, 0)
            mm(c, s, 1, 0)
            if not last: rdW(c+1, s, 0)
            cs(c, s, 0)
            mm(c, s, 0, 1)
            if not last: rdA(c+1, s, 1)
            mm(c, s, 1, 1)
            if not last: rdW(c+1, s, 1)
            cs(c, s, 1)
    SCR = 6*16384
    stamp(k, 20)
    e(f"""s_waitcnt vmcnt(0)
    s_lshl_b32 s{sT0}, s{sWave}, 10
    s_add_u32 s{sT0}, s{sT0}, {SCR}
    v_and_b32 v{t0}, 15, v{vLane}
    v_lshrrev_b32 v{t1}, 4, v{vLane}
    v_lshlrev_b32 v{t1}, 4, v{t1}
    v_lshl_add_u32 v{t1}, v{t0}, 6, v{t1}
    v_add_u32 v{t1}, s{sT0}, v{t1}
    v_lshlrev_b32 v{t2}, 4, v{vH}
    v_add_u32 v{t2}, s{sT0}, v{t2}
    v_cmp_gt_u32 vcc, 2, v{t0}
    s_nop 4
    s_and_saveexec_b64 s[40:41], vcc
    ds_write_b128 v{t1}, {vr(CSA[0],4)}
    ds_write_b128 v{t1}, {vr(CSA[1],4)} offset:128
    s_mov_b64 exec, s[40:41]""")
    EPS = [EP, AF[0]+32]
    for fs in range(2):
        for g in range(4): e(f"ds_read_b128 {vr(EPS[fs]+4*g,4)}, v{t2} offset:{128*fs + 32*g}")
    sG = 42
    e(f"""s_lshl_b32 s{sG}, s{sRb}, 2
    s_lshl_b32 s{sT1}, s{sTh}, 1
    s_add_u32 s{sG}, s{sG}, s{sT1}
    s_mul_i32 s{sG}, s{sG}, 112
    s_lshl_b32 s{sT1}, s{sCb}, 3
    s_add_u32 s{sG}, s{sG}, s{sT1}
    s_lshl_b32 s{sT1}, s{sFh}, 2
    s_add_u32 s{sG}, s{sG}, s{sT1}
    s_lshl_b32 s{sG}, s{sG}, 10
    s_add_u32 s{sG}, s{sG}, {WS_GF}""")
    C0 = -2.0 * LOG2E * math.sqrt(2.0/math.pi)
    C1 = C0 * 0.044715
    CC = 16
    e(f"""v_mov_b32 v{CC}, {hex(f2u(C0))}
    v_mov_b32 v{CC+1}, {hex(f2u(C0))}
    v_mov_b32 v{CC+2}, {hex(f2u(C1))}
    v_mov_b32 v{CC+3}, {hex(f2u(C1))}
    v_mov_b32 v{CC+4}, 1.0
    v_mov_b32 v{CC+5}, 1.0""")
    TM = AF[0]
    def p2(r): return f"v[{r}:{r+1}]"
    for fs in range(2):
        for i in range(8): e(f"v_lshlrev_b32 v{EB+2*i}, 16, v{BL+8*fs+i}\nv_and_b32 v{EB+2*i+1}, 0xffff0000, v{BL+8*fs+i}")
        if fs == 0: e("s_waitcnt lgkmcnt(0)")
        for ts in range(2):
            a = ACC + 32*ts + 16*fs
            tm = TM + 16*ts
            for i in range(0, 16, 2): e(f"v_pk_fma_f32 {p2(tm+i)}, {p2(PK+4*ts+2)}, {p2(EPS[fs]+i)}, {p2(EB+i)}")
            for i in range(0, 16, 2): e(f"v_pk_fma_f32 {p2(a+i)}, {p2(a+i)}, {p2(PK+4*ts)}, {p2(tm+i)}")
            for i in range(0, 16, 2): e(f"v_pk_mul_f32 {p2(tm+i)}, {p2(a+i)}, {p2(a+i)}")
            for i in range(0, 16, 2): e(f"v_pk_fma_f32 {p2(tm+i)}, {p2(tm+i)}, {p2(CC+2)}, {p2(CC)}")
            for i in range(0, 16, 2): e(f"v_pk_mul_f32 {p2(tm+i)}, {p2(tm+i)}, {p2(a+i)}")
            for i in range(16): e(f"v_exp_f32 v{tm+i}, v{tm+i}")
            for i in range(0, 16, 2): e(f"v_pk_add_f32 {p2(tm+i)}, {p2(tm+i)}, {p2(CC+4)}")
            for i in range(16): e(f"v_rcp_f32 v{tm+i}, v{tm+i}")
            for i in range(0, 16, 2): e(f"v_pk_mul_f32 {p2(a+i)}, {p2(a+i)}, {p2(tm+i)}")
            for i in range(8): e(f"v_cvt_pk_bf16_f32 v{a+i}, v{a+2*i}, v{a+2*i+1}")
            e(f"""s_add_u32 s{sT1}, s{sG}, {ts*112*1024 + fs*2048}
            buffer_store_dwordx4 {vr(a,4)}, v{vL16}, s[{SWS}:{SWS+3}], s{sT1} offen
            buffer_store_dwordx4 {vr(a+4,4)}, v{vL16}, s[{SWS}:{SWS+3}], s{sT1} offen offset:1024""")
    stamp(k, 21)
    instr_end(k, 3, SWS, AF[0])
    e("s_endpgm")
    k.label("L_k4_loader")
    e(f"""v_lshrrev_b32 v{t0}, 4, v{vLane}
    v_and_b32 v{t1}, 15, v{vLane}
    v_lshlrev_b32 v{t2}, 2, v{t0}
    v_xor_b32 v{t2}, v{t2}, v{t1}
    v_lshlrev_b32 v{t2}, 4, v{t2}
    s_lshl_b32 s{sT0}, s{sWave}, 3
    v_add_u32 v{t0}, s{sT0}, v{t0}
    v_mul_u32_u24 v{t0}, 3584, v{t0}
    v_add_u32 v{t2}, v{t2}, v{t0}
    s_lshl_b32 s{sT1}, s{sCb}, 8
    v_add_u32 v{vWo}, s{sT1}, v{t2}
    s_lshl_b32 s{sA0}, s{sRb}, 2
    s_add_u32 s{sA0}, s{sA0}, s{sWave}
    s_lshl_b32 s{sA0}, s{sA0}, 15
    s_add_u32 s{sA0}, s{sA0}, {WS_HF}
    s_lshl_b32 s{sM0A}, s{sWave}, 11
    s_add_u32 s{sM0W}, s{sM0A}, 8192
    s_waitcnt lgkmcnt(0)""")
    srd(k, SW, 4, 512*3584); srd(k, SWS, 8, WS_SIZE)
    def dma_chunk(c):
        slot = c % RING
        e(f"""s_add_u32 m0, s{sM0A}, {slot*16384}
        s_add_u32 s{sOffA}, s{sA0}, {c*2048}
        buffer_load_dwordx4 v{vL16}, s[{SWS}:{SWS+3}], s{sOffA} offen lds
        buffer_load_dwordx4 v{vL16}, s[{SWS}:{SWS+3}], s{sOffA} offen offset:1024 lds
        s_add_u32 m0, s{sM0W}, {slot*16384}
        s_mov_b32 s{sOffW}, {c*32*3584}
        buffer_load_dwordx4 v{vWo}, s[{SW}:{SW+3}], s{sOffW} offen lds
        s_add_u32 m0, s{sM0W}, {slot*16384 + 1024}
        s_mov_b32 s{sOffW}, {c*32*3584 + 4*3584}
        buffer_load_dwordx4 v{vWo}, s[{SW}:{SW+3}], s{sOffW} offen lds""")
    FIRST = min(AHEAD, int(PARAM.get('first4', 3)))
    for c in range(FIRST): dma_chunk(c)
    issued = FIRST
    for c in range(NC):
        e(f"s_waitcnt vmcnt({4*(issued-1-c)})\ns_barrier")
        n = 0
        while issued < NC and issued < c + AHEAD and issued - (c-1) <= RING and n < 2:
            dma_chunk(issued); issued += 1; n += 1
    k.label("L_k4_end")
    e("s_endpgm")
    return k, (224, 512, 131072)

def main():
    global INSTR
    if "--instr" in sys.argv: INSTR = True; sys.argv.remove("--instr")
    for a in list(sys.argv):
        if a.startswith("--exp="): EXP.update(a[6:].split(",")); sys.argv.remove(a)
        if a.startswith("--p="):
            for kv in a[4:].split(","): PARAM[kv.split(":")[0]] = kv.split(":")[1]
            sys.argv.remove(a)
    ks = [gen_k1(), gen_k2(), gen_k35(3), gen_k4(), gen_k35(5)]
    hdr = open("cdna_kernels/" + NAME + ".s.ref").read().split("; Override launch")[0]
    out = hdr
    for k, (g, b, lds) in ks:
        out += f"; @launch kernel={k.name} grid=({g},1,1) block=({b},1,1) lds={lds}\n"
    out += '.amdgcn_target "amdgcn-amd-amdhsa--gfx950"\n.text\n'
    for k, _ in ks: out += k.text()
    out += '.section .rodata,"a"\n'
    for k, _ in ks: out += k.kd()
    open(sys.argv[1] if len(sys.argv) > 1 else "out.s", "w").write(out)

if __name__ == "__main__":
    main()
```

```python
import sys, math
import gen
from gen import *

WS_FLAG = 6*MB + 65536

XCH_LDS = 65536 + 64*VST + 3072
LDS_MAIN = XCH_LDS + 8*3072
def attention_phase(k, L):
    e = k.e
    SWS, SPF = L['SWS'], L['SW']
    sW8, sWave, sMode, sT0, sT1, sHo, sGo, sCnt = L['sW8'], L['sWave'], L['sMode'], L['sT0'], L['sT1'], L['sHo'], L['sGo'], L['sCnt']
    hstore = L['hstore']
    sHead, sQt, sOff, sLoop, sKh, sG0, sM0, sM0V, sXb, sXcc, sOo = 76, 77, 78, 79, 80, 81, 82, 83, 53, 54, 75
    vLane, vL16 = L['vLane'], L['vL16']
    vKa, vVa, vVb, vT0, vT1, vT2, vT3, vT4 = 5, 46, 47, 6, 7, 44, 45, 43
    QF = [8, 12]; KF = 16; VA = 20; VB = 24; P2 = [28, 112]; S = [48, 64]; O = [80, 128]; CI = [96, 144]
    PFD = 120
    vXp = 127
    e(f"""s_and_b32 s{sHead}, s2, 7
    s_lshl_b32 s{sXb}, s{sHead}, 13
    s_add_u32 s{sXb}, s{sXb}, {WS_FLAG + 3072}
    s_lshl_b32 s{sHead}, s{sHead}, 2
    s_bfe_u32 s{sT0}, s2, 0x20003
    s_add_u32 s{sHead}, s{sHead}, s{sT0}
    s_lshr_b32 s{sQt}, s2, 5
    s_lshl_b32 s{sQt}, s{sQt}, 3
    s_lshl_b32 s{sT0}, s{sWave}, 1
    s_add_u32 s{sQt}, s{sQt}, s{sT0}
    s_lshr_b32 s{sKh}, s{sW8}, 2
    s_lshl_b32 s{sT0}, s{sKh}, 5
    s_add_u32 s{sT0}, s{sT0}, s{sWave}
    s_lshl_b32 s{sM0}, s{sT0}, 10
    s_mul_i32 s{sM0V}, s{sT0}, {VST}
    s_lshl_b32 s{sG0}, s{sHead}, 16
    s_add_u32 s{sG0}, s{sG0}, s{sM0}
    s_lshl_b32 s{sT0}, s{sHead}, 6
    s_add_u32 s{sT1}, s{sT0}, s{sQt}
    s_lshl_b32 s{sT1}, s{sT1}, 10
    v_lshlrev_b32 v{vT0}, 2, v{vLane}
    s_getreg_b32 s{sXcc}, hwreg(HW_REG_XCC_ID)
    s_and_b32 s{sXcc}, s{sXcc}, 15
    s_add_u32 s{sXcc}, s{sXcc}, 1
    s_waitcnt lgkmcnt(0)""")
    srd(k, SWS, 24, WS_SIZE)
    def dma(p, y):
        if y == 0: e(f"s_add_u32 m0, s{sM0}, {p*4096}")
        else: e(f"s_add_u32 m0, s{sM0V}, {65536 + p*4*VST}")
        e(f"""s_add_u32 s{sOff}, s{sG0}, {(WS_KF if y == 0 else WS_VF) + p*4096}
        buffer_load_dwordx4 v{vL16}, s[{SWS}:{SWS+3}], s{sOff} offen lds""")
    e(f"""buffer_load_dwordx4 {vr(QF[0],4)}, v{vL16}, s[{SWS}:{SWS+3}], s{sT1} offen
    buffer_load_dwordx4 {vr(QF[1],4)}, v{vL16}, s[{SWS}:{SWS+3}], s{sT1} offen offset:1024
    s_lshl_b32 s{sT1}, s{sT0}, 2
    s_add_u32 s{sT1}, s{sT1}, {WS_KN}
    buffer_load_dword v{vT1}, v{vT0}, s[{SWS}:{SWS+3}], s{sT1} offen""")
    dma(0, 0); dma(0, 1); dma(1, 0); dma(1, 1)
    e(f"""v_mov_b32 v{PFD}, 0x3f803f80
    v_mov_b32 v{PFD+1}, 0x3f803f80
    v_mov_b32 v{PFD+2}, 0x3f803f80
    v_mov_b32 v{PFD+3}, 0x3f803f80
    v_mul_u32_u24 v{vT2}, {VST}, v{vLane}
    v_add_u32 v{vT2}, {65536+1024}, v{vT2}
    ds_write_b128 v{vT2}, {vr(PFD,4)}
    v_bfe_u32 v{vT0}, v{vLane}, 5, 1
    v_and_b32 v{vT2}, 15, v{vLane}
    v_lshlrev_b32 v{vT2}, 4, v{vT2}
    v_lshl_add_u32 v{vT2}, v{vT0}, 8, v{vT2}
    v_add_u32 v{vT2}, 65536, v{vT2}
    v_add_u32 v{vT3}, 512, v{vT2}
    v_bfe_u32 v{vT0}, v{vLane}, 4, 1
    v_cmp_eq_u32 vcc, 1, v{vT0}
    v_mov_b32 v{vT0}, {65536+1024}
    s_nop 0
    v_cndmask_b32 v{vT2}, v{vT2}, v{vT0}, vcc
    v_cndmask_b32 v{vT3}, v{vT3}, v{vT0}, vcc
    s_lshl_b32 s{sT0}, s{sKh}, 15
    s_mul_i32 s{sT1}, s{sKh}, {32*VST}
    v_add_u32 v{vKa}, s{sT0}, v{vL16}
    v_add_u32 v{vVa}, s{sT1}, v{vT2}
    v_add_u32 v{vVb}, s{sT1}, v{vT3}""")
    for q in range(2):
        for i in range(16): e(f"v_mov_b32 v{O[q]+i}, 0")
    for i in range(4): e(f"v_mov_b32 v{P2[1]+4+i}, 0")
    for i in range(4): e(f"v_mov_b32 v{VB+i}, 0")
    e(f"""s_waitcnt vmcnt(4)
    v_mov_b32 v{vT0}, 0
    v_mov_b32 v{vT4}, 0
    v_max_f32_dpp v{vT1}, v{vT1}, v{vT1} row_shr:1 row_mask:0xf bank_mask:0xf
    v_dot2_f32_bf16 v{vT0}, v{QF[0]}, v{QF[0]}, v{vT0}
    v_dot2_f32_bf16 v{vT4}, v{QF[1]}, v{QF[1]}, v{vT4}
    v_max_f32_dpp v{vT1}, v{vT1}, v{vT1} row_shr:2 row_mask:0xf bank_mask:0xf
    v_dot2_f32_bf16 v{vT0}, v{QF[0]+1}, v{QF[0]+1}, v{vT0}
    v_dot2_f32_bf16 v{vT4}, v{QF[1]+1}, v{QF[1]+1}, v{vT4}
    v_max_f32_dpp v{vT1}, v{vT1}, v{vT1} row_shr:4 row_mask:0xf bank_mask:0xf
    v_dot2_f32_bf16 v{vT0}, v{QF[0]+2}, v{QF[0]+2}, v{vT0}
    v_dot2_f32_bf16 v{vT4}, v{QF[1]+2}, v{QF[1]+2}, v{vT4}
    v_max_f32_dpp v{vT1}, v{vT1}, v{vT1} row_shr:8 row_mask:0xf bank_mask:0xf
    v_dot2_f32_bf16 v{vT0}, v{QF[0]+3}, v{QF[0]+3}, v{vT0}
    v_dot2_f32_bf16 v{vT4}, v{QF[1]+3}, v{QF[1]+3}, v{vT4}
    v_max_f32_dpp v{vT1}, v{vT1}, v{vT1} row_bcast:15 row_mask:0xa bank_mask:0xf
    s_nop 1
    v_max_f32_dpp v{vT1}, v{vT1}, v{vT1} row_bcast:31 row_mask:0xc bank_mask:0xf
    v_mov_b32 v{CI[0]}, v{vT0}
    v_mov_b32 v{CI[1]}, v{vT4}
    s_nop 0
    v_readlane_b32 s{sT0}, v{vT1}, 63
    v_permlane32_swap_b32 v{vT0}, v{CI[0]}
    v_permlane32_swap_b32 v{vT4}, v{CI[1]}
    s_nop 1
    v_add_f32 v{vT0}, v{vT0}, v{CI[0]}
    v_add_f32 v{vT4}, v{vT4}, v{CI[1]}
    v_mul_f32 v{vT0}, s{sT0}, v{vT0}
    v_mul_f32 v{vT4}, s{sT0}, v{vT4}
    v_sqrt_f32 v{vT0}, v{vT0}
    v_sqrt_f32 v{vT4}, v{vT4}
    s_nop 0
    v_sub_f32 v{vT0}, 0, v{vT0}
    v_sub_f32 v{vT4}, 0, v{vT4}""")
    for i in range(16): e(f"v_mov_b32 v{CI[0]+i}, v{vT0}\nv_mov_b32 v{CI[1]+i}, v{vT4}")
    e(f"""s_waitcnt vmcnt(2) lgkmcnt(0)
    s_barrier""")
    stamp(k, 12)
    def rdK(t): e(f"ds_read_b128 {vr(KF,4)}, v{vKa} offset:{t*1024}")
    def rdVa(t): e(f"ds_read_b128 {vr(VA,4)}, v{vVa} offset:{t*VST}")
    def rdVb(t): e(f"ds_read_b128 {vr(VB,4)}, v{vVb} offset:{t*VST}")
    def unit(t, q, extra=None):
        s = S[q]; pc = P2[q]; pp = P2[q ^ 1]
        extra = list(extra or [])
        def x():
            if extra: e(extra.pop(0))
        e(f"v_exp_f32 v{s}, v{s}")
        e(f"v_exp_f32 v{s+1}, v{s+1}")
        e(f"v_mfma_f32_32x32x16_bf16 {vr(O[q^1],16)}, {vr(VB,4)}, {vr(pp+4,4)}, {vr(O[q^1],16)}")
        for j in range(2, 16):
            e(f"v_exp_f32 v{s+j}, v{s+j}")
            if q == 0:
                if j == 2: rdVb(t)
                if j == 7: rdK(t+1)
                if j == 11: e("s_waitcnt lgkmcnt(2)")
            else:
                if j == 5: e("s_waitcnt lgkmcnt(0)")
                if j == 13: rdVa(t+1)
            if j in (8, 9, 10): x()
            if j >= 3 and j % 2 == 1: e(f"v_cvt_pk_bf16_f32 v{pc+(j-3)//2}, v{s+j-3}, v{s+j-2}")
            if j == 6: e(f"v_mfma_f32_32x32x16_bf16 {vr(S[q^1],16)}, {vr(KF,4)}, {vr(QF[q^1],4)}, {vr(CI[q^1],16)}")
            if j == 12: e(f"v_mfma_f32_32x32x16_bf16 {vr(O[q],16)}, {vr(VA,4)}, {vr(pc,4)}, {vr(O[q],16)}")
        if q == 0: e("s_waitcnt lgkmcnt(1)")
        else: e("s_nop 0")
        e(f"v_cvt_pk_bf16_f32 v{pc+7}, v{s+14}, v{s+15}")
        while extra: x()
    def dma_lines(p, y):
        n0 = len(k.lines); dma(p, y); l = k.lines[n0:]; del k.lines[n0:]; return [x.strip() for x in l]
    rdK(0); rdVa(0)
    e(f"""s_cmp_lg_u32 s{sW8}, 7
    s_cbranch_scc1 L_a_nopub
    s_lshr_b32 s{sT0}, s2, 3
    s_lshl_b32 s{sT0}, s{sT0}, 2
    s_add_u32 s{sT0}, s{sT0}, s{sXb}
    v_mov_b32 v{PFD}, s{sXcc}
    v_mov_b32 v{PFD+1}, 0
    s_mov_b64 exec, 1
    buffer_store_dword v{PFD}, v{PFD+1}, s[{SWS}:{SWS+3}], s{sT0} offen sc1
    s_mov_b64 exec, -1""")
    k.label("L_a_nopub")
    e(f"""s_waitcnt lgkmcnt(1)
    v_mfma_f32_32x32x16_bf16 {vr(S[0],16)}, {vr(KF,4)}, {vr(QF[0],4)}, {vr(CI[0],16)}
    s_nop 7
    s_nop 7""")
    NPEEL = 12
    pn = [0]
    def prio(p):
        if 'noprio' in EXP: return
        n = pn[0]; pn[0] += 1
        e(f"s_cmp_eq_u32 s{sKh}, 0\ns_cbranch_scc1 L_a_pr{n}\ns_setprio {p}")
        k.label(f"L_a_pr{n}")
    nd = 0
    for t in range(NPEEL):
        if t == 3: e(f"s_waitcnt vmcnt({nd})\ns_barrier")
        if t == 7: e(f"s_waitcnt vmcnt({nd-6})\ns_barrier")
        if t == 11: e(f"s_waitcnt vmcnt(0)\ns_barrier")
        for q in range(2):
            if q == 0 and t in (0, 3, 7, 11): prio(1)
            if q == 1 and t in (2, 6, 10): prio(0)
            ex = []
            if nd < 12: ex = dma_lines(2 + nd//2, nd & 1); nd += 1
            unit(t, q, ex)
    e(f"""v_add_u32 v{vKa}, {NPEEL*1024}, v{vKa}
    v_add_u32 v{vVa}, {NPEEL*VST}, v{vVa}
    v_add_u32 v{vVb}, {NPEEL*VST}, v{vVb}
    s_mov_b32 s{sLoop}, 0""")
    e(f"""s_lshl_b32 s{sT0}, s2, 3
    s_add_u32 s{sT0}, s{sT0}, s{sW8}
    s_lshl_b32 s{sT0}, s{sT0}, 10""")
    for (lo, size) in ((12, 512*3584), (16, 1792*1024), (8, 512*1024)):
        srd(k, SPF, lo, size)
        e(f"buffer_load_dwordx4 {vr(PFD,4)}, v{vL16}, s[{SPF}:{SPF+3}], s{sT0} offen")
    e(f"""s_add_u32 s{sOo}, s{sQt}, s{sKh}
    s_lshl_b32 s{sOo}, s{sOo}, 5
    s_add_u32 s{sOo}, s{sOo}, s{sHead}
    s_lshl_b32 s{sOo}, s{sOo}, 10
    s_add_u32 s{sOo}, s{sOo}, {WS_OF}
    s_cmp_ge_u32 s{sW8}, 4
    s_cbranch_scc1 L_a_ntouch
    v_and_b32 v{PFD+4}, 15, v{vLane}
    v_lshlrev_b32 v{PFD+4}, 7, v{PFD+4}
    buffer_load_dword v{PFD+6}, v{PFD+4}, s[{SWS}:{SWS+3}], s{sHo} offen
    v_and_b32 v{PFD+4}, 31, v{vLane}
    v_lshlrev_b32 v{PFD+4}, 7, v{PFD+4}
    v_lshrrev_b32 v{PFD+5}, 5, v{vLane}
    v_mul_u32_u24 v{PFD+5}, {112*1024}, v{PFD+5}
    v_add_u32 v{PFD+4}, v{PFD+4}, v{PFD+5}
    buffer_load_dword v{PFD+6}, v{PFD+4}, s[{SWS}:{SWS+3}], s{sGo} offen""")
    k.label("L_a_ntouch")
    e(f"""v_and_b32 v{PFD+4}, 31, v{vLane}
    v_lshlrev_b32 v{PFD+4}, 2, v{PFD+4}
    buffer_load_dword v{vXp}, v{PFD+4}, s[{SWS}:{SWS+3}], s{sXb} offen sc1""")
    k.label("L_a_loop")
    NB = 4
    if 'noprio' not in EXP:
        e(f"s_cmp_lg_u32 s{sLoop}, {int(PARAM.get('prsw', 4))}\ns_cbranch_scc1 L_a_prl\ns_setprio 0")
        k.label("L_a_prl")
    for t in range(NB):
        for q in range(2): unit(t, q)
    e(f"""v_add_u32 v{vKa}, {NB*1024}, v{vKa}
    v_add_u32 v{vVa}, {NB*VST}, v{vVa}
    v_add_u32 v{vVb}, {NB*VST}, v{vVb}
    s_add_u32 s{sLoop}, s{sLoop}, 1
    s_cmp_lt_u32 s{sLoop}, {(32-NPEEL)//NB}
    s_cbranch_scc1 L_a_loop
    v_mfma_f32_32x32x16_bf16 {vr(O[1],16)}, {vr(VB,4)}, {vr(P2[1]+4,4)}, {vr(O[1],16)}
    s_mul_i32 s{sT0}, s{sW8}, 3072
    s_add_u32 s{sT0}, s{sT0}, {XCH_LDS}
    s_xor_b32 s{sT1}, s{sW8}, 4
    s_mul_i32 s{sT1}, s{sT1}, 3072
    s_add_u32 s{sT1}, s{sT1}, {XCH_LDS}
    v_add_u32 v{vT0}, s{sT0}, v{vL16}
    v_add_u32 v{vT1}, s{sT1}, v{vL16}
    s_waitcnt lgkmcnt(0)
    s_nop 7""")
    stamp(k, 13)
    e(f"""s_cmp_lg_u32 s{sKh}, 0
    s_cbranch_scc1 L_a_x1""")
    for g in range(3): e(f"ds_write_b128 v{vT0}, {vr(O[1]+4*g,4)} offset:{1024*g}")
    e("s_branch L_a_x2")
    k.label("L_a_x1")
    for g in range(3): e(f"ds_write_b128 v{vT0}, {vr(O[0]+4*g,4)} offset:{1024*g}")
    e("s_nop 1")
    for i in range(9): e(f"v_mov_b32 v{O[0]+i}, v{O[1]+i}")
    for i in range(4): e(f"v_mov_b32 v{QF[0]+i}, v{QF[1]+i}")
    k.label("L_a_x2")
    e("s_waitcnt lgkmcnt(0)\ns_barrier")
    for g in range(3): e(f"ds_read_b128 {vr(S[0]+4*g,4)}, v{vT1} offset:{1024*g}")
    e(f"""v_and_b32 v{vT1}, 31, v{vLane}
    v_lshlrev_b32 v{vT1}, 2, v{vT1}
    s_mov_b32 s{sCnt}, 0
    s_mov_b32 s{sMode}, 0
    s_branch L_a_xchk""")
    k.label("L_a_xpoll")
    e(f"""buffer_load_dword v{vXp}, v{vT1}, s[{SWS}:{SWS+3}], s{sXb} offen sc1
    s_add_u32 s{sCnt}, s{sCnt}, 1
    s_cmp_ge_u32 s{sCnt}, 0x100000
    s_cbranch_scc1 L_a_xdone""")
    k.label("L_a_xchk")
    e(f"""s_waitcnt vmcnt(0)
    v_cmp_eq_u32 vcc, 0, v{vXp}
    s_cbranch_vccnz L_a_xpoll
    v_cmp_ne_u32 vcc, s{sXcc}, v{vXp}
    s_cbranch_vccnz L_a_xdone
    s_mov_b32 s{sMode}, 1""")
    k.label("L_a_xdone")
    if 'forceslow' in EXP: e(f"s_mov_b32 s{sMode}, 0")
    e("s_waitcnt lgkmcnt(0)")
    Oo = O[0]
    for i in range(9): e(f"v_add_f32 v{Oo+i}, v{Oo+i}, v{S[0]+i}")
    thr = 2.0**-64 if 'forcefb' not in EXP else 1e30
    e(f"""v_cmp_nle_f32 vcc, {hex(f2u(thr))}, v{Oo+8}
    s_cbranch_vccnz L_a_fallback
    v_mov_b32 v{vT1}, 0x7f000000
    v_cmp_nlt_f32 vcc, v{Oo+8}, v{vT1}
    s_cbranch_vccz L_a_out""")
    k.label("L_a_fallback")
    k.c("fallback (rare): the bound was too loose -> exact row max over all keys, then a plain two-pass softmax for this q-tile")
    C0 = CI[0]
    for i in range(16): e(f"v_mov_b32 v{C0+i}, 0")
    e(f"""v_mov_b32 v{vT0}, 0xff7fffff
    v_mov_b32 v{vKa}, v{vL16}
    s_mov_b32 s{sLoop}, 0""")
    k.label("L_a_fb1")
    e(f"""ds_read_b128 {vr(KF,4)}, v{vKa}
    s_waitcnt lgkmcnt(0)
    v_mfma_f32_32x32x16_bf16 {vr(S[0],16)}, {vr(KF,4)}, {vr(QF[0],4)}, {vr(C0,16)}
    s_nop 15
    s_nop 3""")
    for j in range(8): e(f"v_max3_f32 v{vT0}, v{vT0}, v{S[0]+2*j}, v{S[0]+2*j+1}")
    e(f"""v_add_u32 v{vKa}, 1024, v{vKa}
    s_add_u32 s{sLoop}, s{sLoop}, 1
    s_cmp_lt_u32 s{sLoop}, 64
    s_cbranch_scc1 L_a_fb1
    v_mov_b32 v{vT1}, v{vT0}
    s_nop 1
    v_permlane32_swap_b32 v{vT0}, v{vT1}
    s_nop 1
    v_max_f32 v{vT0}, v{vT0}, v{vT1}
    v_sub_f32 v{vT0}, 0, v{vT0}""")
    for i in range(16): e(f"v_mov_b32 v{C0+i}, v{vT0}\nv_mov_b32 v{Oo+i}, 0")
    e(f"""v_mov_b32 v{vKa}, v{vL16}
    v_mov_b32 v{vVa}, v{vT2}
    v_mov_b32 v{vVb}, v{vT3}
    s_mov_b32 s{sLoop}, 0""")
    k.label("L_a_fb2")
    e(f"""ds_read_b128 {vr(KF,4)}, v{vKa}
    ds_read_b128 {vr(VA,4)}, v{vVa}
    ds_read_b128 {vr(VB,4)}, v{vVb}
    s_waitcnt lgkmcnt(0)
    v_mfma_f32_32x32x16_bf16 {vr(S[0],16)}, {vr(KF,4)}, {vr(QF[0],4)}, {vr(C0,16)}
    s_nop 15
    s_nop 3""")
    for j in range(16): e(f"v_exp_f32 v{S[0]+j}, v{S[0]+j}")
    e("s_nop 0")
    for j in range(8): e(f"v_cvt_pk_bf16_f32 v{P2[0]+j}, v{S[0]+2*j}, v{S[0]+2*j+1}")
    e(f"""s_nop 1
    v_mfma_f32_32x32x16_bf16 {vr(Oo,16)}, {vr(VA,4)}, {vr(P2[0],4)}, {vr(Oo,16)}
    v_mfma_f32_32x32x16_bf16 {vr(Oo,16)}, {vr(VB,4)}, {vr(P2[0]+4,4)}, {vr(Oo,16)}
    v_add_u32 v{vKa}, 1024, v{vKa}
    v_add_u32 v{vVa}, {VST}, v{vVa}
    v_add_u32 v{vVb}, {VST}, v{vVb}
    s_add_u32 s{sLoop}, s{sLoop}, 1
    s_cmp_lt_u32 s{sLoop}, 64
    s_cbranch_scc1 L_a_fb2
    s_nop 15
    s_nop 3""")
    k.label("L_a_out")
    e(f"v_rcp_f32 v{vT0}, v{Oo+8}\ns_nop 0")
    for i in range(8): e(f"v_mul_f32 v{Oo+i}, v{Oo+i}, v{vT0}")
    for i in range(4): e(f"v_cvt_pk_bf16_f32 v{P2[0]+i}, v{Oo+2*i}, v{Oo+2*i+1}")
    e(f"buffer_store_dwordx4 {vr(P2[0],4)}, v{vL16}, s[{SWS}:{SWS+3}], s{sOo} offen sc1")
    e("s_waitcnt vmcnt(0)\ns_barrier")
    stamp(k, 14)

def gen_main():
    k = K("k2345_main_kernel", vgprs=224)
    e = k.e
    RING = 8
    AHEAD = int(PARAM.get('ah', 5))
    SWS, SW, SX, SB = 28, 32, 36, 40
    sWave, sA, sB_, sG, sJ, sRb, sCb = 44, 45, 46, 47, 48, 49, 50
    sM0A, sM0W, sOffA, sOffW, sT0, sT1, sA0, sHo, sGo, sCnt = 51, 52, 53, 54, 55, 56, 57, 58, 59, 26
    sEx = 84
    sW8, sMode = 27, 3
    vLane, vT, vH, vL16, vWo, vFl = 1, 2, 3, 4, 5, 6
    e(f"""s_cmp_ge_u32 s2, 256
    s_cbranch_scc1 L_t_end""")
    instr_start(k)
    e(f"""s_load_dwordx16 s[4:19], s[0:1], 0
    s_load_dwordx4 s[20:23], s[0:1], 64
    s_load_dwordx2 s[24:25], s[0:1], 80
    v_and_b32 v{vLane}, 63, v0
    v_lshrrev_b32 v10, 6, v0
    v_and_b32 v{vT}, 31, v0
    v_bfe_u32 v{vH}, v0, 5, 1
    v_readfirstlane_b32 s{sT1}, v10
    v_lshlrev_b32 v{vL16}, 4, v{vLane}
    s_and_b32 s{sG}, s2, 7
    s_lshl_b32 s{sG}, s{sG}, 1
    s_bfe_u32 s{sT0}, s2, 0x10003
    s_add_u32 s{sG}, s{sG}, s{sT0}
    s_lshr_b32 s{sJ}, s2, 4
    s_lshl_b32 s{sRb}, s{sG}, 1
    s_and_b32 s{sT0}, s{sJ}, 1
    s_add_u32 s{sRb}, s{sRb}, s{sT0}
    s_lshr_b32 s{sCb}, s{sJ}, 1
    s_mov_b32 s{sW8}, s{sT1}
    s_and_b32 s{sWave}, s{sT1}, 3
    s_and_b32 s{sA}, s{sWave}, 1
    s_lshr_b32 s{sB_}, s{sWave}, 1""")
    sTsub, sFsub = sA, sB_
    hs_n = [0]
    def hstore(lines):
        n = hs_n[0]; hs_n[0] += 1
        e(f"s_cmp_eq_u32 s{sMode}, 0\ns_cbranch_scc1 L_hs{n}_slow")
        for l in lines: e(l)
        e(f"s_branch L_hs{n}_done")
        k.label(f"L_hs{n}_slow")
        for l in lines: e(l + " sc1" if l.startswith("buffer_store") else l)
        k.label(f"L_hs{n}_done")
    e(f"""s_lshl_b32 s{sHo}, s{sRb}, 1
    s_add_u32 s{sHo}, s{sHo}, s{sTsub}
    s_lshl_b32 s{sHo}, s{sHo}, 5
    s_lshl_b32 s{sT0}, s{sCb}, 2
    s_add_u32 s{sHo}, s{sHo}, s{sT0}
    s_lshl_b32 s{sT0}, s{sFsub}, 1
    s_add_u32 s{sHo}, s{sHo}, s{sT0}
    s_lshl_b32 s{sHo}, s{sHo}, 10
    s_add_u32 s{sHo}, s{sHo}, {WS_HF}
    s_lshl_b32 s{sGo}, s{sG}, 2
    s_lshl_b32 s{sT1}, s{sA}, 1
    s_add_u32 s{sGo}, s{sGo}, s{sT1}
    s_mul_i32 s{sGo}, s{sGo}, 112
    s_lshl_b32 s{sT1}, s{sJ}, 3
    s_add_u32 s{sGo}, s{sGo}, s{sT1}
    s_lshl_b32 s{sT1}, s{sB_}, 2
    s_add_u32 s{sGo}, s{sGo}, s{sT1}
    s_lshl_b32 s{sGo}, s{sGo}, 10
    s_add_u32 s{sGo}, s{sGo}, {WS_GF}""")
    attention_phase(k, locals())
    e(f"""s_cmp_ge_u32 s{sW8}, 4
    s_cbranch_scc1 L_t_loader""")
    vAa = [6, 7]; vWa = [8, 9]
    t0, t1, t2, t3 = 10, 11, 12, 13
    RES = 16; BIA = 24
    AF = [32, 48]; WF = [64, 80]; ACC = 96; EP = 112
    HRES = 216
    vRM = 215
    def p2(r): return f"v[{r}:{r+1}]"
    def unpack(dst, src):
        e(f"v_lshlrev_b32 v{dst}, 16, v{src}\nv_and_b32 v{dst+1}, 0xffff0000, v{src}")
    def addr35():
        e(f"""s_lshl_b32 s{sT0}, s{sTsub}, 12
        v_add_u32 v{vAa[0]}, s{sT0}, v{vL16}
        v_add_u32 v{vAa[1]}, 65536, v{vAa[0]}
        v_and_b32 v{t0}, 15, v{vLane}
        v_lshrrev_b32 v{t1}, 2, v{t0}
        v_lshl_add_u32 v{t1}, v{vH}, 2, v{t1}
        v_lshlrev_b32 v{t1}, 7, v{t1}
        v_lshrrev_b32 v{t2}, 3, v{t0}
        v_xor_b32 v{t2}, s{sFsub}, v{t2}
        v_lshl_add_u32 v{t1}, v{t2}, 6, v{t1}
        v_bfe_u32 v{t2}, v{vLane}, 4, 1
        v_lshl_add_u32 v{t1}, v{t2}, 5, v{t1}
        v_and_b32 v{t2}, 3, v{t0}
        v_lshl_add_u32 v{t1}, v{t2}, 3, v{t1}
        v_add_u32 v{vWa[0]}, 8192, v{t1}
        v_add_u32 v{vWa[1]}, {8192+65536}, v{t1}""")
        for i in range(16): e(f"v_mov_b32 v{ACC+i}, 0")
    def loop35(NC, st0):
        def rd(c, s):
            slot = c % RING; b = c & 1
            off = (slot & 3)*16384
            e(f"""ds_read_b128 {vr(AF[b]+4*s,4)}, v{vAa[slot>>2]} offset:{off + s*1024}
            ds_read_b64_tr_b16 {vr(WF[b]+4*s,2)}, v{vWa[slot>>2]} offset:{off + s*2048}
            ds_read_b64_tr_b16 {vr(WF[b]+4*s+2,2)}, v{vWa[slot>>2]} offset:{off + s*2048 + 1024}""")
        def mm(c, s):
            b = c & 1
            e(f"v_mfma_f32_32x32x16_bf16 {vr(ACC,16)}, {vr(WF[b]+4*s,4)}, {vr(AF[b]+4*s,4)}, {vr(ACC,16)}")
        stamp(k, st0)
        e("s_barrier")
        stamp(k, st0+1)
        for s in range(4): rd(0, s)
        for c in range(NC):
            if c + 1 < NC:
                e(f"s_waitcnt lgkmcnt(0)\ns_barrier")
                for s in range(4):
                    mm(c, s); rd(c+1, s)
            else:
                e("s_waitcnt lgkmcnt(0)")
                for s in range(4): mm(c, s)
        stamp(k, st0+2)
    e(f"""s_lshl_b32 s{sT0}, s{sRb}, 6
    s_lshl_b32 s{sT1}, s{sTsub}, 5
    s_add_u32 s{sT0}, s{sT0}, s{sT1}
    v_add_u32 v{t0}, s{sT0}, v{vT}
    v_lshlrev_b32 v{t0}, 10, v{t0}
    v_lshlrev_b32 v{t1}, 3, v{vH}
    s_lshl_b32 s{sT0}, s{sCb}, 7
    s_lshl_b32 s{sT1}, s{sFsub}, 6
    s_add_u32 s{sT0}, s{sT0}, s{sT1}
    v_add_u32 v{t1}, s{sT0}, v{t1}
    v_add_u32 v{vRM}, v{t0}, v{t1}
""")
    srd(k, SX, 4, 2*MB)
    for g in range(4): e(f"buffer_load_dwordx2 {vr(RES+2*g,2)}, v{vRM}, s[{SX}:{SX+3}], 0 offen offset:{16*g}")
    addr35()
    e("s_barrier")
    loop35(8, 0)
    e("s_waitcnt vmcnt(0)")
    for i in range(8): unpack(EP+2*i, RES+i)
    for i in range(16): e(f"v_add_f32 v{ACC+i}, v{ACC+i}, v{EP+i}")
    for i in range(8): e(f"v_cvt_pk_bf16_f32 v{HRES+i}, v{ACC+2*i}, v{ACC+2*i+1}")
    hstore([f"buffer_store_dwordx4 {vr(HRES,4)}, v{vL16}, s[{SWS}:{SWS+3}], s{sHo} offen",
            f"buffer_store_dwordx4 {vr(HRES+4,4)}, v{vL16}, s[{SWS}:{SWS+3}], s{sHo} offen offset:1024"])
    e(f"v_add_f32 v{t0}, v{ACC}, v{ACC+1}\nv_mul_f32 v{t1}, v{ACC}, v{ACC}\nv_mul_f32 v{t2}, v{ACC+1}, v{ACC+1}")
    for i in range(2, 16):
        e(f"v_add_f32 v{t0}, v{t0}, v{ACC+i}\nv_fmac_f32 v{t1 + (i&1)}, v{ACC+i}, v{ACC+i}")
    e(f"""v_add_f32 v{t1}, v{t1}, v{t2}
    s_lshl_b32 s{sT0}, s{sCb}, 1
    s_add_u32 s{sT0}, s{sT0}, s{sFsub}
    v_permlane32_swap_b32 v{t0}, v{t1}
    s_lshl_b32 s{sT0}, s{sT0}, 11
    s_lshl_b32 s{sT1}, s{sRb}, 6
    v_add_f32 v{t0}, v{t0}, v{t1}
    s_add_u32 s{sT0}, s{sT0}, s{sT1}
    s_lshl_b32 s{sT1}, s{sTsub}, 5
    s_add_u32 s{sT0}, s{sT0}, s{sT1}
    s_lshl_b32 s{sT0}, s{sT0}, 3
    s_add_u32 s{sT0}, s{sT0}, {WS_ST}
    v_lshlrev_b32 v{t1}, 3, v{vT}
    v_lshl_add_u32 v{t1}, v{vH}, 2, v{t1}
""")
    hstore([f"buffer_store_dword v{t0}, v{t1}, s[{SWS}:{SWS+3}], s{sT0} offen"])
    e(f"""s_waitcnt vmcnt(0)
    s_barrier""")
    stamp(k, 3)
    e(f"""s_cmp_ge_u32 s{sJ}, 14
    s_cbranch_scc1 L_t_c5""")
    sTh, sFh = sA, sB_
    vWa4 = [[8, 9], [10, 11]]
    u0, u1, u2, u3 = 12, 13, 14, 15
    SEL = 16; CSA = [20, 24]
    ACC4 = 96; EP4 = 160; EB = 176; SL = 160; BL = 192; PK = 208 - 2
    PK = 206
    srd(k, SB, 14, 3584)
    e(f"""v_lshlrev_b32 v{u3}, 3, v{vH}
    s_lshl_b32 s{sT0}, s{sJ}, 8
    s_lshl_b32 s{sT1}, s{sFh}, 7
    s_add_u32 s{sT0}, s{sT0}, s{sT1}""")
    BL = 176
    BL = 190
    for fs in range(2):
        for g in range(4): e(f"buffer_load_dwordx2 {vr(BL+8*fs+2*g,2)}, v{u3}, s[{SB}:{SB+3}], s{sT0} offen offset:{64*fs + 16*g}")
    e(f"""s_lshl_b32 s{sT0}, s{sTh}, 12
    v_add_u32 v{vAa[0]}, s{sT0}, v{vL16}
    v_add_u32 v{vAa[1]}, 65536, v{vAa[0]}
    v_and_b32 v{u0}, 15, v{vLane}
    v_lshrrev_b32 v{u1}, 2, v{u0}
    v_lshl_add_u32 v{u2}, v{vH}, 2, v{u1}
    v_lshlrev_b32 v{u2}, 8, v{u2}
    v_bfe_u32 v{u3}, v{vLane}, 4, 1
    v_lshl_add_u32 v{u2}, v{u3}, 5, v{u2}
    v_and_b32 v{u3}, 3, v{u0}
    v_lshl_add_u32 v{u2}, v{u3}, 3, v{u2}
    s_lshl_b32 s{sT0}, s{sFh}, 1""")
    for fs in range(2):
        e(f"""s_add_u32 s{sT1}, s{sT0}, {fs}
        v_xor_b32 v{u3}, s{sT1}, v{u1}
        v_lshl_add_u32 v{u3}, v{u3}, 6, v{u2}
        v_add_u32 v{vWa4[fs][0]}, 8192, v{u3}
        v_add_u32 v{vWa4[fs][1]}, {8192+65536}, v{u3}""")
    e(f"""v_bfe_u32 v{u1}, v{vLane}, 4, 1
    v_cmp_eq_u32 vcc, v{u0}, v{u1}
    v_mov_b32 v{u0}, 0
    v_mov_b32 v{u1}, 0x3f803f80
    v_cndmask_b32 v{SEL}, v{u0}, v{u1}, vcc
    v_cndmask_b32 v{SEL+1}, v{u0}, v{u1}, vcc
    v_cndmask_b32 v{SEL+2}, v{u0}, v{u1}, vcc
    v_cndmask_b32 v{SEL+3}, v{u0}, v{u1}, vcc""")
    for i in range(8): e(f"v_mov_b32 v{CSA[0]+i}, 0")
    for i in range(64): e(f"v_mov_b32 v{ACC4+i}, 0")
    e(f"""s_lshl_b32 s{sT0}, s{sG}, 7
    s_lshl_b32 s{sT1}, s{sTh}, 6
    s_add_u32 s{sT0}, s{sT0}, s{sT1}
    s_lshl_b32 s{sT0}, s{sT0}, 3
    s_add_u32 s{sT0}, s{sT0}, {WS_ST}
    v_lshlrev_b32 v{u0}, 3, v{vT}
    v_lshl_add_u32 v{u0}, v{vH}, 17, v{u0}""")
    def rdA(c, s, ts):
        slot = c % RING; b = c & 1
        e(f"ds_read_b128 {vr(AF[b]+8*s+4*ts,4)}, v{vAa[slot>>2]} offset:{(slot&3)*16384 + ts*2048 + s*1024}")
    def rdW(c, s, fs):
        slot = c % RING; b = c & 1
        off = (slot & 3)*16384 + s*4096
        e(f"""ds_read_b64_tr_b16 {vr(WF[b]+8*s+4*fs,2)}, v{vWa4[fs][slot>>2]} offset:{off}
        ds_read_b64_tr_b16 {vr(WF[b]+8*s+4*fs+2,2)}, v{vWa4[fs][slot>>2]} offset:{off + 2048}""")
    def mm4(c, s, ts, fs):
        b = c & 1; a = ACC4 + 32*ts + 16*fs
        e(f"v_mfma_f32_32x32x16_bf16 {vr(a,16)}, {vr(WF[b]+8*s+4*fs,4)}, {vr(AF[b]+8*s+4*ts,4)}, {vr(a,16)}")
    def cs4(c, s, fs):
        b = c & 1
        e(f"v_mfma_f32_16x16x32_bf16 {vr(CSA[fs],4)}, {vr(WF[b]+8*s+4*fs,4)}, {vr(SEL,4)}, {vr(CSA[fs],4)}")
    stamp(k, 4)
    e("s_barrier")
    e("s_barrier")
    stamp(k, 5)
    for s in range(2):
        for x in range(2): rdA(0, s, x); rdW(0, s, x)
    SLr = [160, 174]
    NC = 16
    def stats_issue(ts):
        for j in range(8):
            e(f"s_add_u32 s{sT1}, s{sT0}, {j*16384}")
            e(f"buffer_load_dwordx2 {vr(160+2*j,2)}, v{u0}, s[{SWS}:{SWS+3}], s{sT1} offen offset:{256*ts} sc1")
    def stats_math(ts):
        b0 = 160
        e("s_waitcnt vmcnt(0)")
        for j in range(1, 8):
            e(f"v_add_f32 v{b0}, v{b0}, v{b0+2*j}\nv_add_f32 v{b0+1}, v{b0+1}, v{b0+2*j+1}")
        for q in range(2):
            e(f"""v_mov_b32 v{u1}, v{b0+q}
            s_nop 1
            v_permlane32_swap_b32 v{b0+q}, v{u1}
            s_nop 1
            v_add_f32 v{b0+q}, v{b0+q}, v{u1}""")
        e(f"""v_mul_f32 v{u1}, {1.0/512}, v{b0}
        v_mul_f32 v{u2}, {1.0/512}, v{b0+1}
        v_fma_f32 v{u2}, -v{u1}, v{u1}, v{u2}
        v_max_f32 v{u2}, 0, v{u2}
        v_add_f32 v{u2}, {1e-5}, v{u2}
        v_rsq_f32 v{PK+4*ts}, v{u2}
        s_nop 0
        v_mov_b32 v{PK+4*ts+1}, v{PK+4*ts}
        v_mul_f32 v{PK+4*ts+2}, v{u1}, v{PK+4*ts}
        v_sub_f32 v{PK+4*ts+2}, 0, v{PK+4*ts+2}
        v_mov_b32 v{PK+4*ts+3}, v{PK+4*ts+2}""")
    stats_issue(0)
    for c in range(NC):
        last = c + 1 >= NC
        if not last: e(f"s_waitcnt lgkmcnt(0)\ns_barrier")
        else: e("s_waitcnt lgkmcnt(0)")
        for s in range(2):
            mm4(c, s, 0, 0)
            if not last: rdA(c+1, s, 0)
            mm4(c, s, 1, 0)
            if not last: rdW(c+1, s, 0)
            cs4(c, s, 0)
            mm4(c, s, 0, 1)
            if not last: rdA(c+1, s, 1)
            mm4(c, s, 1, 1)
            if not last: rdW(c+1, s, 1)
            cs4(c, s, 1)
        if c == 4: stats_math(0); stats_issue(1)
        if c == 9: stats_math(1)
    SCR = 6*16384
    stamp(k, 6)
    e(f"""s_lshl_b32 s{sT0}, s{sWave}, 10
    s_add_u32 s{sT0}, s{sT0}, {SCR}
    v_and_b32 v{u0}, 15, v{vLane}
    v_lshrrev_b32 v{u1}, 4, v{vLane}
    v_lshlrev_b32 v{u1}, 4, v{u1}
    v_lshl_add_u32 v{u1}, v{u0}, 6, v{u1}
    v_add_u32 v{u1}, s{sT0}, v{u1}
    v_lshlrev_b32 v{u2}, 4, v{vH}
    v_add_u32 v{u2}, s{sT0}, v{u2}
    v_cmp_gt_u32 vcc, 2, v{u0}
    s_nop 4
    s_and_saveexec_b64 s[{sEx}:{sEx+1}], vcc
    ds_write_b128 v{u1}, {vr(CSA[0],4)}
    ds_write_b128 v{u1}, {vr(CSA[1],4)} offset:128
    s_mov_b64 exec, s[{sEx}:{sEx+1}]""")
    EPS = [160, 64]
    EB = 80
    for fs in range(2):
        for g in range(4): e(f"ds_read_b128 {vr(EPS[fs]+4*g,4)}, v{u2} offset:{128*fs + 32*g}")
    C0 = -2.0 * LOG2E * math.sqrt(2.0/math.pi)
    C1 = C0 * 0.044715
    CC = 16
    e(f"""v_mov_b32 v{CC}, {hex(f2u(C0))}
    v_mov_b32 v{CC+1}, {hex(f2u(C0))}
    v_mov_b32 v{CC+2}, {hex(f2u(C1))}
    v_mov_b32 v{CC+3}, {hex(f2u(C1))}
    v_mov_b32 v{CC+4}, 1.0
    v_mov_b32 v{CC+5}, 1.0""")
    TM = AF[0]
    for fs in range(2):
        for i in range(8): unpack(EB+2*i, BL+8*fs+i)
        if fs == 0: e("s_waitcnt lgkmcnt(0)")
        for ts in range(2):
            a = ACC4 + 32*ts + 16*fs
            tm = TM + 16*ts
            for i in range(0, 16, 2): e(f"v_pk_fma_f32 {p2(tm+i)}, {p2(PK+4*ts+2)}, {p2(EPS[fs]+i)}, {p2(EB+i)}")
            for i in range(0, 16, 2): e(f"v_pk_fma_f32 {p2(a+i)}, {p2(a+i)}, {p2(PK+4*ts)}, {p2(tm+i)}")
            for i in range(0, 16, 2): e(f"v_pk_mul_f32 {p2(tm+i)}, {p2(a+i)}, {p2(a+i)}")
            for i in range(0, 16, 2): e(f"v_pk_fma_f32 {p2(tm+i)}, {p2(tm+i)}, {p2(CC+2)}, {p2(CC)}")
            for i in range(0, 16, 2): e(f"v_pk_mul_f32 {p2(tm+i)}, {p2(tm+i)}, {p2(a+i)}")
            for i in range(16): e(f"v_exp_f32 v{tm+i}, v{tm+i}")
            for i in range(0, 16, 2): e(f"v_pk_add_f32 {p2(tm+i)}, {p2(tm+i)}, {p2(CC+4)}")
            for i in range(16): e(f"v_rcp_f32 v{tm+i}, v{tm+i}")
            for i in range(0, 16, 2): e(f"v_pk_mul_f32 {p2(a+i)}, {p2(a+i)}, {p2(tm+i)}")
            for i in range(8): e(f"v_cvt_pk_bf16_f32 v{a+i}, v{a+2*i}, v{a+2*i+1}")
            e(f"s_add_u32 s{sT1}, s{sGo}, {ts*112*1024 + fs*2048}")
            hstore([f"buffer_store_dwordx4 {vr(a,4)}, v{vL16}, s[{SWS}:{SWS+3}], s{sT1} offen",
                    f"buffer_store_dwordx4 {vr(a+4,4)}, v{vL16}, s[{SWS}:{SWS+3}], s{sT1} offen offset:1024"])
    stamp(k, 7)
    e("s_waitcnt vmcnt(0)\ns_barrier")
    stamp(k, 8)
    k.label("L_t_c5")
    srd(k, SB, 18, 1024); srd(k, SX, 20, 2*MB)
    e(f"""v_lshlrev_b32 v{t1}, 3, v{vH}
    s_lshl_b32 s{sT0}, s{sCb}, 7
    s_lshl_b32 s{sT1}, s{sFsub}, 6
    s_add_u32 s{sT0}, s{sT0}, s{sT1}""")
    for g in range(4): e(f"buffer_load_dwordx2 {vr(BIA+2*g,2)}, v{t1}, s[{SB}:{SB+3}], s{sT0} offen offset:{16*g}")
    addr35()
    e("s_barrier")
    loop35(28, 9)
    e("s_waitcnt vmcnt(0)")
    for i in range(8): unpack(EP+2*i, HRES+i)
    for i in range(8): unpack(AF[0]+2*i, BIA+i)
    for i in range(16): e(f"v_add_f32 v{EP+i}, v{EP+i}, v{AF[0]+i}")
    for i in range(16): e(f"v_add_f32 v{ACC+i}, v{ACC+i}, v{EP+i}")
    for i in range(8): e(f"v_cvt_pk_bf16_f32 v{EP+i}, v{ACC+2*i}, v{ACC+2*i+1}")
    for g in range(4): e(f"buffer_store_dwordx2 {vr(EP+2*g,2)}, v{vRM}, s[{SX}:{SX+3}], 0 offen offset:{16*g}")
    instr_end(k, 1, SWS, AF[0])
    e("s_endpgm")
    k.label("L_t_loader")
    vWo35, vWo4, vOne, vPoll = 5, 7, 8, 9
    e(f"""v_lshrrev_b32 v{t0}, 3, v{vLane}
    v_and_b32 v{t1}, 7, v{vLane}
    v_bfe_u32 v{t2}, v{t0}, 1, 1
    v_lshlrev_b32 v{t2}, 2, v{t2}
    v_xor_b32 v{t2}, v{t2}, v{t1}
    v_lshlrev_b32 v{t2}, 4, v{t2}
    s_lshl_b32 s{sT0}, s{sWave}, 4
    v_add_u32 v{t0}, s{sT0}, v{t0}
    v_lshl_add_u32 v{t2}, v{t0}, 10, v{t2}
    s_lshl_b32 s{sT1}, s{sCb}, 7
    v_add_u32 v{vWo35}, s{sT1}, v{t2}
    v_lshrrev_b32 v{t0}, 4, v{vLane}
    v_and_b32 v{t1}, 15, v{vLane}
    v_lshlrev_b32 v{t2}, 2, v{t0}
    v_xor_b32 v{t2}, v{t2}, v{t1}
    v_lshlrev_b32 v{t2}, 4, v{t2}
    s_lshl_b32 s{sT0}, s{sWave}, 3
    v_add_u32 v{t0}, s{sT0}, v{t0}
    v_mul_u32_u24 v{t0}, 3584, v{t0}
    v_add_u32 v{t2}, v{t2}, v{t0}
    s_lshl_b32 s{sT1}, s{sJ}, 8
    v_add_u32 v{vWo4}, s{sT1}, v{t2}
    v_mov_b32 v{vOne}, 1
    v_lshlrev_b32 v{vFl}, 2, v{t1}
    s_lshl_b32 s{sM0W}, s{sWave}, 11
    s_add_u32 s{sM0W}, s{sM0W}, 8192""")
    def setup35(KS, ACT, wlo):
        e(f"""s_lshl_b32 s{sA0}, s{sRb}, 1
        s_add_u32 s{sA0}, s{sA0}, s{sTsub}
        s_mul_i32 s{sA0}, s{sA0}, {KS}
        s_lshl_b32 s{sT0}, s{sFsub}, 1
        s_add_u32 s{sA0}, s{sA0}, s{sT0}
        s_lshl_b32 s{sA0}, s{sA0}, 10
        s_add_u32 s{sA0}, s{sA0}, {ACT}
        s_lshl_b32 s{sM0A}, s{sTsub}, 12
        s_lshl_b32 s{sT0}, s{sFsub}, 11
        s_add_u32 s{sM0A}, s{sM0A}, s{sT0}""")
        srd(k, SW, wlo, KS*16*1024)
    def dmaA(c, stride, sc):
        slot = c % RING
        e(f"""s_add_u32 m0, s{sM0A}, {slot*16384}
        s_add_u32 s{sOffA}, s{sA0}, {c*stride}
        buffer_load_dwordx4 v{vL16}, s[{SWS}:{SWS+3}], s{sOffA} offen{sc} lds
        buffer_load_dwordx4 v{vL16}, s[{SWS}:{SWS+3}], s{sOffA} offen offset:1024{sc} lds""")
    def dmaW(c, vo, cstride, half):
        slot = c % RING
        e(f"""s_add_u32 m0, s{sM0W}, {slot*16384}
        s_mov_b32 s{sOffW}, {c*cstride}
        buffer_load_dwordx4 v{vo}, s[{SW}:{SW+3}], s{sOffW} offen lds
        s_add_u32 m0, s{sM0W}, {slot*16384 + 1024}
        s_mov_b32 s{sOffW}, {c*cstride + half}
        buffer_load_dwordx4 v{vo}, s[{SW}:{SW+3}], s{sOffW} offen lds""")
    def stream(NC, fA, fW, preW):
        ops = []
        FIRST = 3 if preW == 0 else preW
        for c in range(FIRST):
            fA(c); ops += [c, c]
            if c >= preW: fW(c); ops += [c, c]
        issued = FIRST
        for c in range(NC):
            last = max(i for i, x in enumerate(ops) if x == c)
            e(f"s_waitcnt vmcnt({len(ops)-1-last})\ns_barrier")
            n = 0
            while issued < NC and issued < c + AHEAD and issued - (c-1) <= RING and n < 2:
                fA(issued); fW(issued); ops += [issued]*4; issued += 1; n += 1
    def signal_and_poll(base_lines, npoll, lbl):
        e(f"""s_cmp_lg_u32 s{sWave}, 0
        s_cbranch_scc1 {lbl}_x""")
        for l in base_lines: e(l)
        e(f"""v_min_u32 v{vFl}, {npoll-1}, v{vLane}
        v_lshlrev_b32 v{vFl}, 2, v{vFl}
        s_mov_b32 s{sCnt}, 0""")
        k.label(lbl)
        e(f"""buffer_load_dword v{vPoll}, v{vFl}, s[{SWS}:{SWS+3}], s{sT0} offen sc1
        s_add_u32 s{sCnt}, s{sCnt}, 1
        s_cmp_ge_u32 s{sCnt}, 0x100000
        s_cbranch_scc1 {lbl}_x
        s_waitcnt vmcnt(0)
        v_cmp_ne_u32 vcc, 1, v{vPoll}
        s_cbranch_vccz {lbl}_x
        s_sleep {int(PARAM.get('sleep', 2))}
        s_branch {lbl}""")
        k.label(lbl + "_x")
        e("s_barrier")
    def publish(base_lines, sidx, lbl, slow=False):
        e(f"""s_cmp_lg_u32 s{sWave}, 1
        s_cbranch_scc1 {lbl}""")
        for l in base_lines: e(l)
        e(f"""s_lshl_b32 s{sT1}, s{sidx}, 2
        s_add_u32 s{sT0}, s{sT0}, s{sT1}
        v_mov_b32 v{t0}, 0
        s_mov_b64 exec, 1""")
        if slow: e(f"buffer_store_dword v{vOne}, v{t0}, s[{SWS}:{SWS+3}], s{sT0} offen sc1")
        else: hstore([f"buffer_store_dword v{vOne}, v{t0}, s[{SWS}:{SWS+3}], s{sT0} offen"])
        e("s_mov_b64 exec, -1")
        k.label(lbl)
    def fbase(off): return [f"s_lshl_b32 s{sT0}, s{sG}, 12", f"s_add_u32 s{sT0}, s{sT0}, {WS_FLAG + off}"]
    f2base = [f"s_and_b32 s{sT0}, s2, 7", f"s_lshl_b32 s{sT0}, s{sT0}, 13", f"s_add_u32 s{sT0}, s{sT0}, {WS_FLAG + 1024}"]
    PRE = int(PARAM.get('pre', 4))
    setup35(32, WS_OF, 8)
    publish([f"s_lshr_b32 s{sT0}, s2, 5", f"s_lshl_b32 s{sT0}, s{sT0}, 13", f"s_add_u32 s{sT0}, s{sT0}, {WS_FLAG + 1024}"], 76, "L_t_pub2", slow=True)
    fW3 = lambda c: dmaW(c, vWo35, 65536, 8192)
    for c in range(PRE): fW3(c)
    stamp(k, 4)
    signal_and_poll(f2base, 32, "L_t_poll2")
    stamp(k, 5)
    e("s_waitcnt vmcnt(0)")
    stream(8, lambda c: dmaA(c, 4096, " sc1"), fW3, PRE)
    e(f"""s_cmp_ge_u32 s{sJ}, 14
    s_cbranch_scc1 L_t_l45""")
    srd(k, SW, 12, 512*3584)
    fW4 = lambda c: dmaW(c, vWo4, 32*3584, 4*3584)
    for c in range(PRE): fW4(c)
    e(f"""s_lshl_b32 s{sA0}, s{sG}, 2
    s_add_u32 s{sA0}, s{sA0}, s{sWave}
    s_lshl_b32 s{sA0}, s{sA0}, 15
    s_add_u32 s{sA0}, s{sA0}, {WS_HF}
    s_lshl_b32 s{sM0A}, s{sWave}, 11
    s_waitcnt vmcnt(0)
    s_barrier""")
    stamp(k, 0)
    publish(fbase(0), sJ, "L_t_pub3")
    signal_and_poll(fbase(0), 16, "L_t_poll3")
    stamp(k, 1)
    if gen.INSTR: e(f"s_mov_b32 s66, s{sCnt}")
    stream(16, lambda c: dmaA(c, 2048, " sc1"), fW4, PRE)
    setup35(112, WS_GF, 16)
    fW5 = lambda c: dmaW(c, vWo35, 65536, 8192)
    for c in range(PRE): fW5(c)
    e("s_waitcnt vmcnt(0)\ns_barrier")
    stamp(k, 2)
    publish(fbase(2048), sJ, "L_t_pub4")
    e("s_branch L_t_l5")
    k.label("L_t_l45")
    setup35(112, WS_GF, 16)
    for c in range(PRE): fW5(c)
    e("s_waitcnt vmcnt(0)\ns_barrier")
    publish(fbase(0), sJ, "L_t_pub3b")
    k.label("L_t_l5")
    signal_and_poll(fbase(2048), 14, "L_t_poll4")
    stamp(k, 3)
    if gen.INSTR: e(f"s_mov_b32 s67, s{sCnt}")
    stream(28, lambda c: dmaA(c, 4096, " sc1"), fW5, PRE)
    instr_end(k, 1, SWS, AF[0])
    k.label("L_t_end")
    e("s_endpgm")
    return k, (256, 512, LDS_MAIN)

def main():
    if "--instr" in sys.argv: gen.INSTR = True; sys.argv.remove("--instr")
    for a in list(sys.argv):
        if a.startswith("--exp="): EXP.update(a[6:].split(",")); sys.argv.remove(a)
        if a.startswith("--p="):
            for kv in a[4:].split(","): PARAM[kv.split(":")[0]] = kv.split(":")[1]
            sys.argv.remove(a)
    gen.ZERO_FLAGS1 = WS_FLAG
    ks = [gen_k1(), gen_main()]
    hdr = open("cdna_kernels/" + NAME + ".s.ref").read().split("; Override launch")[0]
    out = hdr
    for k, (g, b, lds) in ks:
        out += f"; @launch kernel={k.name} grid=({g},1,1) block=({b},1,1) lds={lds}\n"
    out += '.amdgcn_target "amdgcn-amd-amdhsa--gfx950"\n.text\n'
    for k, _ in ks: out += k.text()
    out += '.section .rodata,"a"\n'
    for k, _ in ks: out += k.kd()
    open(sys.argv[1] if len(sys.argv) > 1 else "out3.s", "w").write(out)

if __name__ == "__main__":
    main()
```

```python
import sys, math

NAME = "sequential_preLN__mha_block__dense_activation_gelu__prompt"
MB = 1 << 20
WS_QF, WS_KF, WS_VF, WS_KN, WS_OF, WS_HF, WS_GF = 0, 2*MB, 4*MB, 6*MB, 8*MB, 10*MB, 12*MB
WS_ST = 7*MB
WS_CS = 6*MB + 32768
WS_SIZE = 40*MB
LOG2E = 1.4426950408889634
QSCALE = 0.25 * LOG2E

def f2u(f):
    import struct
    return struct.unpack("<I", struct.pack("<f", f))[0]

class K:
    def __init__(self, name, vgprs, sgprs=102, agprs=0):
        self.name = name; self.lines = []; self.vgprs = vgprs; self.sgprs = sgprs; self.agprs = agprs
        self.lbl = 0
    def e(self, s):
        for l in s.strip("\n").split("\n"):
            self.lines.append("    " + l.strip())
    def label(self, l): self.lines.append(f"{l}:")
    def c(self, s): self.lines.append(f"    ; {s}")
    def text(self):
        return (f".globl {self.name}\n.p2align 8\n.type {self.name},@function\n{self.name}:\n" + "\n".join(self.lines) + "\n")
    def kd(self):
        acc = (self.vgprs + 3)//4*4
        nfv = acc + self.agprs if self.agprs else self.vgprs
        return f""".p2align 6
.amdhsa_kernel {self.name}
  .amdhsa_next_free_vgpr {nfv}
  .amdhsa_next_free_sgpr {self.sgprs}
  .amdhsa_accum_offset {acc}
  .amdhsa_group_segment_fixed_size 0
  .amdhsa_kernarg_size 88
  .amdhsa_user_sgpr_count 2
  .amdhsa_user_sgpr_kernarg_segment_ptr 1
  .amdhsa_system_sgpr_workgroup_id_x 1
.end_amdhsa_kernel
"""

INSTR = False
ZERO_FLAGS = None
ZERO_FLAGS1 = None
CODE_KB = 36
EXP = set()
PARAM = {}
WS_DBG = 32*MB
def instr_start(k):
    if not INSTR: return
    k.e("s_memtime s[88:89]\ns_memrealtime s[90:91]")
def sreg(n): return 60 + n if n < 15 else 96 + n - 15
def stamp(k, n):
    if not INSTR: return
    k.e(f"s_memtime s[86:87]\ns_waitcnt lgkmcnt(0)\ns_sub_u32 s{sreg(n)}, s86, s88")
    k.nstamps = max(getattr(k, 'nstamps', 0), n+1)
def instr_end(k, idx, sws, vtmp):
    if not INSTR: return
    a, b = vtmp, vtmp+1
    k.e(f"""s_waitcnt vmcnt(0) lgkmcnt(0)
    s_memtime s[92:93]
    s_memrealtime s[94:95]
    s_waitcnt lgkmcnt(0)
    s_sub_u32 s92, s92, s88
    v_lshrrev_b32 v{a}, 6, v0
    s_lshl_b32 s93, s2, 4
    v_add_u32 v{a}, s93, v{a}
    v_lshlrev_b32 v{a}, 4, v{a}
    v_add_u32 v{a}, {WS_DBG + idx*65536*4}, v{a}
    v_mov_b32 v{b}, s90
    buffer_store_dword v{b}, v{a}, s[{sws}:{sws+3}], 0 offen
    v_mov_b32 v{b}, s94
    buffer_store_dword v{b}, v{a}, s[{sws}:{sws+3}], 0 offen offset:4
    v_mov_b32 v{b}, s92
    buffer_store_dword v{b}, v{a}, s[{sws}:{sws+3}], 0 offen offset:8""")
    ns = getattr(k, 'nstamps', 0)
    if ns:
        k.e(f"""v_lshrrev_b32 v{a}, 6, v0
        v_add_u32 v{a}, s93, v{a}
        v_lshlrev_b32 v{a}, 7, v{a}
        v_add_u32 v{a}, {WS_DBG + 2*MB + idx*MB//2}, v{a}""")
        for i in range(ns):
            k.e(f"v_mov_b32 v{b}, s{sreg(i)}\nbuffer_store_dword v{b}, v{a}, s[{sws}:{sws+3}], 0 offen offset:{4*i}")

def vr(b, n): return f"v[{b}:{b+n-1}]"

def srd(k, d, lo, size):
    k.e(f"""s_mov_b32 s{d}, s{lo}
    s_and_b32 s{d+1}, s{lo+1}, 0xffff
    s_mov_b32 s{d+2}, {size}
    s_mov_b32 s{d+3}, 0x20000""")

def gen_k1():
    k = K("k1_qkv_kernel", vgprs=152)
    e = k.e
    SX, SW, SWS = 12, 16, 20
    sWave, sTsub, sP, sRb, sHg = 24, 25, 26, 27, 28
    sM0, sOffX, sOffW, sT0, sT1, sCC, sW0 = 30, 32, 33, 34, 35, 38, 39
    vLane, vT, vH = 1, 2, 3
    vXo = [4, 5]; vWo = 6
    vXa = [8, 9, 10, 11]; vWa = [12, 13]
    vOnes = 14
    vCsV = 15
    vTmp = [20, 21, 22, 23, 24, 25, 26, 27]
    XF = [28, 32]
    WF = [[36, 40, 44], [48, 52, 56]]
    ACC = [64, 80, 96]
    EP = 112
    CSA = [128, 132, 136]
    AB = 140
    SEL = 148
    NC = 8
    STAT = 32768 + 2*24576 + 8192
    SCR = 32768 + 2*24576
    e(f"""s_cmp_ge_u32 s2, 256
    s_cbranch_scc1 L_k1_end""")
    instr_start(k)
    e(f"""s_load_dwordx4 s[4:7], s[0:1], 0
    s_load_dwordx2 s[8:9], s[0:1], 80
    s_load_dwordx2 s[10:11], s[0:1], 32
    v_and_b32 v{vLane}, 63, v0
    v_lshrrev_b32 v{vTmp[0]}, 6, v0
    v_and_b32 v{vT}, 31, v0
    v_bfe_u32 v{vH}, v0, 5, 1
    v_readfirstlane_b32 s{sT1}, v{vTmp[0]}
    s_and_b32 s{sHg}, s2, 7
    s_lshr_b32 s{sRb}, s2, 3
    s_and_b32 s{sWave}, s{sT1}, 3
    s_and_b32 s{sTsub}, s{sWave}, 1
    s_lshr_b32 s{sP}, s{sWave}, 1
    s_cmp_ge_u32 s{sT1}, 4
    s_cbranch_scc1 L_k1_helper""")
    r, cp, t0, t1 = vTmp[0], vTmp[1], vTmp[2], vTmp[3]
    e(f"""s_lshl_b32 s{sT0}, s{sTsub}, 5
    v_add_u32 v{t0}, s{sT0}, v{vT}
    v_bfe_u32 v{t1}, v{t0}, 1, 3""")
    for s in range(4):
        e(f"""v_add_u32 v{r}, {2*s}, v{vH}
        v_xor_b32 v{r}, v{r}, v{t1}
        v_lshlrev_b32 v{r}, 4, v{r}
        v_lshl_add_u32 v{vXa[s]}, v{t0}, 7, v{r}""")
    e(f"""v_and_b32 v{t0}, 15, v{vLane}
    v_lshrrev_b32 v{t1}, 2, v{t0}
    v_lshl_add_u32 v{t1}, v{vH}, 3, v{t1}
    v_lshlrev_b32 v{t1}, 7, v{t1}
    v_lshrrev_b32 v{r}, 3, v{t0}
    v_xor_b32 v{r}, s{sP}, v{r}
    v_lshl_add_u32 v{t1}, v{r}, 6, v{t1}
    v_bfe_u32 v{r}, v{vLane}, 4, 1
    v_lshl_add_u32 v{t1}, v{r}, 5, v{t1}
    v_and_b32 v{r}, 3, v{t0}
    v_lshl_add_u32 v{t1}, v{r}, 3, v{t1}
    v_add_u32 v{vWa[0]}, 32768, v{t1}
    v_add_u32 v{vWa[1]}, {32768+49152}, v{t1}
    v_mov_b32 v{vOnes}, 0x3f803f80
    v_bfe_u32 v{t1}, v{vLane}, 4, 1
    v_cmp_eq_u32 vcc, v{t0}, v{t1}
    v_mov_b32 v{t0}, 0
    s_nop 1""")
    for i in range(4): e(f"v_cndmask_b32 v{SEL+i}, v{t0}, v{vOnes}, vcc")
    for i in range(12): e(f"v_mov_b32 v{128+i}, 0")
    for y in range(3):
        for i in range(16): e(f"v_mov_b32 v{ACC[y]+i}, 0")
    a0, a1, a2, a3 = vTmp[0], vTmp[1], vTmp[2], vTmp[3]
    vSt = vTmp[6]; vSt2 = vTmp[7]; a4 = vTmp[4]; a5 = vTmp[5]
    sTile = 40
    e(f"""s_lshl_b32 s{sT0}, s{sWave}, 10
    s_add_u32 s{sT0}, s{sT0}, {SCR}
    v_lshlrev_b32 v{a0}, 2, v{vT}
    s_lshl_b32 s{sT1}, s{sTsub}, 7
    s_add_u32 s{sT1}, s{sT1}, {STAT}
    v_add_u32 v{a4}, s{sT1}, v{a0}
    v_add_u32 v{a0}, s{sT0}, v{a0}
    v_lshlrev_b32 v{a1}, 4, v{vH}
    v_add_u32 v{a5}, s{sT1}, v{a1}
    v_add_u32 v{a1}, s{sT0}, v{a1}
    v_and_b32 v{a2}, 15, v{vLane}
    v_lshrrev_b32 v{a3}, 4, v{vLane}
    v_lshlrev_b32 v{a3}, 4, v{a3}
    v_lshl_add_u32 v{a3}, v{a2}, 6, v{a3}
    v_add_u32 v{a3}, s{sT0}, v{a3}
    v_cmp_gt_u32 s[36:37], 2, v{a2}
    s_lshl_b32 s{sTile}, s{sHg}, 2
    s_lshl_b32 s{sOffW}, s{sP}, 1
    s_add_u32 s{sTile}, s{sTile}, s{sOffW}
    s_lshl_b32 s{sTile}, s{sTile}, 6
    s_lshl_b32 s{sOffW}, s{sRb}, 1
    s_add_u32 s{sTile}, s{sTile}, s{sOffW}
    s_add_u32 s{sTile}, s{sTile}, s{sTsub}
    s_lshl_b32 s{sOffX}, s{sTile}, 10
    v_lshlrev_b32 v{vSt}, 4, v{vLane}
    v_lshrrev_b32 v{a2}, 4, v{vT}
    v_lshlrev_b32 v{a2}, 16, v{a2}
    v_lshl_add_u32 v{a2}, v{vH}, 8, v{a2}
    v_and_b32 v{vSt2}, 15, v{vT}
    v_lshl_add_u32 v{vSt2}, v{vSt2}, 4, v{a2}
    s_waitcnt lgkmcnt(0)""")
    srd(k, SWS, 8, WS_SIZE)
    def reads(c, s, b):
        slot = c % 4
        out = [f"ds_read_b128 {vr(XF[b],4)}, v{vXa[s]} offset:{slot*8192}"]
        for y in range(3):
            off = (slot & 1)*24576 + y*8192 + s*2048
            out.append(f"ds_read_b64_tr_b16 {vr(WF[b][y],2)}, v{vWa[slot>>1]} offset:{off}")
            out.append(f"ds_read_b64_tr_b16 {vr(WF[b][y]+2,2)}, v{vWa[slot>>1]} offset:{off+512}")
        return out
    bg = []
    def compute(b, ex):
        def x(n):
            for _ in range(n):
                if ex: e(ex.pop(0))
            for _ in range(2):
                if bg: e(bg.pop(0))
        e(f"v_mfma_f32_32x32x16_bf16 {vr(ACC[0],16)}, {vr(WF[b][0],4)}, {vr(XF[b],4)}, {vr(ACC[0],16)}"); x(3)
        e(f"v_mfma_f32_32x32x16_bf16 {vr(ACC[1],16)}, {vr(WF[b][1],4)}, {vr(XF[b],4)}, {vr(ACC[1],16)}"); x(3)
        e(f"v_mfma_f32_32x32x16_bf16 {vr(ACC[2],16)}, {vr(XF[b],4)}, {vr(WF[b][2],4)}, {vr(ACC[2],16)}"); x(1)
        e(f"v_mfma_f32_16x16x32_bf16 {vr(CSA[0],4)}, {vr(WF[b][0],4)}, {vr(SEL,4)}, {vr(CSA[0],4)}")
        e(f"v_mfma_f32_16x16x32_bf16 {vr(CSA[1],4)}, {vr(WF[b][1],4)}, {vr(SEL,4)}, {vr(CSA[1],4)}")
        e(f"v_mfma_f32_16x16x32_bf16 {vr(CSA[2],4)}, {vr(WF[b][2],4)}, {vr(SEL,4)}, {vr(CSA[2],4)}")
        assert not ex
    if ZERO_FLAGS1 is not None and 'nocodepf' not in EXP:
        e(f"""s_lshr_b32 s{sT0}, s2, 3
        s_cmp_ge_u32 s{sT0}, {CODE_KB//4}
        s_cbranch_scc1 L_k1_npf
        s_lshl_b32 s{sT0}, s{sT0}, 2
        s_add_u32 s{sT0}, s{sT0}, s{sWave}
        s_lshl_b32 s{sT0}, s{sT0}, 10
        s_getpc_b64 s[42:43]""")
        k.label("L_k1_pc")
        e(f"""s_sub_u32 s42, s42, L_k1_pc-k1_qkv_kernel
        s_subb_u32 s43, s43, 0
        s_add_u32 s42, s42, s{sT0}
        s_addc_u32 s43, s43, 0
        global_load_dwordx4 {vr(EP,4)}, v{vSt}, s[42:43]""")
        k.label("L_k1_npf")
    if ZERO_FLAGS1 is not None:
        e(f"""s_cmp_ge_u32 s2, 16
        s_cbranch_scc1 L_k1_nz
        s_lshl_b32 s{sT0}, s2, 2
        s_add_u32 s{sT0}, s{sT0}, s{sWave}
        s_lshl_b32 s{sT0}, s{sT0}, 10
        s_add_u32 s{sT0}, s{sT0}, {ZERO_FLAGS1}
        buffer_store_dwordx4 {vr(ACC[0],4)}, v{vSt}, s[{SWS}:{SWS+3}], s{sT0} offen""")
        k.label("L_k1_nz")
    stamp(k, 2)
    e("s_barrier")
    stamp(k, 3)
    for l in reads(0, 0, 0): e(l)
    CSJ = False
    CW, CA, CU, CT = 152, 160, 168, 170
    if CSJ:
        srd(k, SX, 10, 512*3584)
        e(f"""s_lshl_b32 s{sT0}, s{sWave}, 7
        v_add_u32 v{CT}, s{sT0}, v{vLane}
        v_mul_u32_u24 v{CT}, 3584, v{CT}
        s_lshl_b32 s{sT0}, s2, 4
        s_add_u32 s{sT1}, s{sT0}, {64*3584}
        buffer_load_dwordx4 {vr(CW,4)}, v{CT}, s[{SX}:{SX+3}], s{sT0} offen
        buffer_load_dwordx4 {vr(CW+4,4)}, v{CT}, s[{SX}:{SX+3}], s{sT1} offen""")
    step = 0
    for c in range(NC):
        if CSJ and c == 6:
            e("s_waitcnt vmcnt(0)")
            for i in range(4):
                bg.extend([f"v_lshlrev_b32 v{CA+2*i}, 16, v{CW+i}", f"v_and_b32 v{CA+2*i+1}, 0xffff0000, v{CW+i}",
                           f"v_lshlrev_b32 v{CU}, 16, v{CW+4+i}", f"v_and_b32 v{CU+1}, 0xffff0000, v{CW+4+i}",
                           f"v_add_f32 v{CA+2*i}, v{CA+2*i}, v{CU}", f"v_add_f32 v{CA+2*i+1}, v{CA+2*i+1}, v{CU+1}"])
            for ctl in ("row_shr:1 row_mask:0xf bank_mask:0xf", "row_shr:2 row_mask:0xf bank_mask:0xf", "row_shr:4 row_mask:0xf bank_mask:0xf",
                        "row_shr:8 row_mask:0xf bank_mask:0xf", "row_bcast:15 row_mask:0xa bank_mask:0xf", "row_bcast:31 row_mask:0xc bank_mask:0xf"):
                bg.extend([f"v_add_f32_dpp v{CA+i}, v{CA+i}, v{CA+i} {ctl}" for i in range(8)])
        for s in range(4):
            b = step & 1
            if s < 3:
                e("s_waitcnt lgkmcnt(0)")
                compute(b, reads(c, s+1, b ^ 1))
            elif c + 1 < NC:
                e("s_waitcnt lgkmcnt(0)\ns_barrier")
                stamp(k, 4+c)
                compute(b, reads(c+1, 0, b ^ 1))
            else:
                e("s_waitcnt lgkmcnt(0)\ns_barrier")
                compute(b, [])
            step += 1
    assert not bg
    if CSJ:
        e(f"""s_cmp_ge_u32 s2, 224
        s_cbranch_scc1 L_k1_ncs
        s_mul_i32 s{sT0}, s{sWave}, {1792*4}
        s_lshl_b32 s{sT1}, s2, 5
        s_add_u32 s{sT0}, s{sT0}, s{sT1}
        s_add_u32 s{sT0}, s{sT0}, {WS_CS}
        v_mov_b32 v{CT}, 0
        s_mov_b32 exec_lo, 0
        s_mov_b32 exec_hi, 0x80000000
        buffer_store_dwordx4 {vr(CA,4)}, v{CT}, s[{SWS}:{SWS+3}], s{sT0} offen
        buffer_store_dwordx4 {vr(CA+4,4)}, v{CT}, s[{SWS}:{SWS+3}], s{sT0} offen offset:16
        s_mov_b64 exec, -1""")
        k.label("L_k1_ncs")
    stamp(k, 11)
    def p2(r): return f"v[{r}:{r+1}]"
    e(f"""ds_read_b32 v{AB}, v{a4}
    ds_read_b32 v{AB+2}, v{a4} offset:256""")
    AV = XF[0]
    for g in range(4): e(f"ds_read_b128 {vr(AV+4*g,4)}, v{a5} offset:{32*g}")
    for g in range(4): e(f"ds_read_b128 {vr(AV+16+4*g,4)}, v{a5} offset:{256+32*g}")
    e(f"""s_mov_b64 exec, s[36:37]
    ds_write_b128 v{a3}, {vr(CSA[0],4)}
    ds_write_b128 v{a3}, {vr(CSA[1],4)} offset:128
    ds_write_b128 v{a3}, {vr(CSA[2],4)} offset:256
    s_mov_b64 exec, -1
    ds_read_b32 v{vCsV}, v{a0} offset:256
    s_waitcnt lgkmcnt(12)
    v_mov_b32 v{AB+1}, v{AB}
    v_mov_b32 v{AB+3}, v{AB+2}
    v_mul_f32 v{AB+4}, {QSCALE}, v{AB}
    v_mul_f32 v{AB+5}, {QSCALE}, v{AB}
    v_mul_f32 v{AB+6}, {QSCALE}, v{AB+2}
    v_mul_f32 v{AB+7}, {QSCALE}, v{AB+2}""")
    CS2 = 128 - 16
    for g in range(4): e(f"ds_read_b128 {vr(EP+4*g,4)}, v{a1} offset:{32*g}")
    e(f"s_waitcnt lgkmcnt(4)\nv_mov_b32 v{vOnes}, v{vCsV}")
    for i in range(0, 16, 2):
        e(f"v_pk_mul_f32 {p2(AV+16+i)}, {p2(AV+16+i)}, {p2(vOnes)}")
        e(f"v_pk_fma_f32 {p2(ACC[2]+i)}, {p2(ACC[2]+i)}, {p2(AV+i)}, {p2(AV+16+i)}")
    for i in range(8): e(f"v_cvt_pk_bf16_f32 v{ACC[2]+i}, v{ACC[2]+2*i}, v{ACC[2]+2*i+1}")
    for g in range(4): e(f"ds_read_b128 {vr(AV+4*g,4)}, v{a1} offset:{128+32*g}")
    e(f"""s_add_u32 s{sOffW}, s{sOffX}, {WS_VF}
    buffer_store_dwordx4 {vr(ACC[2],4)}, v{vSt2}, s[{SWS}:{SWS+3}], s{sOffW} offen
    buffer_store_dwordx4 {vr(ACC[2]+4,4)}, v{vSt2}, s[{SWS}:{SWS+3}], s{sOffW} offen offset:512
    s_waitcnt lgkmcnt(0)""")
    for y in (1, 0):
        cs = AV if y == 1 else EP
        pa, pb = (AB, AB+2) if y == 1 else (AB+4, AB+6)
        for i in range(0, 16, 2):
            e(f"v_pk_mul_f32 {p2(cs+i)}, {p2(cs+i)}, {p2(pb)}")
            e(f"v_pk_fma_f32 {p2(ACC[y]+i)}, {p2(ACC[y]+i)}, {p2(pa)}, {p2(cs+i)}")
        for i in range(8): e(f"v_cvt_pk_bf16_f32 v{ACC[y]+i}, v{ACC[y]+2*i}, v{ACC[y]+2*i+1}")
        base = WS_QF if y == 0 else WS_KF
        e(f"""s_add_u32 s{sOffW}, s{sOffX}, {base}
        buffer_store_dwordx4 {vr(ACC[y],4)}, v{vSt}, s[{SWS}:{SWS+3}], s{sOffW} offen
        s_add_u32 s{sOffW}, s{sOffX}, {base + 65536}
        buffer_store_dwordx4 {vr(ACC[y]+4,4)}, v{vSt}, s[{SWS}:{SWS+3}], s{sOffW} offen""")
    n0, n1 = 16, 17
    e(f"v_mov_b32 v{n0}, 0\nv_mov_b32 v{n1}, 0")
    for i in range(4):
        e(f"v_dot2_f32_bf16 v{n0}, v{ACC[1]+i}, v{ACC[1]+i}, v{n0}")
        e(f"v_dot2_f32_bf16 v{n1}, v{ACC[1]+4+i}, v{ACC[1]+4+i}, v{n1}")
    e(f"""s_nop 3
    v_permlane32_swap_b32 v{n0}, v{n1}
    s_nop 1
    v_add_f32 v{n0}, v{n0}, v{n1}
    s_nop 1
    v_max_f32_dpp v{n0}, v{n0}, v{n0} row_shr:1 row_mask:0xf bank_mask:0xf
    s_nop 1
    v_max_f32_dpp v{n0}, v{n0}, v{n0} row_shr:2 row_mask:0xf bank_mask:0xf
    s_nop 1
    v_max_f32_dpp v{n0}, v{n0}, v{n0} row_shr:4 row_mask:0xf bank_mask:0xf
    s_nop 1
    v_max_f32_dpp v{n0}, v{n0}, v{n0} row_shr:8 row_mask:0xf bank_mask:0xf
    s_nop 1
    v_max_f32_dpp v{n0}, v{n0}, v{n0} row_bcast:15 row_mask:0xa bank_mask:0xf
    v_lshlrev_b32 v{n1}, 8, v{vH}
    s_lshl_b32 s{sOffW}, s{sTile}, 2
    s_add_u32 s{sOffW}, s{sOffW}, {WS_KN}
    s_mov_b32 exec_lo, 0x80000000
    s_mov_b32 exec_hi, 0x80000000
    buffer_store_dword v{n0}, v{n1}, s[{SWS}:{SWS+3}], s{sOffW} offen
    s_mov_b64 exec, -1""")
    stamp(k, 12)
    instr_end(k, 0, SWS, EP)
    e("s_endpgm")
    k.label("L_k1_helper")
    e(f"""v_lshrrev_b32 v{r}, 3, v{vLane}
    v_and_b32 v{cp}, 7, v{vLane}
    s_lshl_b32 s{sT0}, s{sRb}, 6
    s_lshl_b32 s{sT1}, s{sWave}, 4
    s_add_u32 s{sT0}, s{sT0}, s{sT1}
    s_add_u32 s{sCC}, s{sHg}, s{sRb}""")
    rot = PARAM.get('rot', 'both')
    if rot == 'none': e(f"s_mov_b32 s{sCC}, 0")
    if rot == 'hg': e(f"s_mov_b32 s{sCC}, s{sHg}")
    if rot == 'rb2': e(f"s_and_b32 s{sCC}, s{sRb}, 1\ns_lshl_b32 s{sCC}, s{sCC}, 2\ns_add_u32 s{sCC}, s{sCC}, s{sHg}")
    for par in range(2):
        e(f"""v_lshrrev_b32 v{t0}, 1, v{r}
        v_add_u32 v{t0}, {4*par}, v{t0}
        v_xor_b32 v{t0}, v{t0}, v{cp}
        v_lshlrev_b32 v{t0}, 4, v{t0}
        v_add_u32 v{t1}, {8*par}, v{r}
        v_add_u32 v{t1}, s{sT0}, v{t1}
        v_lshl_add_u32 v{vXo[par]}, v{t1}, 10, v{t0}""")
    e(f"""v_bfe_u32 v{t0}, v{r}, 1, 1
    v_lshlrev_b32 v{t0}, 2, v{t0}
    v_xor_b32 v{t0}, v{t0}, v{cp}
    v_lshlrev_b32 v{t0}, 4, v{t0}
    v_add_u32 v{t1}, s{sT1}, v{r}
    v_mul_u32_u24 v{t1}, 3072, v{t1}
    v_add_u32 v{t0}, v{t0}, v{t1}
    s_lshl_b32 s{sT1}, s{sHg}, 7
    v_add_u32 v{vWo}, s{sT1}, v{t0}
    s_lshl_b32 s{sM0}, s{sWave}, 11
    s_waitcnt lgkmcnt(0)""")
    srd(k, SX, 4, 2*MB); srd(k, SW, 6, 512*3072)
    def dma_chunk(c):
        slot = c % 4
        out = [f"s_and_b32 s{sCC}, s{sCC}, 7",
               f"s_lshl_b32 s{sOffX}, s{sCC}, 7",
               f"s_mul_i32 s{sW0}, s{sCC}, {64*3072}"]
        for par in range(2):
            out += [f"s_add_u32 m0, s{sM0}, {slot*8192 + par*1024}",
                    f"s_nop 0",
                    f"buffer_load_dwordx4 v{vXo[par]}, s[{SX}:{SX+3}], s{sOffX} offen lds"]
            for y in range(3):
                out += [f"s_add_u32 m0, s{sM0}, {32768 + slot*24576 + y*8192 + par*1024}",
                        f"s_add_u32 s{sOffW}, s{sW0}, {y*1024 + par*8*3072}",
                        f"buffer_load_dwordx4 v{vWo}, s[{SW}:{SW+3}], s{sOffW} offen lds"]
        out.append(f"s_add_u32 s{sCC}, s{sCC}, 1")
        for l in out: e(l)
    FIRST = int(PARAM.get('first1', 2))
    for c in range(FIRST): dma_chunk(c)
    issued = FIRST
    vSa = 8; SD = 28; ST = [16, 17, 18, 19]; UN = [40, 41, 42, 43]
    e(f"""v_lshlrev_b32 v{vSa}, 5, v{vLane}
    v_add_u32 v{vSa}, s{sM0}, v{vSa}""")
    for i in range(4): e(f"v_mov_b32 v{ST[i]}, 0")
    for c in range(NC):
        e(f"s_waitcnt vmcnt({8*(issued-1-c)})\ns_barrier")
        slot = c % 4
        e(f"""ds_read_b128 {vr(SD,4)}, v{vSa} offset:{slot*8192}
        ds_read_b128 {vr(SD+4,4)}, v{vSa} offset:{slot*8192+16}""")
        n = 0
        n0 = len(k.lines)
        while issued < NC and issued - (c-1) <= 4 and n < (2 if c == 0 else 1):
            dma_chunk(issued); issued += 1; n += 1
        dl = k.lines[n0:]; del k.lines[n0:]
        va = []
        for i in range(8):
            lo, hi = UN[2*(i&1)], UN[2*(i&1)+1]
            va.append([f"v_lshlrev_b32 v{lo}, 16, v{SD+i}", f"v_and_b32 v{hi}, 0xffff0000, v{SD+i}", f"v_add_f32 v{ST[0]}, v{ST[0]}, v{lo}",
                       f"v_add_f32 v{ST[1]}, v{ST[1]}, v{hi}", f"v_fmac_f32 v{ST[2]}, v{lo}, v{lo}", f"v_fmac_f32 v{ST[3]}, v{hi}, v{hi}"])
        nld = 0; waited = False
        for l in dl:
            k.lines.append(l)
            if "buffer_load" in l:
                nld += 1
                if nld >= 2 and va:
                    if not waited: e("s_waitcnt lgkmcnt(0)"); waited = True
                    for x_ in va.pop(0): e(x_)
        if not waited: e("s_waitcnt lgkmcnt(0)")
        for grp in va:
            for x_ in grp: e(x_)
    e(f"""v_add_f32 v{ST[0]}, v{ST[0]}, v{ST[1]}
    v_add_f32 v{ST[2]}, v{ST[2]}, v{ST[3]}
    s_nop 1
    v_add_f32_dpp v{ST[0]}, v{ST[0]}, v{ST[0]} quad_perm:[1,0,3,2] row_mask:0xf bank_mask:0xf
    v_add_f32_dpp v{ST[2]}, v{ST[2]}, v{ST[2]} quad_perm:[1,0,3,2] row_mask:0xf bank_mask:0xf
    s_nop 1
    v_add_f32_dpp v{ST[0]}, v{ST[0]}, v{ST[0]} quad_perm:[2,3,0,1] row_mask:0xf bank_mask:0xf
    v_add_f32_dpp v{ST[2]}, v{ST[2]}, v{ST[2]} quad_perm:[2,3,0,1] row_mask:0xf bank_mask:0xf
    s_nop 0
    v_mul_f32 v{ST[0]}, {1.0/512}, v{ST[0]}
    v_mul_f32 v{ST[2]}, {1.0/512}, v{ST[2]}
    v_fma_f32 v{ST[2]}, -v{ST[0]}, v{ST[0]}, v{ST[2]}
    v_max_f32 v{ST[2]}, 0, v{ST[2]}
    v_add_f32 v{ST[2]}, {1e-5}, v{ST[2]}
    v_rsq_f32 v{ST[1]}, v{ST[2]}
    v_lshrrev_b32 v{t0}, 2, v{vLane}
    v_lshlrev_b32 v{t0}, 2, v{t0}
    s_lshl_b32 s{sT0}, s{sWave}, 6
    s_add_u32 s{sT0}, s{sT0}, {STAT}
    v_add_u32 v{t0}, s{sT0}, v{t0}
    v_mul_f32 v{ST[3]}, v{ST[0]}, v{ST[1]}
    v_sub_f32 v{ST[3]}, 0, v{ST[3]}
    ds_write_b32 v{t0}, v{ST[1]}
    ds_write_b32 v{t0}, v{ST[3]} offset:256
    s_waitcnt lgkmcnt(0)
    s_barrier""")
    k.label("L_k1_end")
    e("s_endpgm")
    return k, (256, 512, 131072)

VST = 1040
def gen_k2():
    k = K("k2_attn_kernel", vgprs=128)
    e = k.e
    SWS = 12
    sWave, sHead, sQt, sT0, sT1, sOff, sLoop, sPass = 16, 17, 18, 19, 20, 21, 22, 23
    sG0, sM0, sM0V = 26, 27, 28
    SPF = 32
    vLane, vL16, vKa, vVa, vVb, vT0, vT1, vT2, vT3 = 1, 2, 3, 4, 5, 6, 7, 44, 45
    QF = 8
    KF = [12, 16]
    VF = [20, 28]
    P2 = [36, 112]
    S = [48, 64]
    O = 80
    CI = 96
    PFD = 120
    e(f"""s_cmp_ge_u32 s2, 256
    s_cbranch_scc1 L_k2_end""")
    instr_start(k)
    e(f"""s_load_dwordx2 s[8:9], s[0:1], 80
    s_load_dwordx2 s[36:37], s[0:1], 16
    s_load_dwordx2 s[38:39], s[0:1], 32
    s_load_dwordx2 s[40:41], s[0:1], 48
    v_and_b32 v{vLane}, 63, v0
    v_lshrrev_b32 v{vT0}, 6, v0
    v_lshlrev_b32 v{vL16}, 4, v{vLane}
    v_readfirstlane_b32 s{sWave}, v{vT0}
    s_and_b32 s{sHead}, s2, 7
    s_lshl_b32 s{sHead}, s{sHead}, 2
    s_bfe_u32 s{sT0}, s2, 0x20003
    s_add_u32 s{sHead}, s{sHead}, s{sT0}
    s_lshr_b32 s{sQt}, s2, 5
    s_lshl_b32 s{sQt}, s{sQt}, 3
    s_add_u32 s{sQt}, s{sQt}, s{sWave}
    s_lshl_b32 s{sG0}, s{sHead}, 16
    s_lshl_b32 s{sM0}, s{sWave}, 10
    s_add_u32 s{sG0}, s{sG0}, s{sM0}
    s_mul_i32 s{sM0V}, s{sWave}, {VST}
    s_lshl_b32 s{sT0}, s{sHead}, 6
    s_add_u32 s{sT1}, s{sT0}, s{sQt}
    s_lshl_b32 s{sT1}, s{sT1}, 10
    v_lshlrev_b32 v{vT0}, 2, v{vLane}
    s_waitcnt lgkmcnt(0)""")
    srd(k, SWS, 8, WS_SIZE)
    def dma(p, y):
        if y == 0: e(f"s_add_u32 m0, s{sM0}, {p*8192}")
        else: e(f"s_add_u32 m0, s{sM0V}, {65536 + p*8*VST}")
        e(f"""s_add_u32 s{sOff}, s{sG0}, {(WS_KF if y == 0 else WS_VF) + p*8192}
        buffer_load_dwordx4 v{vL16}, s[{SWS}:{SWS+3}], s{sOff} offen lds""")
    e(f"""buffer_load_dwordx4 {vr(QF,4)}, v{vL16}, s[{SWS}:{SWS+3}], s{sT1} offen
    s_lshl_b32 s{sT1}, s{sT0}, 2
    s_add_u32 s{sT1}, s{sT1}, {WS_KN}
    buffer_load_dword v{vT1}, v{vT0}, s[{SWS}:{SWS+3}], s{sT1} offen""")
    dma(0, 0); dma(0, 1); dma(1, 0); dma(1, 1)
    e(f"""v_mov_b32 v{PFD}, 0x3f803f80
    v_mov_b32 v{PFD+1}, 0x3f803f80
    v_mov_b32 v{PFD+2}, 0x3f803f80
    v_mov_b32 v{PFD+3}, 0x3f803f80
    v_mul_u32_u24 v{vT2}, {VST}, v{vLane}
    v_add_u32 v{vT2}, {65536+1024}, v{vT2}
    ds_write_b128 v{vT2}, {vr(PFD,4)}""")
    e(f"""v_bfe_u32 v{vT0}, v{vLane}, 5, 1
    v_and_b32 v{vT2}, 15, v{vLane}
    v_lshlrev_b32 v{vT2}, 4, v{vT2}
    v_lshl_add_u32 v{vT2}, v{vT0}, 8, v{vT2}
    v_add_u32 v{vT2}, 65536, v{vT2}
    v_add_u32 v{vT3}, 512, v{vT2}
    v_bfe_u32 v{vT0}, v{vLane}, 4, 1
    v_cmp_eq_u32 vcc, 1, v{vT0}
    v_mov_b32 v{vT0}, {65536+1024}
    s_nop 0
    v_cndmask_b32 v{vT2}, v{vT2}, v{vT0}, vcc
    v_cndmask_b32 v{vT3}, v{vT3}, v{vT0}, vcc""")
    e(f"""s_waitcnt vmcnt(4)
    v_mov_b32 v{vT0}, 0
    v_max_f32_dpp v{vT1}, v{vT1}, v{vT1} row_shr:1 row_mask:0xf bank_mask:0xf
    v_dot2_f32_bf16 v{vT0}, v{QF}, v{QF}, v{vT0}
    v_dot2_f32_bf16 v{vT0}, v{QF+1}, v{QF+1}, v{vT0}
    v_max_f32_dpp v{vT1}, v{vT1}, v{vT1} row_shr:2 row_mask:0xf bank_mask:0xf
    v_dot2_f32_bf16 v{vT0}, v{QF+2}, v{QF+2}, v{vT0}
    v_dot2_f32_bf16 v{vT0}, v{QF+3}, v{QF+3}, v{vT0}
    v_max_f32_dpp v{vT1}, v{vT1}, v{vT1} row_shr:4 row_mask:0xf bank_mask:0xf
    s_nop 1
    v_max_f32_dpp v{vT1}, v{vT1}, v{vT1} row_shr:8 row_mask:0xf bank_mask:0xf
    s_nop 1
    v_max_f32_dpp v{vT1}, v{vT1}, v{vT1} row_bcast:15 row_mask:0xa bank_mask:0xf
    s_nop 1
    v_max_f32_dpp v{vT1}, v{vT1}, v{vT1} row_bcast:31 row_mask:0xc bank_mask:0xf
    v_mov_b32 v{CI}, v{vT0}
    s_nop 1
    v_readlane_b32 s{sT0}, v{vT1}, 63
    v_permlane32_swap_b32 v{vT0}, v{CI}
    s_nop 1
    v_add_f32 v{vT0}, v{vT0}, v{CI}
    v_mul_f32 v{vT0}, s{sT0}, v{vT0}
    v_sqrt_f32 v{vT0}, v{vT0}
    s_nop 0
    v_sub_f32 v{vT0}, 0, v{vT0}
    s_mov_b32 s{sPass}, 0""")
    def init_pass():
        for i in range(16): e(f"v_mov_b32 v{CI+i}, v{vT0}")
        for i in range(16): e(f"v_mov_b32 v{O+i}, 0")
        for i in range(4): e(f"v_mov_b32 v{P2[1]+4+i}, 0")
        for i in range(4): e(f"v_mov_b32 v{VF[1]+4+i}, 0")
        e(f"""v_mov_b32 v{vKa}, v{vL16}
        v_mov_b32 v{vVa}, v{vT2}
        v_mov_b32 v{vVb}, v{vT3}
        s_mov_b32 s{sLoop}, 0""")
    init_pass()
    e(f"""s_waitcnt vmcnt(2) lgkmcnt(0)
    s_barrier""")
    stamp(k, 0)
    def rdK(i):
        if 'nolds' in EXP and i >= 2: return
        e(f"ds_read_b128 {vr(KF[i&1],4)}, v{vKa} offset:{i*1024}")
    def rdVa(i):
        if 'nolds' in EXP and i >= 2: return
        e(f"ds_read_b128 {vr(VF[i&1],4)}, v{vVa} offset:{i*VST}")
    def rdVb(i):
        if 'nolds' in EXP and i >= 2: return
        e(f"ds_read_b128 {vr(VF[i&1]+4,4)}, v{vVb} offset:{i*VST}")
    def qk(i): e(f"v_mfma_f32_32x32x16_bf16 {vr(S[i&1],16)}, {vr(KF[i&1],4)}, {vr(QF,4)}, {vr(CI,16)}")
    def tile(i, extra=None):
        s = S[i & 1]; pc = P2[i & 1]; pp = P2[(i+1) & 1]
        extra = list(extra or [])
        def x():
            if extra: e(extra.pop(0))
        e(f"v_exp_f32 v{s}, v{s}")
        e(f"v_exp_f32 v{s+1}, v{s+1}")
        e(f"v_mfma_f32_32x32x16_bf16 {vr(O,16)}, {vr(VF[(i+1)&1]+4,4)}, {vr(pp+4,4)}, {vr(O,16)}")
        for j in range(2, 16):
            e(f"v_exp_f32 v{s+j}, v{s+j}")
            if j == 5: e("s_waitcnt lgkmcnt(1)")
            if j == 8: rdVa(i+1)
            if j == 10: rdK(i+2)
            if j == 14: rdVb(i+1)
            if j in (2, 3, 4): x()
            if j >= 3 and j % 2 == 1: e(f"v_cvt_pk_bf16_f32 v{pc+(j-3)//2}, v{s+j-3}, v{s+j-2}")
            if j == 6: qk(i+1)
            if j == 12: e(f"v_mfma_f32_32x32x16_bf16 {vr(O,16)}, {vr(VF[i&1],4)}, {vr(pc,4)}, {vr(O,16)}")
        e("s_waitcnt lgkmcnt(3)")
        e(f"v_cvt_pk_bf16_f32 v{pc+7}, v{s+14}, v{s+15}")
        while extra: x()
    def pipe_pro():
        rdK(0); rdVa(0); rdK(1); rdVb(0)
        e("s_waitcnt lgkmcnt(3)")
        qk(0)
        e("s_nop 7\ns_nop 7")
    def dma_lines(p, y):
        n0 = len(k.lines); dma(p, y); l = k.lines[n0:]; del k.lines[n0:]; return [x.strip() for x in l]
    pipe_pro()
    pf = []
    for i in range(16):
        if i == 6:
            e("s_waitcnt vmcnt(6)\ns_barrier")
        if i == 14:
            e("s_waitcnt vmcnt(0)\ns_barrier")
        ex = []
        if i < 12: ex = dma_lines(2 + i//2, i & 1)
        tile(i, ex)
    e(f"""v_add_u32 v{vKa}, 16384, v{vKa}
    v_add_u32 v{vVa}, {16*VST}, v{vVa}
    v_add_u32 v{vVb}, {16*VST}, v{vVb}
    s_mov_b32 s{sLoop}, 1""")
    if 'nopf' not in EXP:
        e(f"""s_lshl_b32 s{sT0}, s2, 3
        s_add_u32 s{sT0}, s{sT0}, s{sWave}
        s_lshl_b32 s{sT0}, s{sT0}, 10""")
        for (lo, size) in ((38, 512*3584), (40, 1792*1024), (36, 512*1024)):
            srd(k, SPF, lo, size)
            e(f"buffer_load_dwordx4 {vr(PFD,4)}, v{vL16}, s[{SPF}:{SPF+3}], s{sT0} offen")
    if ZERO_FLAGS is not None and 'notouch2' not in EXP:
        sg, sj, sa, sb, sh, sgo = 44, 45, 46, 47, 48, 49
        e(f"""s_and_b32 s{sg}, s2, 7
        s_lshl_b32 s{sg}, s{sg}, 1
        s_bfe_u32 s{sT0}, s2, 0x10003
        s_add_u32 s{sg}, s{sg}, s{sT0}
        s_lshr_b32 s{sj}, s2, 4
        s_and_b32 s{sa}, s{sWave}, 1
        s_bfe_u32 s{sb}, s{sWave}, 0x10001
        s_lshl_b32 s{sh}, s{sg}, 1
        s_and_b32 s{sT0}, s{sj}, 1
        s_add_u32 s{sh}, s{sh}, s{sT0}
        s_lshl_b32 s{sh}, s{sh}, 1
        s_add_u32 s{sh}, s{sh}, s{sa}
        s_lshl_b32 s{sh}, s{sh}, 5
        s_lshr_b32 s{sT0}, s{sj}, 1
        s_lshl_b32 s{sT0}, s{sT0}, 2
        s_add_u32 s{sh}, s{sh}, s{sT0}
        s_lshl_b32 s{sT0}, s{sb}, 1
        s_add_u32 s{sh}, s{sh}, s{sT0}
        s_lshl_b32 s{sh}, s{sh}, 10
        s_add_u32 s{sh}, s{sh}, {WS_HF}
        s_lshl_b32 s{sgo}, s{sg}, 2
        s_lshl_b32 s{sT0}, s{sa}, 1
        s_add_u32 s{sgo}, s{sgo}, s{sT0}
        s_mul_i32 s{sgo}, s{sgo}, 112
        s_lshl_b32 s{sT0}, s{sj}, 3
        s_add_u32 s{sgo}, s{sgo}, s{sT0}
        s_lshl_b32 s{sT0}, s{sb}, 2
        s_add_u32 s{sgo}, s{sgo}, s{sT0}
        s_lshl_b32 s{sgo}, s{sgo}, 10
        s_add_u32 s{sgo}, s{sgo}, {WS_GF}
        s_cmp_ge_u32 s{sWave}, 4
        s_cbranch_scc1 L_k2_ntouch
        v_and_b32 v{PFD+4}, 15, v{vLane}
        v_lshlrev_b32 v{PFD+4}, 7, v{PFD+4}
        buffer_load_dword v{PFD+6}, v{PFD+4}, s[{SWS}:{SWS+3}], s{sh} offen
        v_and_b32 v{PFD+4}, 31, v{vLane}
        v_lshlrev_b32 v{PFD+4}, 7, v{PFD+4}
        v_lshrrev_b32 v{PFD+5}, 5, v{vLane}
        v_mul_u32_u24 v{PFD+5}, {112*1024}, v{PFD+5}
        v_add_u32 v{PFD+4}, v{PFD+4}, v{PFD+5}
        buffer_load_dword v{PFD+6}, v{PFD+4}, s[{SWS}:{SWS+3}], s{sgo} offen""")
        k.label("L_k2_ntouch")
    stamp(k, 2)
    k.label("L_k2_loop")
    for i in range(16): tile(i)
    e(f"""v_add_u32 v{vKa}, 16384, v{vKa}
    v_add_u32 v{vVa}, {16*VST}, v{vVa}
    v_add_u32 v{vVb}, {16*VST}, v{vVb}
    s_add_u32 s{sLoop}, s{sLoop}, 1
    s_cmp_lt_u32 s{sLoop}, 4
    s_cbranch_scc1 L_k2_loop
    v_mfma_f32_32x32x16_bf16 {vr(O,16)}, {vr(VF[1]+4,4)}, {vr(P2[1]+4,4)}, {vr(O,16)}
    s_waitcnt lgkmcnt(0)
    s_nop 7
    s_nop 7""")
    stamp(k, 1)
    e(f"""v_cmp_nle_f32 vcc, {hex(f2u(2.0**-64))}, v{O+8}
    s_cmp_lg_u32 s{sPass}, 0
    s_cbranch_scc1 L_k2_out
    s_cbranch_vccnz L_k2_fallback
    v_mov_b32 v{vT1}, 0x7f000000
    v_cmp_nlt_f32 vcc, v{O+8}, v{vT1}
    s_cbranch_vccz L_k2_out""")
    k.label("L_k2_fallback")
    k.c("fallback: exact row max over all keys, then redo")
    for i in range(16): e(f"v_mov_b32 v{CI+i}, 0")
    e(f"""v_mov_b32 v{vT0}, 0xff7fffff
    v_mov_b32 v{vKa}, v{vL16}
    s_mov_b32 s{sLoop}, 0""")
    k.label("L_k2_fbloop")
    e(f"""ds_read_b128 {vr(KF[0],4)}, v{vKa}
    s_waitcnt lgkmcnt(0)
    v_mfma_f32_32x32x16_bf16 {vr(S[0],16)}, {vr(KF[0],4)}, {vr(QF,4)}, {vr(CI,16)}
    s_nop 15
    s_nop 3""")
    for j in range(8): e(f"v_max3_f32 v{vT0}, v{vT0}, v{S[0]+2*j}, v{S[0]+2*j+1}")
    e(f"""v_add_u32 v{vKa}, 1024, v{vKa}
    s_add_u32 s{sLoop}, s{sLoop}, 1
    s_cmp_lt_u32 s{sLoop}, 64
    s_cbranch_scc1 L_k2_fbloop
    v_mov_b32 v{vT1}, v{vT0}
    s_nop 1
    v_permlane32_swap_b32 v{vT0}, v{vT1}
    s_nop 1
    v_max_f32 v{vT0}, v{vT0}, v{vT1}
    v_sub_f32 v{vT0}, 0, v{vT0}
    s_mov_b32 s{sPass}, 1""")
    init_pass()
    pipe_pro()
    e("s_branch L_k2_loop")
    k.label("L_k2_out")
    if ZERO_FLAGS is not None:
        e(f"""s_lshl_b32 s{sT0}, s2, 3
        s_add_u32 s{sT0}, s{sT0}, s{sWave}
        s_cmp_ge_u32 s{sT0}, 32
        s_cbranch_scc1 L_k2_nz
        s_lshl_b32 s{sT0}, s{sT0}, 11
        s_add_u32 s{sT0}, s{sT0}, {ZERO_FLAGS}
        v_mov_b32 v{S[0]}, 0
        v_mov_b32 v{S[0]+1}, 0
        v_mov_b32 v{S[0]+2}, 0
        v_mov_b32 v{S[0]+3}, 0
        buffer_store_dwordx4 {vr(S[0],4)}, v{vL16}, s[{SWS}:{SWS+3}], s{sT0} offen""")
        k.label("L_k2_nz")
    e(f"v_rcp_f32 v{vT0}, v{O+8}\ns_nop 0")
    for i in range(8): e(f"v_mul_f32 v{O+i}, v{O+i}, v{vT0}")
    for i in range(4): e(f"v_cvt_pk_bf16_f32 v{P2[0]+i}, v{O+2*i}, v{O+2*i+1}")
    e(f"""s_lshl_b32 s{sT0}, s{sQt}, 5
    s_add_u32 s{sT0}, s{sT0}, s{sHead}
    s_lshl_b32 s{sT0}, s{sT0}, 10
    s_add_u32 s{sT0}, s{sT0}, {WS_OF}
    buffer_store_dwordx4 {vr(P2[0],4)}, v{vL16}, s[{SWS}:{SWS+3}], s{sT0} offen""")
    instr_end(k, 1, SWS, S[0])
    k.label("L_k2_end")
    e("s_endpgm")
    return k, (256, 512, 65536 + 64*VST + 3072)

def gen_k35(which):
    is3 = which == 3
    nm = "k3_wo_kernel" if is3 else "k5_ffn2_kernel"
    L = "L_k3" if is3 else "L_k5"
    KS = 32 if is3 else 112
    NC = KS // 4
    RING = 8
    AHEAD = int(PARAM.get('ah35', 5))
    ACT = WS_OF if is3 else WS_GF
    k = K(nm, vgprs=128)
    e = k.e
    SW, SWS, SX, SB = 12, 16, 20, 24
    sWave, sTsub, sFsub, sRb, sCb = 28, 29, 30, 31, 32
    sM0A, sM0W, sOffA, sOffW, sT0, sT1, sA0 = 33, 34, 35, 36, 37, 38, 39
    vLane, vT, vH, vL16, vWo = 1, 2, 3, 4, 5
    vAa = [6, 7]; vWa = [8, 9]
    t0, t1, t2, t3 = 10, 11, 12, 13
    RES = 16
    BIA = 24
    AF = [32, 48]
    WF = [64, 80]
    ACC = 96
    EP = 112
    e(f"""s_cmp_ge_u32 s2, 256
    s_cbranch_scc1 {L}_end""")
    instr_start(k)
    if is3:
        e(f"""s_load_dwordx2 s[4:5], s[0:1], 16
        s_load_dwordx2 s[6:7], s[0:1], 0""")
    else:
        e(f"""s_load_dwordx2 s[4:5], s[0:1], 48
        s_load_dwordx4 s[40:43], s[0:1], 56""")
    e(f"""s_load_dwordx2 s[8:9], s[0:1], 80
    v_and_b32 v{vLane}, 63, v0
    v_lshrrev_b32 v{t0}, 6, v0
    v_and_b32 v{vT}, 31, v0
    v_bfe_u32 v{vH}, v0, 5, 1
    v_readfirstlane_b32 s{sT1}, v{t0}
    v_lshlrev_b32 v{vL16}, 4, v{vLane}
    s_and_b32 s{sRb}, s2, 7
    s_lshl_b32 s{sRb}, s{sRb}, 2
    s_bfe_u32 s{sT0}, s2, 0x20003
    s_add_u32 s{sRb}, s{sRb}, s{sT0}
    s_lshr_b32 s{sCb}, s2, 5
    s_and_b32 s{sWave}, s{sT1}, 3
    s_and_b32 s{sTsub}, s{sWave}, 1
    s_lshr_b32 s{sFsub}, s{sWave}, 1
    s_cmp_ge_u32 s{sT1}, 4
    s_cbranch_scc1 {L}_loader""")
    vRM = t3
    e(f"""s_lshl_b32 s{sT0}, s{sRb}, 6
    s_lshl_b32 s{sT1}, s{sTsub}, 5
    s_add_u32 s{sT0}, s{sT0}, s{sT1}
    v_add_u32 v{t0}, s{sT0}, v{vT}
    v_lshlrev_b32 v{t0}, 10, v{t0}
    v_lshlrev_b32 v{t1}, 3, v{vH}
    s_lshl_b32 s{sT0}, s{sCb}, 7
    s_lshl_b32 s{sT1}, s{sFsub}, 6
    s_add_u32 s{sT0}, s{sT0}, s{sT1}
    v_add_u32 v{t1}, s{sT0}, v{t1}
    v_add_u32 v{vRM}, v{t0}, v{t1}""")
    sHo = 44
    e(f"""s_lshl_b32 s{sHo}, s{sRb}, 1
    s_add_u32 s{sHo}, s{sHo}, s{sTsub}
    s_lshl_b32 s{sHo}, s{sHo}, 5
    s_lshl_b32 s{sT0}, s{sCb}, 2
    s_add_u32 s{sHo}, s{sHo}, s{sT0}
    s_lshl_b32 s{sT0}, s{sFsub}, 1
    s_add_u32 s{sHo}, s{sHo}, s{sT0}
    s_lshl_b32 s{sHo}, s{sHo}, 10
    s_add_u32 s{sHo}, s{sHo}, {WS_HF}
    s_waitcnt lgkmcnt(0)""")
    srd(k, SWS, 8, WS_SIZE)
    if is3:
        srd(k, SX, 6, 2*MB)
        for g in range(4): e(f"buffer_load_dwordx2 {vr(RES+2*g,2)}, v{vRM}, s[{SX}:{SX+3}], 0 offen offset:{16*g}")
    else:
        srd(k, SB, 40, 1024); srd(k, SX, 42, 2*MB)
        e(f"""buffer_load_dwordx4 {vr(RES,4)}, v{vL16}, s[{SWS}:{SWS+3}], s{sHo} offen
        buffer_load_dwordx4 {vr(RES+4,4)}, v{vL16}, s[{SWS}:{SWS+3}], s{sHo} offen offset:1024""")
        for g in range(4): e(f"buffer_load_dwordx2 {vr(BIA+2*g,2)}, v{t1}, s[{SB}:{SB+3}], 0 offen offset:{16*g}")
    e(f"""s_lshl_b32 s{sT0}, s{sTsub}, 12
    v_add_u32 v{vAa[0]}, s{sT0}, v{vL16}
    v_add_u32 v{vAa[1]}, 65536, v{vAa[0]}
    v_and_b32 v{t0}, 15, v{vLane}
    v_lshrrev_b32 v{t1}, 2, v{t0}
    v_lshl_add_u32 v{t1}, v{vH}, 2, v{t1}
    v_lshlrev_b32 v{t1}, 7, v{t1}
    v_lshrrev_b32 v{t2}, 3, v{t0}
    v_xor_b32 v{t2}, s{sFsub}, v{t2}
    v_lshl_add_u32 v{t1}, v{t2}, 6, v{t1}
    v_bfe_u32 v{t2}, v{vLane}, 4, 1
    v_lshl_add_u32 v{t1}, v{t2}, 5, v{t1}
    v_and_b32 v{t2}, 3, v{t0}
    v_lshl_add_u32 v{t1}, v{t2}, 3, v{t1}
    v_add_u32 v{vWa[0]}, 8192, v{t1}
    v_add_u32 v{vWa[1]}, {8192+65536}, v{t1}""")
    for i in range(16): e(f"v_mov_b32 v{ACC+i}, 0")
    def rd(c, s):
        slot = c % RING; b = c & 1
        off = (slot & 3)*16384
        e(f"""ds_read_b128 {vr(AF[b]+4*s,4)}, v{vAa[slot>>2]} offset:{off + s*1024}
        ds_read_b64_tr_b16 {vr(WF[b]+4*s,2)}, v{vWa[slot>>2]} offset:{off + s*2048}
        ds_read_b64_tr_b16 {vr(WF[b]+4*s+2,2)}, v{vWa[slot>>2]} offset:{off + s*2048 + 1024}""")
    def mm(c, s):
        b = c & 1
        e(f"v_mfma_f32_32x32x16_bf16 {vr(ACC,16)}, {vr(WF[b]+4*s,4)}, {vr(AF[b]+4*s,4)}, {vr(ACC,16)}")
    stamp(k, 1)
    e("s_barrier")
    stamp(k, 2)
    for s in range(4): rd(0, s)
    for c in range(NC):
        if c + 1 < NC:
            e(f"s_waitcnt lgkmcnt(0)\ns_barrier")
            if is3 or c % 2 == 0: stamp(k, 3 + (c if is3 else c//2))
            for s in range(4):
                mm(c, s)
                rd(c+1, s)
        else:
            e("s_waitcnt lgkmcnt(0)")
            for s in range(4): mm(c, s)
    def unpack(dst, src):
        e(f"v_lshlrev_b32 v{dst}, 16, v{src}\nv_and_b32 v{dst+1}, 0xffff0000, v{src}")
    e("s_waitcnt vmcnt(0)")
    for i in range(8): unpack(EP+2*i, RES+i)
    if not is3:
        for i in range(8): unpack(AF[0]+2*i, BIA+i)
        for i in range(16): e(f"v_add_f32 v{EP+i}, v{EP+i}, v{AF[0]+i}")
    stamp(k, 20)
    for i in range(16): e(f"v_add_f32 v{ACC+i}, v{ACC+i}, v{EP+i}")
    for i in range(8): e(f"v_cvt_pk_bf16_f32 v{EP+i}, v{ACC+2*i}, v{ACC+2*i+1}")
    if is3:
        e(f"""buffer_store_dwordx4 {vr(EP,4)}, v{vL16}, s[{SWS}:{SWS+3}], s{sHo} offen
        buffer_store_dwordx4 {vr(EP+4,4)}, v{vL16}, s[{SWS}:{SWS+3}], s{sHo} offen offset:1024""")
        e(f"v_add_f32 v{t0}, v{ACC}, v{ACC+1}\nv_mul_f32 v{t1}, v{ACC}, v{ACC}\nv_mul_f32 v{t2}, v{ACC+1}, v{ACC+1}")
        for i in range(2, 16):
            e(f"v_add_f32 v{t0}, v{t0}, v{ACC+i}\nv_fmac_f32 v{t1 + (i&1)}, v{ACC+i}, v{ACC+i}")
        e(f"""v_add_f32 v{t1}, v{t1}, v{t2}
        s_lshl_b32 s{sT0}, s{sCb}, 1
        s_add_u32 s{sT0}, s{sT0}, s{sFsub}
        v_permlane32_swap_b32 v{t0}, v{t1}
        s_lshl_b32 s{sT0}, s{sT0}, 11
        s_lshl_b32 s{sT1}, s{sRb}, 6
        v_add_f32 v{t0}, v{t0}, v{t1}
        s_add_u32 s{sT0}, s{sT0}, s{sT1}
        s_lshl_b32 s{sT1}, s{sTsub}, 5
        s_add_u32 s{sT0}, s{sT0}, s{sT1}
        s_lshl_b32 s{sT0}, s{sT0}, 3
        s_add_u32 s{sT0}, s{sT0}, {WS_ST}
        v_lshlrev_b32 v{t1}, 3, v{vT}
        v_lshl_add_u32 v{t1}, v{vH}, 2, v{t1}
        buffer_store_dword v{t0}, v{t1}, s[{SWS}:{SWS+3}], s{sT0} offen""")
    else:
        for g in range(4): e(f"buffer_store_dwordx2 {vr(EP+2*g,2)}, v{vRM}, s[{SX}:{SX+3}], 0 offen offset:{16*g}")
    instr_end(k, 2 if is3 else 4, SWS, AF[0])
    e("s_endpgm")
    k.label(f"{L}_loader")
    e(f"""v_lshrrev_b32 v{t0}, 3, v{vLane}
    v_and_b32 v{t1}, 7, v{vLane}
    v_bfe_u32 v{t2}, v{t0}, 1, 1
    v_lshlrev_b32 v{t2}, 2, v{t2}
    v_xor_b32 v{t2}, v{t2}, v{t1}
    v_lshlrev_b32 v{t2}, 4, v{t2}
    s_lshl_b32 s{sT0}, s{sWave}, 4
    v_add_u32 v{t0}, s{sT0}, v{t0}
    v_lshl_add_u32 v{t2}, v{t0}, 10, v{t2}
    s_lshl_b32 s{sT1}, s{sCb}, 7
    v_add_u32 v{vWo}, s{sT1}, v{t2}
    s_lshl_b32 s{sA0}, s{sRb}, 1
    s_add_u32 s{sA0}, s{sA0}, s{sTsub}
    s_mul_i32 s{sA0}, s{sA0}, {KS}
    s_lshl_b32 s{sT0}, s{sFsub}, 1
    s_add_u32 s{sA0}, s{sA0}, s{sT0}
    s_lshl_b32 s{sA0}, s{sA0}, 10
    s_add_u32 s{sA0}, s{sA0}, {ACT}
    s_lshl_b32 s{sM0A}, s{sTsub}, 12
    s_lshl_b32 s{sT0}, s{sFsub}, 11
    s_add_u32 s{sM0A}, s{sM0A}, s{sT0}
    s_lshl_b32 s{sM0W}, s{sWave}, 11
    s_add_u32 s{sM0W}, s{sM0W}, 8192
    s_waitcnt lgkmcnt(0)""")
    srd(k, SW, 4, KS*16*1024); srd(k, SWS, 8, WS_SIZE)
    def dma_chunk(c):
        slot = c % RING
        e(f"""s_add_u32 m0, s{sM0A}, {slot*16384}
        s_add_u32 s{sOffA}, s{sA0}, {c*4096}
        buffer_load_dwordx4 v{vL16}, s[{SWS}:{SWS+3}], s{sOffA} offen lds
        buffer_load_dwordx4 v{vL16}, s[{SWS}:{SWS+3}], s{sOffA} offen offset:1024 lds
        s_add_u32 m0, s{sM0W}, {slot*16384}
        s_mov_b32 s{sOffW}, {c*65536}
        buffer_load_dwordx4 v{vWo}, s[{SW}:{SW+3}], s{sOffW} offen lds
        s_add_u32 m0, s{sM0W}, {slot*16384 + 1024}
        s_mov_b32 s{sOffW}, {c*65536 + 8192}
        buffer_load_dwordx4 v{vWo}, s[{SW}:{SW+3}], s{sOffW} offen lds""")
    FIRST = min(AHEAD, int(PARAM.get('first35', 3)))
    for c in range(FIRST): dma_chunk(c)
    issued = FIRST
    for c in range(NC):
        e(f"s_waitcnt vmcnt({4*(issued-1-c)})\ns_barrier")
        n = 0
        while issued < NC and issued < c + AHEAD and issued - (c-1) <= RING and n < 2:
            dma_chunk(issued); issued += 1; n += 1
    k.label(f"{L}_end")
    e("s_endpgm")
    return k, (256, 512, 131072)

def gen_k4():
    k = K("k4_ffn1_kernel", vgprs=216)
    e = k.e
    NC = 16; RING = 8; AHEAD = int(PARAM.get('ah4', 5))
    SW, SWS, SB = 12, 16, 20
    sWave, sTh, sFh, sRb, sCb = 28, 29, 30, 31, 32
    sM0A, sM0W, sOffA, sOffW, sT0, sT1, sA0 = 33, 34, 35, 36, 37, 38, 39
    vLane, vT, vH, vL16, vWo = 1, 2, 3, 4, 5
    vAa = [6, 7]; vWa = [[8, 9], [10, 11]]
    t0, t1, t2, t3 = 12, 13, 14, 15
    SEL = 16
    CSA = [20, 24]
    STA = [28, 30]
    AF = [32, 48]
    WF = [64, 80]
    ACC = 96
    EP = 160
    EB = 176
    SL = 160
    BL = 192
    PK = 208
    e(f"""s_cmp_ge_u32 s2, 224
    s_cbranch_scc1 L_k4_end""")
    instr_start(k)
    e(f"""s_load_dwordx4 s[4:7], s[0:1], 32
    s_load_dwordx2 s[8:9], s[0:1], 80
    v_and_b32 v{vLane}, 63, v0
    v_lshrrev_b32 v{t0}, 6, v0
    v_and_b32 v{vT}, 31, v0
    v_bfe_u32 v{vH}, v0, 5, 1
    v_readfirstlane_b32 s{sT1}, v{t0}
    v_lshlrev_b32 v{vL16}, 4, v{vLane}
    s_and_b32 s{sRb}, s2, 7
    s_lshl_b32 s{sRb}, s{sRb}, 1
    s_bfe_u32 s{sT0}, s2, 0x10003
    s_add_u32 s{sRb}, s{sRb}, s{sT0}
    s_lshr_b32 s{sCb}, s2, 4
    s_and_b32 s{sWave}, s{sT1}, 3
    s_and_b32 s{sTh}, s{sWave}, 1
    s_lshr_b32 s{sFh}, s{sWave}, 1
    s_cmp_ge_u32 s{sT1}, 4
    s_cbranch_scc1 L_k4_loader""")
    e(f"""s_lshl_b32 s{sT0}, s{sRb}, 7
    s_lshl_b32 s{sT1}, s{sTh}, 6
    s_add_u32 s{sT0}, s{sT0}, s{sT1}
    s_lshl_b32 s{sT0}, s{sT0}, 3
    s_add_u32 s{sT0}, s{sT0}, {WS_ST}
    v_lshlrev_b32 v{t0}, 3, v{vT}
    v_lshl_add_u32 v{t0}, v{vH}, 17, v{t0}
    v_lshlrev_b32 v{t3}, 3, v{vH}
    s_waitcnt lgkmcnt(0)""")
    srd(k, SWS, 8, WS_SIZE); srd(k, SB, 6, 3584)
    for j in range(8):
        e(f"s_add_u32 s{sT1}, s{sT0}, {j*16384}")
        for ts in range(2):
            e(f"buffer_load_dwordx2 {vr(SL+16*ts+2*j,2)}, v{t0}, s[{SWS}:{SWS+3}], s{sT1} offen offset:{256*ts}")
    e(f"""s_lshl_b32 s{sT0}, s{sCb}, 8
    s_lshl_b32 s{sT1}, s{sFh}, 7
    s_add_u32 s{sT0}, s{sT0}, s{sT1}""")
    for fs in range(2):
        for g in range(4): e(f"buffer_load_dwordx2 {vr(BL+8*fs+2*g,2)}, v{t3}, s[{SB}:{SB+3}], s{sT0} offen offset:{64*fs + 16*g}")
    e(f"""s_lshl_b32 s{sT0}, s{sTh}, 12
    v_add_u32 v{vAa[0]}, s{sT0}, v{vL16}
    v_add_u32 v{vAa[1]}, 65536, v{vAa[0]}
    v_and_b32 v{t0}, 15, v{vLane}
    v_lshrrev_b32 v{t1}, 2, v{t0}
    v_lshl_add_u32 v{t2}, v{vH}, 2, v{t1}
    v_lshlrev_b32 v{t2}, 8, v{t2}
    v_bfe_u32 v{t3}, v{vLane}, 4, 1
    v_lshl_add_u32 v{t2}, v{t3}, 5, v{t2}
    v_and_b32 v{t3}, 3, v{t0}
    v_lshl_add_u32 v{t2}, v{t3}, 3, v{t2}
    s_lshl_b32 s{sT0}, s{sFh}, 1""")
    for fs in range(2):
        e(f"""s_add_u32 s{sT1}, s{sT0}, {fs}
        v_xor_b32 v{t3}, s{sT1}, v{t1}
        v_lshl_add_u32 v{t3}, v{t3}, 6, v{t2}
        v_add_u32 v{vWa[fs][0]}, 8192, v{t3}
        v_add_u32 v{vWa[fs][1]}, {8192+65536}, v{t3}""")
    e(f"""v_bfe_u32 v{t1}, v{vLane}, 4, 1
    v_cmp_eq_u32 vcc, v{t0}, v{t1}
    v_mov_b32 v{t0}, 0
    v_mov_b32 v{t1}, 0x3f803f80
    v_cndmask_b32 v{SEL}, v{t0}, v{t1}, vcc
    v_cndmask_b32 v{SEL+1}, v{t0}, v{t1}, vcc
    v_cndmask_b32 v{SEL+2}, v{t0}, v{t1}, vcc
    v_cndmask_b32 v{SEL+3}, v{t0}, v{t1}, vcc""")
    for i in range(8): e(f"v_mov_b32 v{CSA[0]+i}, 0")
    for i in range(64): e(f"v_mov_b32 v{ACC+i}, 0")
    e("s_waitcnt vmcnt(8)")
    for ts in range(2):
        b0 = SL + 16*ts
        for j in range(1, 8):
            e(f"v_add_f32 v{b0}, v{b0}, v{b0+2*j}\nv_add_f32 v{b0+1}, v{b0+1}, v{b0+2*j+1}")
        for q in range(2):
            e(f"""v_mov_b32 v{t0}, v{b0+q}
            s_nop 1
            v_permlane32_swap_b32 v{b0+q}, v{t0}
            s_nop 1
            v_add_f32 v{b0+q}, v{b0+q}, v{t0}""")
        e(f"""v_mul_f32 v{t0}, {1.0/512}, v{b0}
        v_mul_f32 v{t1}, {1.0/512}, v{b0+1}
        v_fma_f32 v{t1}, -v{t0}, v{t0}, v{t1}
        v_max_f32 v{t1}, 0, v{t1}
        v_add_f32 v{t1}, {1e-5}, v{t1}
        v_rsq_f32 v{PK+4*ts}, v{t1}
        s_nop 0
        v_mov_b32 v{PK+4*ts+1}, v{PK+4*ts}
        v_mul_f32 v{PK+4*ts+2}, v{t0}, v{PK+4*ts}
        v_sub_f32 v{PK+4*ts+2}, 0, v{PK+4*ts+2}
        v_mov_b32 v{PK+4*ts+3}, v{PK+4*ts+2}""")
    def rdA(c, s, ts):
        slot = c % RING; b = c & 1
        e(f"ds_read_b128 {vr(AF[b]+8*s+4*ts,4)}, v{vAa[slot>>2]} offset:{(slot&3)*16384 + ts*2048 + s*1024}")
    def rdW(c, s, fs):
        slot = c % RING; b = c & 1
        off = (slot & 3)*16384 + s*4096
        e(f"""ds_read_b64_tr_b16 {vr(WF[b]+8*s+4*fs,2)}, v{vWa[fs][slot>>2]} offset:{off}
        ds_read_b64_tr_b16 {vr(WF[b]+8*s+4*fs+2,2)}, v{vWa[fs][slot>>2]} offset:{off + 2048}""")
    def mm(c, s, ts, fs):
        b = c & 1; a = ACC + 32*ts + 16*fs
        e(f"v_mfma_f32_32x32x16_bf16 {vr(a,16)}, {vr(WF[b]+8*s+4*fs,4)}, {vr(AF[b]+8*s+4*ts,4)}, {vr(a,16)}")
    def cs(c, s, fs):
        b = c & 1
        e(f"v_mfma_f32_16x16x32_bf16 {vr(CSA[fs],4)}, {vr(WF[b]+8*s+4*fs,4)}, {vr(SEL,4)}, {vr(CSA[fs],4)}")
    stamp(k, 1)
    e(f"s_barrier")
    stamp(k, 2)
    for s in range(2):
        for x in range(2): rdA(0, s, x); rdW(0, s, x)
    for c in range(NC):
        last = c + 1 >= NC
        if not last:
            e(f"s_waitcnt lgkmcnt(0)\ns_barrier")
            stamp(k, 3 + c)
        else:
            e("s_waitcnt lgkmcnt(0)")
        for s in range(2):
            mm(c, s, 0, 0)
            if not last: rdA(c+1, s, 0)
            mm(c, s, 1, 0)
            if not last: rdW(c+1, s, 0)
            cs(c, s, 0)
            mm(c, s, 0, 1)
            if not last: rdA(c+1, s, 1)
            mm(c, s, 1, 1)
            if not last: rdW(c+1, s, 1)
            cs(c, s, 1)
    SCR = 6*16384
    stamp(k, 20)
    e(f"""s_waitcnt vmcnt(0)
    s_lshl_b32 s{sT0}, s{sWave}, 10
    s_add_u32 s{sT0}, s{sT0}, {SCR}
    v_and_b32 v{t0}, 15, v{vLane}
    v_lshrrev_b32 v{t1}, 4, v{vLane}
    v_lshlrev_b32 v{t1}, 4, v{t1}
    v_lshl_add_u32 v{t1}, v{t0}, 6, v{t1}
    v_add_u32 v{t1}, s{sT0}, v{t1}
    v_lshlrev_b32 v{t2}, 4, v{vH}
    v_add_u32 v{t2}, s{sT0}, v{t2}
    v_cmp_gt_u32 vcc, 2, v{t0}
    s_nop 4
    s_and_saveexec_b64 s[40:41], vcc
    ds_write_b128 v{t1}, {vr(CSA[0],4)}
    ds_write_b128 v{t1}, {vr(CSA[1],4)} offset:128
    s_mov_b64 exec, s[40:41]""")
    EPS = [EP, AF[0]+32]
    for fs in range(2):
        for g in range(4): e(f"ds_read_b128 {vr(EPS[fs]+4*g,4)}, v{t2} offset:{128*fs + 32*g}")
    sG = 42
    e(f"""s_lshl_b32 s{sG}, s{sRb}, 2
    s_lshl_b32 s{sT1}, s{sTh}, 1
    s_add_u32 s{sG}, s{sG}, s{sT1}
    s_mul_i32 s{sG}, s{sG}, 112
    s_lshl_b32 s{sT1}, s{sCb}, 3
    s_add_u32 s{sG}, s{sG}, s{sT1}
    s_lshl_b32 s{sT1}, s{sFh}, 2
    s_add_u32 s{sG}, s{sG}, s{sT1}
    s_lshl_b32 s{sG}, s{sG}, 10
    s_add_u32 s{sG}, s{sG}, {WS_GF}""")
    C0 = -2.0 * LOG2E * math.sqrt(2.0/math.pi)
    C1 = C0 * 0.044715
    CC = 16
    e(f"""v_mov_b32 v{CC}, {hex(f2u(C0))}
    v_mov_b32 v{CC+1}, {hex(f2u(C0))}
    v_mov_b32 v{CC+2}, {hex(f2u(C1))}
    v_mov_b32 v{CC+3}, {hex(f2u(C1))}
    v_mov_b32 v{CC+4}, 1.0
    v_mov_b32 v{CC+5}, 1.0""")
    TM = AF[0]
    def p2(r): return f"v[{r}:{r+1}]"
    for fs in range(2):
        for i in range(8): e(f"v_lshlrev_b32 v{EB+2*i}, 16, v{BL+8*fs+i}\nv_and_b32 v{EB+2*i+1}, 0xffff0000, v{BL+8*fs+i}")
        if fs == 0: e("s_waitcnt lgkmcnt(0)")
        for ts in range(2):
            a = ACC + 32*ts + 16*fs
            tm = TM + 16*ts
            for i in range(0, 16, 2): e(f"v_pk_fma_f32 {p2(tm+i)}, {p2(PK+4*ts+2)}, {p2(EPS[fs]+i)}, {p2(EB+i)}")
            for i in range(0, 16, 2): e(f"v_pk_fma_f32 {p2(a+i)}, {p2(a+i)}, {p2(PK+4*ts)}, {p2(tm+i)}")
            for i in range(0, 16, 2): e(f"v_pk_mul_f32 {p2(tm+i)}, {p2(a+i)}, {p2(a+i)}")
            for i in range(0, 16, 2): e(f"v_pk_fma_f32 {p2(tm+i)}, {p2(tm+i)}, {p2(CC+2)}, {p2(CC)}")
            for i in range(0, 16, 2): e(f"v_pk_mul_f32 {p2(tm+i)}, {p2(tm+i)}, {p2(a+i)}")
            for i in range(16): e(f"v_exp_f32 v{tm+i}, v{tm+i}")
            for i in range(0, 16, 2): e(f"v_pk_add_f32 {p2(tm+i)}, {p2(tm+i)}, {p2(CC+4)}")
            for i in range(16): e(f"v_rcp_f32 v{tm+i}, v{tm+i}")
            for i in range(0, 16, 2): e(f"v_pk_mul_f32 {p2(a+i)}, {p2(a+i)}, {p2(tm+i)}")
            for i in range(8): e(f"v_cvt_pk_bf16_f32 v{a+i}, v{a+2*i}, v{a+2*i+1}")
            e(f"""s_add_u32 s{sT1}, s{sG}, {ts*112*1024 + fs*2048}
            buffer_store_dwordx4 {vr(a,4)}, v{vL16}, s[{SWS}:{SWS+3}], s{sT1} offen
            buffer_store_dwordx4 {vr(a+4,4)}, v{vL16}, s[{SWS}:{SWS+3}], s{sT1} offen offset:1024""")
    stamp(k, 21)
    instr_end(k, 3, SWS, AF[0])
    e("s_endpgm")
    k.label("L_k4_loader")
    e(f"""v_lshrrev_b32 v{t0}, 4, v{vLane}
    v_and_b32 v{t1}, 15, v{vLane}
    v_lshlrev_b32 v{t2}, 2, v{t0}
    v_xor_b32 v{t2}, v{t2}, v{t1}
    v_lshlrev_b32 v{t2}, 4, v{t2}
    s_lshl_b32 s{sT0}, s{sWave}, 3
    v_add_u32 v{t0}, s{sT0}, v{t0}
    v_mul_u32_u24 v{t0}, 3584, v{t0}
    v_add_u32 v{t2}, v{t2}, v{t0}
    s_lshl_b32 s{sT1}, s{sCb}, 8
    v_add_u32 v{vWo}, s{sT1}, v{t2}
    s_lshl_b32 s{sA0}, s{sRb}, 2
    s_add_u32 s{sA0}, s{sA0}, s{sWave}
    s_lshl_b32 s{sA0}, s{sA0}, 15
    s_add_u32 s{sA0}, s{sA0}, {WS_HF}
    s_lshl_b32 s{sM0A}, s{sWave}, 11
    s_add_u32 s{sM0W}, s{sM0A}, 8192
    s_waitcnt lgkmcnt(0)""")
    srd(k, SW, 4, 512*3584); srd(k, SWS, 8, WS_SIZE)
    def dma_chunk(c):
        slot = c % RING
        e(f"""s_add_u32 m0, s{sM0A}, {slot*16384}
        s_add_u32 s{sOffA}, s{sA0}, {c*2048}
        buffer_load_dwordx4 v{vL16}, s[{SWS}:{SWS+3}], s{sOffA} offen lds
        buffer_load_dwordx4 v{vL16}, s[{SWS}:{SWS+3}], s{sOffA} offen offset:1024 lds
        s_add_u32 m0, s{sM0W}, {slot*16384}
        s_mov_b32 s{sOffW}, {c*32*3584}
        buffer_load_dwordx4 v{vWo}, s[{SW}:{SW+3}], s{sOffW} offen lds
        s_add_u32 m0, s{sM0W}, {slot*16384 + 1024}
        s_mov_b32 s{sOffW}, {c*32*3584 + 4*3584}
        buffer_load_dwordx4 v{vWo}, s[{SW}:{SW+3}], s{sOffW} offen lds""")
    FIRST = min(AHEAD, int(PARAM.get('first4', 3)))
    for c in range(FIRST): dma_chunk(c)
    issued = FIRST
    for c in range(NC):
        e(f"s_waitcnt vmcnt({4*(issued-1-c)})\ns_barrier")
        n = 0
        while issued < NC and issued < c + AHEAD and issued - (c-1) <= RING and n < 2:
            dma_chunk(issued); issued += 1; n += 1
    k.label("L_k4_end")
    e("s_endpgm")
    return k, (224, 512, 131072)

def main():
    global INSTR
    if "--instr" in sys.argv: INSTR = True; sys.argv.remove("--instr")
    for a in list(sys.argv):
        if a.startswith("--exp="): EXP.update(a[6:].split(",")); sys.argv.remove(a)
        if a.startswith("--p="):
            for kv in a[4:].split(","): PARAM[kv.split(":")[0]] = kv.split(":")[1]
            sys.argv.remove(a)
    ks = [gen_k1(), gen_k2(), gen_k35(3), gen_k4(), gen_k35(5)]
    hdr = open("cdna_kernels/" + NAME + ".s.ref").read().split("; Override launch")[0]
    out = hdr
    for k, (g, b, lds) in ks:
        out += f"; @launch kernel={k.name} grid=({g},1,1) block=({b},1,1) lds={lds}\n"
    out += '.amdgcn_target "amdgcn-amd-amdhsa--gfx950"\n.text\n'
    for k, _ in ks: out += k.text()
    out += '.section .rodata,"a"\n'
    for k, _ in ks: out += k.kd()
    open(sys.argv[1] if len(sys.argv) > 1 else "out.s", "w").write(out)

if __name__ == "__main__":
    main()
```

```python
import sys, math
import gen
from gen import *

WS_FLAG = 6*MB + 65536

CNT_LDS = 163840 - 64
WS_GEN = 6*MB + 65536 + 512
XCH_LDS = 65536 + 64*VST + 3072
LDS_MAIN = XCH_LDS + 8*3072

def p1_phase(k, L):
    e = k.e
    SWS, SW, SX, SD_ = L['SWS'], L['SW'], L['SX'], L['SB']
    sW8, sWave, sTsub, sP, sMode, sT0, sT1, sCnt, sEx = L['sW8'], L['sWave'], L['sA'], L['sB_'], L['sMode'], L['sT0'], L['sT1'], L['sCnt'], L['sEx']
    sG, sJ = L['sG'], L['sJ']
    hstore, arrive, poll = L['hstore'], L['arrive'], L['poll']
    sM0, sCC, sOffX, sOffW, sW0, sTile, sHg, sRb, sXcc = 51, 52, 53, 54, 57, 75, 76, 77, 78
    vLane, vT, vH, vL16 = L['vLane'], L['vT'], L['vH'], L['vL16']
    vXo = [5, 6]; vWo = 7
    vXa = [8, 9, 10, 11]; vWa = [12, 13]
    vOnes = 14; vCsV = 15
    vTmp = [20, 21, 22, 23, 24, 25, 26, 27]
    XF = [28, 32]; WF = [[36, 40, 44], [48, 52, 56]]
    ACC = [64, 80, 96]; EP = 112; CSA = [128, 132, 136]; AB = 140; SEL = 148
    DUM = 152
    NC = 8
    STAT = 32768 + 2*24576 + 8192
    SCR = 32768 + 2*24576
    e(f"""s_and_b32 s{sHg}, s2, 7
    s_lshr_b32 s{sRb}, s2, 3
    s_getreg_b32 s{sXcc}, hwreg(HW_REG_XCC_ID)
    s_and_b32 s{sXcc}, s{sXcc}, 15
    s_cmp_ge_u32 s{sW8}, 4
    s_cbranch_scc1 L_p1_helper""")
    r, cp, t0, t1 = vTmp[0], vTmp[1], vTmp[2], vTmp[3]
    def load_tokens():
        e(f"""s_lshl_b32 s{sT0}, s{sHg}, 13
        s_add_u32 s{sT0}, s{sT0}, {WS_GEN}
        s_lshr_b32 s{sT1}, s2, 5
        s_lshl_b32 s{sT1}, s{sT1}, 13
        s_add_u32 s{sT1}, s{sT1}, {WS_GEN}
        s_load_dword s10, s[24:25], s{sT0}
        s_load_dword s11, s[24:25], s{sT1}""")
    e(f"""s_lshl_b32 s{sT0}, s{sTsub}, 5
    v_add_u32 v{t0}, s{sT0}, v{vT}
    v_bfe_u32 v{t1}, v{t0}, 1, 3""")
    for s in range(4):
        e(f"""v_add_u32 v{r}, {2*s}, v{vH}
        v_xor_b32 v{r}, v{r}, v{t1}
        v_lshlrev_b32 v{r}, 4, v{r}
        v_lshl_add_u32 v{vXa[s]}, v{t0}, 7, v{r}""")
    e(f"""v_and_b32 v{t0}, 15, v{vLane}
    v_lshrrev_b32 v{t1}, 2, v{t0}
    v_lshl_add_u32 v{t1}, v{vH}, 3, v{t1}
    v_lshlrev_b32 v{t1}, 7, v{t1}
    v_lshrrev_b32 v{r}, 3, v{t0}
    v_xor_b32 v{r}, s{sP}, v{r}
    v_lshl_add_u32 v{t1}, v{r}, 6, v{t1}
    v_bfe_u32 v{r}, v{vLane}, 4, 1
    v_lshl_add_u32 v{t1}, v{r}, 5, v{t1}
    v_and_b32 v{r}, 3, v{t0}
    v_lshl_add_u32 v{t1}, v{r}, 3, v{t1}
    v_add_u32 v{vWa[0]}, 32768, v{t1}
    v_add_u32 v{vWa[1]}, {32768+49152}, v{t1}
    v_mov_b32 v{vOnes}, 0x3f803f80
    v_bfe_u32 v{t1}, v{vLane}, 4, 1
    v_cmp_eq_u32 vcc, v{t0}, v{t1}
    v_mov_b32 v{t0}, 0
    s_nop 1""")
    for i in range(4): e(f"v_cndmask_b32 v{SEL+i}, v{t0}, v{vOnes}, vcc")
    for i in range(12): e(f"v_mov_b32 v{128+i}, 0")
    for y in range(3):
        for i in range(16): e(f"v_mov_b32 v{ACC[y]+i}, 0")
    a0, a1, a2, a3 = vTmp[0], vTmp[1], vTmp[2], vTmp[3]
    vSt = vL16; vSt2 = vTmp[7]; a4 = vTmp[4]; a5 = vTmp[5]
    e(f"""s_lshl_b32 s{sT0}, s{sWave}, 10
    s_add_u32 s{sT0}, s{sT0}, {SCR}
    v_lshlrev_b32 v{a0}, 2, v{vT}
    s_lshl_b32 s{sT1}, s{sTsub}, 7
    s_add_u32 s{sT1}, s{sT1}, {STAT}
    v_add_u32 v{a4}, s{sT1}, v{a0}
    v_add_u32 v{a0}, s{sT0}, v{a0}
    v_lshlrev_b32 v{a1}, 4, v{vH}
    v_add_u32 v{a5}, s{sT1}, v{a1}
    v_add_u32 v{a1}, s{sT0}, v{a1}
    v_and_b32 v{a2}, 15, v{vLane}
    v_lshrrev_b32 v{a3}, 4, v{vLane}
    v_lshlrev_b32 v{a3}, 4, v{a3}
    v_lshl_add_u32 v{a3}, v{a2}, 6, v{a3}
    v_add_u32 v{a3}, s{sT0}, v{a3}
    v_cmp_gt_u32 s[{sEx}:{sEx+1}], 2, v{a2}
    s_lshl_b32 s{sTile}, s{sHg}, 2
    s_lshl_b32 s{sOffW}, s{sP}, 1
    s_add_u32 s{sTile}, s{sTile}, s{sOffW}
    s_lshl_b32 s{sTile}, s{sTile}, 6
    s_lshl_b32 s{sOffW}, s{sRb}, 1
    s_add_u32 s{sTile}, s{sTile}, s{sOffW}
    s_add_u32 s{sTile}, s{sTile}, s{sTsub}
    s_lshl_b32 s{sOffX}, s{sTile}, 10
    v_lshrrev_b32 v{a2}, 4, v{vT}
    v_lshlrev_b32 v{a2}, 16, v{a2}
    v_lshl_add_u32 v{a2}, v{vH}, 8, v{a2}
    v_and_b32 v{vSt2}, 15, v{vT}
    v_lshl_add_u32 v{vSt2}, v{vSt2}, 4, v{a2}
    v_mov_b32 v{a2}, {CNT_LDS}
    ds_write_b128 v{a2}, {vr(ACC[0],4)}
    s_waitcnt lgkmcnt(0)""")
    srd(k, SWS, 24, WS_SIZE)
    load_tokens()
    e(f"""s_lshr_b32 s{sT0}, s2, 3
    s_cmp_ge_u32 s{sT0}, {gen.CODE_KB//4}
    s_cbranch_scc1 L_p1_npf
    s_lshl_b32 s{sT0}, s{sT0}, 2
    s_add_u32 s{sT0}, s{sT0}, s{sWave}
    s_lshl_b32 s{sT0}, s{sT0}, 10
    s_getpc_b64 s[82:83]""")
    k.label("L_p1_pc")
    e(f"""s_sub_u32 s82, s82, L_p1_pc-{k.name}
    s_subb_u32 s83, s83, 0
    s_add_u32 s82, s82, s{sT0}
    s_addc_u32 s83, s83, 0
    global_load_dwordx4 {vr(DUM,4)}, v{vSt}, s[82:83]""")
    k.label("L_p1_npf")
    e(f"""s_waitcnt lgkmcnt(0)
    s_add_u32 s10, s10, 1
    s_add_u32 s11, s11, 1
    s_cmp_lg_u32 s{sWave}, 0
    s_cbranch_scc1 L_p1_nz
    s_lshl_b32 s{sT0}, s{sHg}, 13
    s_lshl_b32 s{sT1}, s{sRb}, 2
    s_add_u32 s{sT0}, s{sT0}, s{sT1}
    s_add_u32 s{sT0}, s{sT0}, {WS_FLAG + 3584}
    s_lshl_b32 s{sT1}, s10, 4
    s_add_u32 s{sT1}, s{sT1}, s{sXcc}
    v_mov_b32 v{DUM+4}, s{sT1}
    v_mov_b32 v{DUM+5}, 0
    s_mov_b64 exec, 1
    buffer_store_dword v{DUM+4}, v{DUM+5}, s[{SWS}:{SWS+3}], s{sT0} offen sc1
    s_mov_b64 exec, -1""")
    k.label("L_p1_nz")
    def reads(c, s, b):
        slot = c % 4
        out = [f"ds_read_b128 {vr(XF[b],4)}, v{vXa[s]} offset:{slot*8192}"]
        for y in range(3):
            off = (slot & 1)*24576 + y*8192 + s*2048
            out.append(f"ds_read_b64_tr_b16 {vr(WF[b][y],2)}, v{vWa[slot>>1]} offset:{off}")
            out.append(f"ds_read_b64_tr_b16 {vr(WF[b][y]+2,2)}, v{vWa[slot>>1]} offset:{off+512}")
        return out
    bg = []
    def compute(b, ex):
        def x(n):
            for _ in range(n):
                if ex: e(ex.pop(0))
        def y():
            for _ in range(2):
                if bg: e(bg.pop(0))
        e(f"v_mfma_f32_32x32x16_bf16 {vr(ACC[0],16)}, {vr(WF[b][0],4)}, {vr(XF[b],4)}, {vr(ACC[0],16)}"); x(3)
        e(f"v_mfma_f32_32x32x16_bf16 {vr(ACC[1],16)}, {vr(WF[b][1],4)}, {vr(XF[b],4)}, {vr(ACC[1],16)}"); x(3)
        e(f"v_mfma_f32_32x32x16_bf16 {vr(ACC[2],16)}, {vr(XF[b],4)}, {vr(WF[b][2],4)}, {vr(ACC[2],16)}"); x(1); y()
        e(f"v_mfma_f32_16x16x32_bf16 {vr(CSA[0],4)}, {vr(WF[b][0],4)}, {vr(SEL,4)}, {vr(CSA[0],4)}")
        e(f"v_mfma_f32_16x16x32_bf16 {vr(CSA[1],4)}, {vr(WF[b][1],4)}, {vr(SEL,4)}, {vr(CSA[1],4)}")
        e(f"v_mfma_f32_16x16x32_bf16 {vr(CSA[2],4)}, {vr(WF[b][2],4)}, {vr(SEL,4)}, {vr(CSA[2],4)}")
        assert not ex
    e("s_barrier")
    stamp(k, 15)
    for l in reads(0, 0, 0): e(l)
    step = 0
    for c in range(NC):
        if c == int(PARAM.get('ptc', 4)) and 'notouch1' not in EXP:
            for base in (WS_KF, WS_VF, WS_QF):
                for hh in range(2):
                    bg.extend([f"s_add_u32 s{sOffW}, s{sOffX}, {base + 65536*hh}",
                               f"buffer_load_dwordx4 {vr(DUM,4)}, v{vSt}, s[{SWS}:{SWS+3}], s{sOffW} offen"])
            bg.extend([f"s_lshl_b32 s{sOffW}, s{sTile}, 2", f"s_add_u32 s{sOffW}, s{sOffW}, {WS_KN}",
                       f"v_lshlrev_b32 v{DUM+4}, 8, v{vH}", f"buffer_load_dword v{DUM}, v{DUM+4}, s[{SWS}:{SWS+3}], s{sOffW} offen"])
        for s in range(4):
            b = step & 1
            if s < 3:
                e("s_waitcnt lgkmcnt(0)")
                compute(b, reads(c, s+1, b ^ 1))
            elif c + 1 < NC:
                e("s_waitcnt lgkmcnt(0)\ns_barrier")
                compute(b, reads(c+1, 0, b ^ 1))
            else:
                e("s_waitcnt lgkmcnt(0)\ns_barrier")
                compute(b, [])
            step += 1
    assert not bg
    stamp(k, 16)
    def p2(r): return f"v[{r}:{r+1}]"
    e(f"""v_mov_b32 v{a2}, {STAT + 512}
    ds_read_b32 v{DUM+6}, v{a2}
    ds_read_b32 v{AB}, v{a4}
    ds_read_b32 v{AB+2}, v{a4} offset:256""")
    AV = XF[0]
    for g in range(4): e(f"ds_read_b128 {vr(AV+4*g,4)}, v{a5} offset:{32*g}")
    for g in range(4): e(f"ds_read_b128 {vr(AV+16+4*g,4)}, v{a5} offset:{256+32*g}")
    e(f"""s_mov_b64 exec, s[{sEx}:{sEx+1}]
    ds_write_b128 v{a3}, {vr(CSA[0],4)}
    ds_write_b128 v{a3}, {vr(CSA[1],4)} offset:128
    ds_write_b128 v{a3}, {vr(CSA[2],4)} offset:256
    s_mov_b64 exec, -1
    ds_read_b32 v{vCsV}, v{a0} offset:256
    s_waitcnt lgkmcnt(12)
    v_readfirstlane_b32 s{sMode}, v{DUM+6}
    v_mov_b32 v{AB+1}, v{AB}
    v_mov_b32 v{AB+3}, v{AB+2}
    v_mul_f32 v{AB+4}, {QSCALE}, v{AB}
    v_mul_f32 v{AB+5}, {QSCALE}, v{AB}
    v_mul_f32 v{AB+6}, {QSCALE}, v{AB+2}
    v_mul_f32 v{AB+7}, {QSCALE}, v{AB+2}""")
    for g in range(4): e(f"ds_read_b128 {vr(EP+4*g,4)}, v{a1} offset:{32*g}")
    e(f"s_waitcnt lgkmcnt(4)\nv_mov_b32 v{vOnes}, v{vCsV}")
    for i in range(0, 16, 2):
        e(f"v_pk_mul_f32 {p2(AV+16+i)}, {p2(AV+16+i)}, {p2(vOnes)}")
        e(f"v_pk_fma_f32 {p2(ACC[2]+i)}, {p2(ACC[2]+i)}, {p2(AV+i)}, {p2(AV+16+i)}")
    for i in range(8): e(f"v_cvt_pk_bf16_f32 v{ACC[2]+i}, v{ACC[2]+2*i}, v{ACC[2]+2*i+1}")
    for g in range(4): e(f"ds_read_b128 {vr(AV+4*g,4)}, v{a1} offset:{128+32*g}")
    e(f"s_add_u32 s{sOffW}, s{sOffX}, {WS_VF}")
    hstore([f"buffer_store_dwordx4 {vr(ACC[2],4)}, v{vSt2}, s[{SWS}:{SWS+3}], s{sOffW} offen",
            f"buffer_store_dwordx4 {vr(ACC[2]+4,4)}, v{vSt2}, s[{SWS}:{SWS+3}], s{sOffW} offen offset:512"])
    e("s_waitcnt lgkmcnt(0)")
    n0, n1 = 16, 17
    for y in (1, 0):
        cs = AV if y == 1 else EP
        pa, pb = (AB, AB+2) if y == 1 else (AB+4, AB+6)
        for i in range(0, 16, 2):
            e(f"v_pk_mul_f32 {p2(cs+i)}, {p2(cs+i)}, {p2(pb)}")
            e(f"v_pk_fma_f32 {p2(ACC[y]+i)}, {p2(ACC[y]+i)}, {p2(pa)}, {p2(cs+i)}")
        for i in range(8): e(f"v_cvt_pk_bf16_f32 v{ACC[y]+i}, v{ACC[y]+2*i}, v{ACC[y]+2*i+1}")
        base = WS_QF if y == 0 else WS_KF
        e(f"s_add_u32 s{sOffW}, s{sOffX}, {base}\ns_add_u32 s{sW0}, s{sOffX}, {base + 65536}")
        hstore([f"buffer_store_dwordx4 {vr(ACC[y],4)}, v{vSt}, s[{SWS}:{SWS+3}], s{sOffW} offen",
                f"buffer_store_dwordx4 {vr(ACC[y]+4,4)}, v{vSt}, s[{SWS}:{SWS+3}], s{sW0} offen"])
        if y == 1:
            e(f"v_mov_b32 v{n0}, 0\nv_mov_b32 v{n1}, 0")
            for i in range(4):
                e(f"v_dot2_f32_bf16 v{n0}, v{ACC[1]+i}, v{ACC[1]+i}, v{n0}")
                e(f"v_dot2_f32_bf16 v{n1}, v{ACC[1]+4+i}, v{ACC[1]+4+i}, v{n1}")
            e(f"""s_nop 3
            v_permlane32_swap_b32 v{n0}, v{n1}
            s_nop 1
            v_add_f32 v{n0}, v{n0}, v{n1}
            s_nop 1
            v_max_f32_dpp v{n0}, v{n0}, v{n0} row_shr:1 row_mask:0xf bank_mask:0xf
            s_nop 1
            v_max_f32_dpp v{n0}, v{n0}, v{n0} row_shr:2 row_mask:0xf bank_mask:0xf
            s_nop 1
            v_max_f32_dpp v{n0}, v{n0}, v{n0} row_shr:4 row_mask:0xf bank_mask:0xf
            s_nop 1
            v_max_f32_dpp v{n0}, v{n0}, v{n0} row_shr:8 row_mask:0xf bank_mask:0xf
            s_nop 1
            v_max_f32_dpp v{n0}, v{n0}, v{n0} row_bcast:15 row_mask:0xa bank_mask:0xf
            v_lshlrev_b32 v{n1}, 8, v{vH}
            s_lshl_b32 s{sOffW}, s{sTile}, 2
            s_add_u32 s{sOffW}, s{sOffW}, {WS_KN}
            s_mov_b32 exec_lo, 0x80000000
            s_mov_b32 exec_hi, 0x80000000""")
            hstore([f"buffer_store_dword v{n0}, v{n1}, s[{SWS}:{SWS+3}], s{sOffW} offen"])
            e("s_mov_b64 exec, -1")
    f1base = [f"s_lshl_b32 s{sT0}, s{sHg}, 13", f"s_add_u32 s{sT0}, s{sT0}, {WS_FLAG + 3072}"]
    stamp(k, 17)
    e("s_waitcnt vmcnt(0)")
    arrive(f1base, sRb, 3, 4, "h1a")
    stamp(k, 18)
    e("s_barrier")
    e("s_branch L_p1_done")
    k.label("L_p1_helper")
    e(f"""v_lshrrev_b32 v{r}, 3, v{vLane}
    v_and_b32 v{cp}, 7, v{vLane}
    s_lshl_b32 s{sT0}, s{sRb}, 6
    s_lshl_b32 s{sT1}, s{sWave}, 4
    s_add_u32 s{sT0}, s{sT0}, s{sT1}
    s_add_u32 s{sCC}, s{sHg}, s{sRb}""")
    for par in range(2):
        e(f"""v_lshrrev_b32 v{t0}, 1, v{r}
        v_add_u32 v{t0}, {4*par}, v{t0}
        v_xor_b32 v{t0}, v{t0}, v{cp}
        v_lshlrev_b32 v{t0}, 4, v{t0}
        v_add_u32 v{t1}, {8*par}, v{r}
        v_add_u32 v{t1}, s{sT0}, v{t1}
        v_lshl_add_u32 v{vXo[par]}, v{t1}, 10, v{t0}""")
    e(f"""v_bfe_u32 v{t0}, v{r}, 1, 1
    v_lshlrev_b32 v{t0}, 2, v{t0}
    v_xor_b32 v{t0}, v{t0}, v{cp}
    v_lshlrev_b32 v{t0}, 4, v{t0}
    v_add_u32 v{t1}, s{sT1}, v{r}
    v_mul_u32_u24 v{t1}, 3072, v{t1}
    v_add_u32 v{t0}, v{t0}, v{t1}
    s_lshl_b32 s{sT1}, s{sHg}, 7
    v_add_u32 v{vWo}, s{sT1}, v{t0}
    s_lshl_b32 s{sM0}, s{sWave}, 11
    s_waitcnt lgkmcnt(0)""")
    srd(k, SX, 4, 2*MB); srd(k, SW, 6, 512*3072)
    def dma_chunk(c):
        slot = c % 4
        out = [f"s_and_b32 s{sCC}, s{sCC}, 7", f"s_lshl_b32 s{sOffX}, s{sCC}, 7", f"s_mul_i32 s{sW0}, s{sCC}, {64*3072}"]
        for par in range(2):
            out += [f"s_add_u32 m0, s{sM0}, {slot*8192 + par*1024}", f"s_nop 0",
                    f"buffer_load_dwordx4 v{vXo[par]}, s[{SX}:{SX+3}], s{sOffX} offen lds"]
            for y in range(3):
                out += [f"s_add_u32 m0, s{sM0}, {32768 + slot*24576 + y*8192 + par*1024}",
                        f"s_add_u32 s{sOffW}, s{sW0}, {y*1024 + par*8*3072}",
                        f"buffer_load_dwordx4 v{vWo}, s[{SW}:{SW+3}], s{sOffW} offen lds"]
        out.append(f"s_add_u32 s{sCC}, s{sCC}, 1")
        return out
    for c in range(2):
        for l in dma_chunk(c): e(l)
    issued = 2
    srd(k, SWS, 24, WS_SIZE)
    load_tokens()
    vSa = 8; SD = 28; ST = [16, 17, 18, 19]; UN = [40, 41, 42, 43]; vD, vDo = 44, 45
    e(f"""v_lshlrev_b32 v{vSa}, 5, v{vLane}
    v_add_u32 v{vSa}, s{sM0}, v{vSa}
    v_lshlrev_b32 v{vDo}, 2, v{vT}
    s_lshl_b32 s{sTile}, s{sHg}, 13
    s_add_u32 s{sTile}, s{sTile}, {WS_FLAG + 3584}
    s_waitcnt lgkmcnt(0)
    s_add_u32 s10, s10, 1
    s_add_u32 s11, s11, 1""")
    for i in range(4): e(f"v_mov_b32 v{ST[i]}, 0")
    for c in range(NC):
        extra = 1 if c in (6, 7) else 0
        e(f"s_waitcnt vmcnt({8*(issued-1-c) + extra})\ns_barrier")
        slot = c % 4
        e(f"""ds_read_b128 {vr(SD,4)}, v{vSa} offset:{slot*8192}
        ds_read_b128 {vr(SD+4,4)}, v{vSa} offset:{slot*8192+16}""")
        n = 0; dl = []
        while issued < NC and issued - (c-1) <= 4 and n < (2 if c == 0 else 1):
            dl += dma_chunk(issued); issued += 1; n += 1
        if c == 5:
            assert issued == NC
            e(f"""s_cmp_lg_u32 s{sWave}, 0
            s_cbranch_scc1 L_p1_d1
            buffer_load_dword v{vD}, v{vDo}, s[{SWS}:{SWS+3}], s{sTile} offen sc1
            s_branch L_p1_d2""")
            k.label("L_p1_d1")
            e(f"buffer_load_dword v{vD}, v{vDo}, s[{SX}:{SX+3}], 0 offen")
            k.label("L_p1_d2")
        va = []
        for i in range(8):
            lo, hi = UN[2*(i&1)], UN[2*(i&1)+1]
            va.append([f"v_lshlrev_b32 v{lo}, 16, v{SD+i}", f"v_and_b32 v{hi}, 0xffff0000, v{SD+i}", f"v_add_f32 v{ST[0]}, v{ST[0]}, v{lo}",
                       f"v_add_f32 v{ST[1]}, v{ST[1]}, v{hi}", f"v_fmac_f32 v{ST[2]}, v{lo}, v{lo}", f"v_fmac_f32 v{ST[3]}, v{hi}, v{hi}"])
        nld = 0; waited = False
        for l in dl:
            e(l)
            if "buffer_load" in l:
                nld += 1
                if nld >= 2 and va:
                    if not waited: e("s_waitcnt lgkmcnt(0)"); waited = True
                    for x_ in va.pop(0): e(x_)
        if not waited: e("s_waitcnt lgkmcnt(0)")
        for grp in va:
            for x_ in grp: e(x_)
    e(f"""v_add_f32 v{ST[0]}, v{ST[0]}, v{ST[1]}
    v_add_f32 v{ST[2]}, v{ST[2]}, v{ST[3]}
    s_nop 1
    v_add_f32_dpp v{ST[0]}, v{ST[0]}, v{ST[0]} quad_perm:[1,0,3,2] row_mask:0xf bank_mask:0xf
    v_add_f32_dpp v{ST[2]}, v{ST[2]}, v{ST[2]} quad_perm:[1,0,3,2] row_mask:0xf bank_mask:0xf
    s_nop 1
    v_add_f32_dpp v{ST[0]}, v{ST[0]}, v{ST[0]} quad_perm:[2,3,0,1] row_mask:0xf bank_mask:0xf
    v_add_f32_dpp v{ST[2]}, v{ST[2]}, v{ST[2]} quad_perm:[2,3,0,1] row_mask:0xf bank_mask:0xf
    s_nop 0
    v_mul_f32 v{ST[0]}, {1.0/512}, v{ST[0]}
    v_mul_f32 v{ST[2]}, {1.0/512}, v{ST[2]}
    v_fma_f32 v{ST[2]}, -v{ST[0]}, v{ST[0]}, v{ST[2]}
    v_max_f32 v{ST[2]}, 0, v{ST[2]}
    v_add_f32 v{ST[2]}, {1e-5}, v{ST[2]}
    v_rsq_f32 v{ST[1]}, v{ST[2]}
    v_lshrrev_b32 v{t0}, 2, v{vLane}
    v_lshlrev_b32 v{t0}, 2, v{t0}
    s_lshl_b32 s{sT0}, s{sWave}, 6
    s_add_u32 s{sT0}, s{sT0}, {STAT}
    v_add_u32 v{t0}, s{sT0}, v{t0}
    v_mul_f32 v{ST[3]}, v{ST[0]}, v{ST[1]}
    v_sub_f32 v{ST[3]}, 0, v{ST[3]}
    ds_write_b32 v{t0}, v{ST[1]}
    ds_write_b32 v{t0}, v{ST[3]} offset:256
    s_mov_b32 s{sCnt}, 0
    s_mov_b32 s{sMode}, 0
    s_cmp_lg_u32 s{sWave}, 0
    s_cbranch_scc1 L_p1_xskip
    s_branch L_p1_xchk""")
    k.label("L_p1_xpoll")
    e(f"""s_sleep 4
    buffer_load_dword v{vD}, v{vDo}, s[{SWS}:{SWS+3}], s{sTile} offen sc1
    s_add_u32 s{sCnt}, s{sCnt}, 1
    s_cmp_ge_u32 s{sCnt}, 0x40000
    s_cbranch_scc1 L_p1_xdone""")
    k.label("L_p1_xchk")
    e(f"""s_waitcnt vmcnt(0)
    s_lshl_b32 s{sT0}, s10, 4
    v_and_b32 v{t0}, -16, v{vD}
    v_cmp_ne_u32 vcc, s{sT0}, v{t0}
    s_cbranch_vccnz L_p1_xpoll
    s_add_u32 s{sT0}, s{sT0}, s{sXcc}
    v_cmp_ne_u32 vcc, s{sT0}, v{vD}
    s_cbranch_vccnz L_p1_xdone
    s_mov_b32 s{sMode}, 1""")
    k.label("L_p1_xdone")
    if 'forceslow' in EXP: e(f"s_mov_b32 s{sMode}, 0")
    e(f"""v_mov_b32 v{t0}, {STAT + 512}
    v_mov_b32 v{t1}, s{sMode}
    ds_write_b32 v{t0}, v{t1}""")
    k.label("L_p1_xskip")
    e(f"""v_mov_b32 v{t0}, {STAT + 512}
    s_waitcnt lgkmcnt(0)
    s_barrier
    ds_read_b32 v{t1}, v{t0}
    s_waitcnt lgkmcnt(0)
    v_readfirstlane_b32 s{sMode}, v{t1}""")
    poll(f1base, 32, "h1b")
    k.label("L_p1_done")
    stamp(k, 19)

def attention_phase(k, L):
    e = k.e
    SWS, SPF = L['SWS'], L['SW']
    sW8, sWave, sMode, sT0, sT1, sHo, sGo, sCnt = L['sW8'], L['sWave'], L['sMode'], L['sT0'], L['sT1'], L['sHo'], L['sGo'], L['sCnt']
    hstore = L['hstore']
    sHead, sQt, sOff, sLoop, sKh, sG0, sM0, sM0V, sXb, sXcc, sOo = 76, 77, 78, 79, 80, 81, 82, 83, 53, 54, 75
    vLane, vL16 = L['vLane'], L['vL16']
    vKa, vVa, vVb, vT0, vT1, vT2, vT3, vT4 = 5, 46, 47, 6, 7, 44, 45, 43
    QF = [8, 12]; KF = 16; VA = 20; VB = 24; P2 = [28, 112]; S = [48, 64]; O = [80, 128]; CI = [96, 144]
    PFD = 120
    vXp = 127
    e(f"""s_and_b32 s{sHead}, s2, 7
    s_lshl_b32 s{sXb}, s{sHead}, 13
    s_add_u32 s{sXb}, s{sXb}, {WS_FLAG + 3072}
    s_lshl_b32 s{sHead}, s{sHead}, 2
    s_bfe_u32 s{sT0}, s2, 0x20003
    s_add_u32 s{sHead}, s{sHead}, s{sT0}
    s_lshr_b32 s{sQt}, s2, 5
    s_lshl_b32 s{sQt}, s{sQt}, 3
    s_lshl_b32 s{sT0}, s{sWave}, 1
    s_add_u32 s{sQt}, s{sQt}, s{sT0}
    s_lshr_b32 s{sKh}, s{sW8}, 2
    s_lshl_b32 s{sT0}, s{sKh}, 5
    s_add_u32 s{sT0}, s{sT0}, s{sWave}
    s_lshl_b32 s{sM0}, s{sT0}, 10
    s_mul_i32 s{sM0V}, s{sT0}, {VST}
    s_lshl_b32 s{sG0}, s{sHead}, 16
    s_add_u32 s{sG0}, s{sG0}, s{sM0}
    s_lshl_b32 s{sT0}, s{sHead}, 6
    s_add_u32 s{sT1}, s{sT0}, s{sQt}
    s_lshl_b32 s{sT1}, s{sT1}, 10
    v_lshlrev_b32 v{vT0}, 2, v{vLane}
""")
    def dma(p, y):
        if y == 0: e(f"s_add_u32 m0, s{sM0}, {p*4096}")
        else: e(f"s_add_u32 m0, s{sM0V}, {65536 + p*4*VST}")
        e(f"""s_add_u32 s{sOff}, s{sG0}, {(WS_KF if y == 0 else WS_VF) + p*4096}
        buffer_load_dwordx4 v{vL16}, s[{SWS}:{SWS+3}], s{sOff} offen sc1 lds""")
    e(f"""buffer_load_dwordx4 {vr(QF[0],4)}, v{vL16}, s[{SWS}:{SWS+3}], s{sT1} offen sc1
    buffer_load_dwordx4 {vr(QF[1],4)}, v{vL16}, s[{SWS}:{SWS+3}], s{sT1} offen offset:1024 sc1
    s_lshl_b32 s{sT1}, s{sT0}, 2
    s_add_u32 s{sT1}, s{sT1}, {WS_KN}
    buffer_load_dword v{vT1}, v{vT0}, s[{SWS}:{SWS+3}], s{sT1} offen sc1""")
    dma(0, 0); dma(0, 1); dma(1, 0); dma(1, 1)
    e(f"""v_mov_b32 v{PFD}, 0x3f803f80
    v_mov_b32 v{PFD+1}, 0x3f803f80
    v_mov_b32 v{PFD+2}, 0x3f803f80
    v_mov_b32 v{PFD+3}, 0x3f803f80
    v_mul_u32_u24 v{vT2}, {VST}, v{vLane}
    v_add_u32 v{vT2}, {65536+1024}, v{vT2}
    ds_write_b128 v{vT2}, {vr(PFD,4)}
    v_bfe_u32 v{vT0}, v{vLane}, 5, 1
    v_and_b32 v{vT2}, 15, v{vLane}
    v_lshlrev_b32 v{vT2}, 4, v{vT2}
    v_lshl_add_u32 v{vT2}, v{vT0}, 8, v{vT2}
    v_add_u32 v{vT2}, 65536, v{vT2}
    v_add_u32 v{vT3}, 512, v{vT2}
    v_bfe_u32 v{vT0}, v{vLane}, 4, 1
    v_cmp_eq_u32 vcc, 1, v{vT0}
    v_mov_b32 v{vT0}, {65536+1024}
    s_nop 0
    v_cndmask_b32 v{vT2}, v{vT2}, v{vT0}, vcc
    v_cndmask_b32 v{vT3}, v{vT3}, v{vT0}, vcc
    s_lshl_b32 s{sT0}, s{sKh}, 15
    s_mul_i32 s{sT1}, s{sKh}, {32*VST}
    v_add_u32 v{vKa}, s{sT0}, v{vL16}
    v_add_u32 v{vVa}, s{sT1}, v{vT2}
    v_add_u32 v{vVb}, s{sT1}, v{vT3}""")
    for q in range(2):
        for i in range(16): e(f"v_mov_b32 v{O[q]+i}, 0")
    for i in range(4): e(f"v_mov_b32 v{P2[1]+4+i}, 0")
    for i in range(4): e(f"v_mov_b32 v{VB+i}, 0")
    e(f"""s_waitcnt vmcnt(4)
    v_mov_b32 v{vT0}, 0
    v_mov_b32 v{vT4}, 0
    v_max_f32_dpp v{vT1}, v{vT1}, v{vT1} row_shr:1 row_mask:0xf bank_mask:0xf
    v_dot2_f32_bf16 v{vT0}, v{QF[0]}, v{QF[0]}, v{vT0}
    v_dot2_f32_bf16 v{vT4}, v{QF[1]}, v{QF[1]}, v{vT4}
    v_max_f32_dpp v{vT1}, v{vT1}, v{vT1} row_shr:2 row_mask:0xf bank_mask:0xf
    v_dot2_f32_bf16 v{vT0}, v{QF[0]+1}, v{QF[0]+1}, v{vT0}
    v_dot2_f32_bf16 v{vT4}, v{QF[1]+1}, v{QF[1]+1}, v{vT4}
    v_max_f32_dpp v{vT1}, v{vT1}, v{vT1} row_shr:4 row_mask:0xf bank_mask:0xf
    v_dot2_f32_bf16 v{vT0}, v{QF[0]+2}, v{QF[0]+2}, v{vT0}
    v_dot2_f32_bf16 v{vT4}, v{QF[1]+2}, v{QF[1]+2}, v{vT4}
    v_max_f32_dpp v{vT1}, v{vT1}, v{vT1} row_shr:8 row_mask:0xf bank_mask:0xf
    v_dot2_f32_bf16 v{vT0}, v{QF[0]+3}, v{QF[0]+3}, v{vT0}
    v_dot2_f32_bf16 v{vT4}, v{QF[1]+3}, v{QF[1]+3}, v{vT4}
    v_max_f32_dpp v{vT1}, v{vT1}, v{vT1} row_bcast:15 row_mask:0xa bank_mask:0xf
    s_nop 1
    v_max_f32_dpp v{vT1}, v{vT1}, v{vT1} row_bcast:31 row_mask:0xc bank_mask:0xf
    v_mov_b32 v{CI[0]}, v{vT0}
    v_mov_b32 v{CI[1]}, v{vT4}
    s_nop 0
    v_readlane_b32 s{sT0}, v{vT1}, 63
    v_permlane32_swap_b32 v{vT0}, v{CI[0]}
    v_permlane32_swap_b32 v{vT4}, v{CI[1]}
    s_nop 1
    v_add_f32 v{vT0}, v{vT0}, v{CI[0]}
    v_add_f32 v{vT4}, v{vT4}, v{CI[1]}
    v_mul_f32 v{vT0}, s{sT0}, v{vT0}
    v_mul_f32 v{vT4}, s{sT0}, v{vT4}
    v_sqrt_f32 v{vT0}, v{vT0}
    v_sqrt_f32 v{vT4}, v{vT4}
    s_nop 0
    v_sub_f32 v{vT0}, 0, v{vT0}
    v_sub_f32 v{vT4}, 0, v{vT4}""")
    for i in range(16): e(f"v_mov_b32 v{CI[0]+i}, v{vT0}\nv_mov_b32 v{CI[1]+i}, v{vT4}")
    e(f"""s_waitcnt vmcnt(2) lgkmcnt(0)
    s_barrier""")
    stamp(k, 12)
    def rdK(t): e(f"ds_read_b128 {vr(KF,4)}, v{vKa} offset:{t*1024}")
    def rdVa(t): e(f"ds_read_b128 {vr(VA,4)}, v{vVa} offset:{t*VST}")
    def rdVb(t): e(f"ds_read_b128 {vr(VB,4)}, v{vVb} offset:{t*VST}")
    def unit(t, q, extra=None):
        s = S[q]; pc = P2[q]; pp = P2[q ^ 1]
        extra = list(extra or [])
        def x():
            if extra: e(extra.pop(0))
        e(f"v_exp_f32 v{s}, v{s}")
        e(f"v_exp_f32 v{s+1}, v{s+1}")
        e(f"v_mfma_f32_32x32x16_bf16 {vr(O[q^1],16)}, {vr(VB,4)}, {vr(pp+4,4)}, {vr(O[q^1],16)}")
        for j in range(2, 16):
            e(f"v_exp_f32 v{s+j}, v{s+j}")
            if q == 0:
                if j == 2: rdVb(t)
                if j == 7: rdK(t+1)
                if j == 11: e("s_waitcnt lgkmcnt(2)")
            else:
                if j == 5: e("s_waitcnt lgkmcnt(0)")
                if j == 13: rdVa(t+1)
            if j in (8, 9, 10): x()
            if j >= 3 and j % 2 == 1: e(f"v_cvt_pk_bf16_f32 v{pc+(j-3)//2}, v{s+j-3}, v{s+j-2}")
            if j == 6: e(f"v_mfma_f32_32x32x16_bf16 {vr(S[q^1],16)}, {vr(KF,4)}, {vr(QF[q^1],4)}, {vr(CI[q^1],16)}")
            if j == 12: e(f"v_mfma_f32_32x32x16_bf16 {vr(O[q],16)}, {vr(VA,4)}, {vr(pc,4)}, {vr(O[q],16)}")
        if q == 0: e("s_waitcnt lgkmcnt(1)")
        else: e("s_nop 0")
        e(f"v_cvt_pk_bf16_f32 v{pc+7}, v{s+14}, v{s+15}")
        while extra: x()
    def dma_lines(p, y):
        n0 = len(k.lines); dma(p, y); l = k.lines[n0:]; del k.lines[n0:]; return [x.strip() for x in l]
    rdK(0); rdVa(0)
    e(f"""s_waitcnt lgkmcnt(1)
    v_mfma_f32_32x32x16_bf16 {vr(S[0],16)}, {vr(KF,4)}, {vr(QF[0],4)}, {vr(CI[0],16)}
    s_nop 7
    s_nop 7""")
    NPEEL = 12
    pn = [0]
    def prio(p):
        if 'noprio' in EXP: return
        n = pn[0]; pn[0] += 1
        e(f"s_cmp_eq_u32 s{sKh}, 0\ns_cbranch_scc1 L_a_pr{n}\ns_setprio {p}")
        k.label(f"L_a_pr{n}")
    nd = 0
    for t in range(NPEEL):
        if t == 3: e(f"s_waitcnt vmcnt({nd})\ns_barrier")
        if t == 7: e(f"s_waitcnt vmcnt({nd-6})\ns_barrier")
        if t == 11: e(f"s_waitcnt vmcnt(0)\ns_barrier")
        if 'attst' in EXP and t in (3, 7, 11): stamp(k, 9 + (t-3)//4)
        for q in range(2):
            if q == 0 and t in (0, 3, 7, 11): prio(1)
            if q == 1 and t in (2, 6, 10): prio(0)
            ex = []
            if nd < 12: ex = dma_lines(2 + nd//2, nd & 1); nd += 1
            unit(t, q, ex)
    e(f"""v_add_u32 v{vKa}, {NPEEL*1024}, v{vKa}
    v_add_u32 v{vVa}, {NPEEL*VST}, v{vVa}
    v_add_u32 v{vVb}, {NPEEL*VST}, v{vVb}
    s_mov_b32 s{sLoop}, 0""")
    e(f"""s_lshl_b32 s{sT0}, s2, 3
    s_add_u32 s{sT0}, s{sT0}, s{sW8}
    s_lshl_b32 s{sT0}, s{sT0}, 10""")
    for (lo, size) in ((12, 512*3584), (16, 1792*1024), (8, 512*1024)):
        srd(k, SPF, lo, size)
        e(f"buffer_load_dwordx4 {vr(PFD,4)}, v{vL16}, s[{SPF}:{SPF+3}], s{sT0} offen")
    e(f"""s_add_u32 s{sOo}, s{sQt}, s{sKh}
    s_lshl_b32 s{sOo}, s{sOo}, 5
    s_add_u32 s{sOo}, s{sOo}, s{sHead}
    s_lshl_b32 s{sOo}, s{sOo}, 10
    s_add_u32 s{sOo}, s{sOo}, {WS_OF}
    s_cmp_ge_u32 s{sW8}, 4
    s_cbranch_scc1 L_a_ntouch
    v_and_b32 v{PFD+4}, 15, v{vLane}
    v_lshlrev_b32 v{PFD+4}, 7, v{PFD+4}
    buffer_load_dword v{PFD+6}, v{PFD+4}, s[{SWS}:{SWS+3}], s{sHo} offen
    v_and_b32 v{PFD+4}, 31, v{vLane}
    v_lshlrev_b32 v{PFD+4}, 7, v{PFD+4}
    v_lshrrev_b32 v{PFD+5}, 5, v{vLane}
    v_mul_u32_u24 v{PFD+5}, {112*1024}, v{PFD+5}
    v_add_u32 v{PFD+4}, v{PFD+4}, v{PFD+5}
    buffer_load_dword v{PFD+6}, v{PFD+4}, s[{SWS}:{SWS+3}], s{sGo} offen""")
    k.label("L_a_ntouch")
    k.label("L_a_loop")
    NB = 4
    if 'noprio' not in EXP:
        e(f"s_cmp_lg_u32 s{sLoop}, {int(PARAM.get('prsw', 4))}\ns_cbranch_scc1 L_a_prl\ns_setprio 0")
        k.label("L_a_prl")
    for t in range(NB):
        for q in range(2): unit(t, q)
    e(f"""v_add_u32 v{vKa}, {NB*1024}, v{vKa}
    v_add_u32 v{vVa}, {NB*VST}, v{vVa}
    v_add_u32 v{vVb}, {NB*VST}, v{vVb}
    s_add_u32 s{sLoop}, s{sLoop}, 1
    s_cmp_lt_u32 s{sLoop}, {(32-NPEEL)//NB}
    s_cbranch_scc1 L_a_loop
    v_mfma_f32_32x32x16_bf16 {vr(O[1],16)}, {vr(VB,4)}, {vr(P2[1]+4,4)}, {vr(O[1],16)}
    s_mul_i32 s{sT0}, s{sW8}, 3072
    s_add_u32 s{sT0}, s{sT0}, {XCH_LDS}
    s_xor_b32 s{sT1}, s{sW8}, 4
    s_mul_i32 s{sT1}, s{sT1}, 3072
    s_add_u32 s{sT1}, s{sT1}, {XCH_LDS}
    v_add_u32 v{vT0}, s{sT0}, v{vL16}
    v_add_u32 v{vT1}, s{sT1}, v{vL16}
    s_waitcnt lgkmcnt(0)
    s_nop 7""")
    stamp(k, 13)
    e(f"""s_cmp_lg_u32 s{sKh}, 0
    s_cbranch_scc1 L_a_x1""")
    for g in range(3): e(f"ds_write_b128 v{vT0}, {vr(O[1]+4*g,4)} offset:{1024*g}")
    e("s_branch L_a_x2")
    k.label("L_a_x1")
    for g in range(3): e(f"ds_write_b128 v{vT0}, {vr(O[0]+4*g,4)} offset:{1024*g}")
    e("s_nop 1")
    for i in range(9): e(f"v_mov_b32 v{O[0]+i}, v{O[1]+i}")
    for i in range(4): e(f"v_mov_b32 v{QF[0]+i}, v{QF[1]+i}")
    k.label("L_a_x2")
    e("s_waitcnt lgkmcnt(0)\ns_barrier")
    for g in range(3): e(f"ds_read_b128 {vr(S[0]+4*g,4)}, v{vT1} offset:{1024*g}")
    e("s_waitcnt lgkmcnt(0)")
    Oo = O[0]
    for i in range(9): e(f"v_add_f32 v{Oo+i}, v{Oo+i}, v{S[0]+i}")
    thr = 2.0**-64 if 'forcefb' not in EXP else 1e30
    e(f"""v_cmp_nle_f32 vcc, {hex(f2u(thr))}, v{Oo+8}
    s_cbranch_vccnz L_a_fallback
    v_mov_b32 v{vT1}, 0x7f000000
    v_cmp_nlt_f32 vcc, v{Oo+8}, v{vT1}
    s_cbranch_vccz L_a_out""")
    k.label("L_a_fallback")
    k.c("fallback (rare): the bound was too loose -> exact row max over all keys, then a plain two-pass softmax for this q-tile")
    C0 = CI[0]
    for i in range(16): e(f"v_mov_b32 v{C0+i}, 0")
    e(f"""v_mov_b32 v{vT0}, 0xff7fffff
    v_mov_b32 v{vKa}, v{vL16}
    s_mov_b32 s{sLoop}, 0""")
    k.label("L_a_fb1")
    e(f"""ds_read_b128 {vr(KF,4)}, v{vKa}
    s_waitcnt lgkmcnt(0)
    v_mfma_f32_32x32x16_bf16 {vr(S[0],16)}, {vr(KF,4)}, {vr(QF[0],4)}, {vr(C0,16)}
    s_nop 15
    s_nop 3""")
    for j in range(8): e(f"v_max3_f32 v{vT0}, v{vT0}, v{S[0]+2*j}, v{S[0]+2*j+1}")
    e(f"""v_add_u32 v{vKa}, 1024, v{vKa}
    s_add_u32 s{sLoop}, s{sLoop}, 1
    s_cmp_lt_u32 s{sLoop}, 64
    s_cbranch_scc1 L_a_fb1
    v_mov_b32 v{vT1}, v{vT0}
    s_nop 1
    v_permlane32_swap_b32 v{vT0}, v{vT1}
    s_nop 1
    v_max_f32 v{vT0}, v{vT0}, v{vT1}
    v_sub_f32 v{vT0}, 0, v{vT0}""")
    for i in range(16): e(f"v_mov_b32 v{C0+i}, v{vT0}\nv_mov_b32 v{Oo+i}, 0")
    e(f"""v_mov_b32 v{vKa}, v{vL16}
    v_mov_b32 v{vVa}, v{vT2}
    v_mov_b32 v{vVb}, v{vT3}
    s_mov_b32 s{sLoop}, 0""")
    k.label("L_a_fb2")
    e(f"""ds_read_b128 {vr(KF,4)}, v{vKa}
    ds_read_b128 {vr(VA,4)}, v{vVa}
    ds_read_b128 {vr(VB,4)}, v{vVb}
    s_waitcnt lgkmcnt(0)
    v_mfma_f32_32x32x16_bf16 {vr(S[0],16)}, {vr(KF,4)}, {vr(QF[0],4)}, {vr(C0,16)}
    s_nop 15
    s_nop 3""")
    for j in range(16): e(f"v_exp_f32 v{S[0]+j}, v{S[0]+j}")
    e("s_nop 0")
    for j in range(8): e(f"v_cvt_pk_bf16_f32 v{P2[0]+j}, v{S[0]+2*j}, v{S[0]+2*j+1}")
    e(f"""s_nop 1
    v_mfma_f32_32x32x16_bf16 {vr(Oo,16)}, {vr(VA,4)}, {vr(P2[0],4)}, {vr(Oo,16)}
    v_mfma_f32_32x32x16_bf16 {vr(Oo,16)}, {vr(VB,4)}, {vr(P2[0]+4,4)}, {vr(Oo,16)}
    v_add_u32 v{vKa}, 1024, v{vKa}
    v_add_u32 v{vVa}, {VST}, v{vVa}
    v_add_u32 v{vVb}, {VST}, v{vVb}
    s_add_u32 s{sLoop}, s{sLoop}, 1
    s_cmp_lt_u32 s{sLoop}, 64
    s_cbranch_scc1 L_a_fb2
    s_nop 15
    s_nop 3""")
    k.label("L_a_out")
    e(f"v_rcp_f32 v{vT0}, v{Oo+8}\ns_nop 0")
    for i in range(8): e(f"v_mul_f32 v{Oo+i}, v{Oo+i}, v{vT0}")
    for i in range(4): e(f"v_cvt_pk_bf16_f32 v{P2[0]+i}, v{Oo+2*i}, v{Oo+2*i+1}")
    e(f"buffer_store_dwordx4 {vr(P2[0],4)}, v{vL16}, s[{SWS}:{SWS+3}], s{sOo} offen sc1")
    e("s_barrier")
    stamp(k, 14)

LDS_ALL = 163840

def gen_main():
    NWS = int(PARAM.get('nws', 14)); NAS = 19 - NWS
    CSMODE = PARAM.get('cs', 'compute')
    WBASE, ABASE, SCRB = 0, NWS*8192, 19*8192
    k = K("sequential_preLN__mha_block__dense_activation_gelu__prompt_kernel", vgprs=240)
    e = k.e
    SWS, SW, SX, SB = 28, 32, 36, 40
    sWave, sA, sB_, sG, sJ, sRb, sCb = 44, 45, 46, 47, 48, 49, 50
    sM0A, sM0W, sOffA, sOffW, sT0, sT1, sA0, sHo, sGo, sCnt = 51, 52, 53, 54, 55, 56, 57, 58, 59, 26
    sEx = 84
    sW8, sMode = 27, 3
    vLane, vT, vH, vL16, vWo, vFl = 1, 2, 3, 4, 5, 6
    e(f"""s_cmp_ge_u32 s2, 256
    s_cbranch_scc1 L_t_end""")
    instr_start(k)
    e(f"""s_load_dwordx16 s[4:19], s[0:1], 0
    s_load_dwordx4 s[20:23], s[0:1], 64
    s_load_dwordx2 s[24:25], s[0:1], 80
    v_and_b32 v{vLane}, 63, v0
    v_lshrrev_b32 v10, 6, v0
    v_and_b32 v{vT}, 31, v0
    v_bfe_u32 v{vH}, v0, 5, 1
    v_readfirstlane_b32 s{sT1}, v10
    v_lshlrev_b32 v{vL16}, 4, v{vLane}
    s_and_b32 s{sG}, s2, 7
    s_lshl_b32 s{sG}, s{sG}, 1
    s_bfe_u32 s{sT0}, s2, 0x10003
    s_add_u32 s{sG}, s{sG}, s{sT0}
    s_lshr_b32 s{sJ}, s2, 4
    s_lshl_b32 s{sRb}, s{sG}, 1
    s_and_b32 s{sT0}, s{sJ}, 1
    s_add_u32 s{sRb}, s{sRb}, s{sT0}
    s_lshr_b32 s{sCb}, s{sJ}, 1
    s_mov_b32 s{sW8}, s{sT1}
    s_and_b32 s{sWave}, s{sT1}, 3
    s_and_b32 s{sA}, s{sWave}, 1
    s_lshr_b32 s{sB_}, s{sWave}, 1""")
    sTsub, sFsub = sA, sB_
    hs_n = [0]
    def hstore(lines):
        n = hs_n[0]; hs_n[0] += 1
        e(f"s_cmp_eq_u32 s{sMode}, 0\ns_cbranch_scc1 L_hs{n}_slow")
        for l in lines: e(l)
        e(f"s_branch L_hs{n}_done")
        k.label(f"L_hs{n}_slow")
        for l in lines: e(l + " sc1" if l.startswith("buffer_store") else l)
        k.label(f"L_hs{n}_done")
    e(f"""s_lshl_b32 s{sHo}, s{sRb}, 1
    s_add_u32 s{sHo}, s{sHo}, s{sTsub}
    s_lshl_b32 s{sHo}, s{sHo}, 5
    s_lshl_b32 s{sT0}, s{sCb}, 2
    s_add_u32 s{sHo}, s{sHo}, s{sT0}
    s_lshl_b32 s{sT0}, s{sFsub}, 1
    s_add_u32 s{sHo}, s{sHo}, s{sT0}
    s_lshl_b32 s{sHo}, s{sHo}, 10
    s_add_u32 s{sHo}, s{sHo}, {WS_HF}
    s_lshl_b32 s{sGo}, s{sG}, 2
    s_lshl_b32 s{sT1}, s{sA}, 1
    s_add_u32 s{sGo}, s{sGo}, s{sT1}
    s_mul_i32 s{sGo}, s{sGo}, 112
    s_lshl_b32 s{sT1}, s{sJ}, 3
    s_add_u32 s{sGo}, s{sGo}, s{sT1}
    s_lshl_b32 s{sT1}, s{sB_}, 2
    s_add_u32 s{sGo}, s{sGo}, s{sT1}
    s_lshl_b32 s{sGo}, s{sGo}, 10
    s_add_u32 s{sGo}, s{sGo}, {WS_GF}""")
    def fbase(off): return [f"s_lshl_b32 s{sT0}, s{sG}, 12", f"s_add_u32 s{sT0}, s{sT0}, {WS_FLAG + off}"]
    f2base = [f"s_and_b32 s{sT0}, s2, 7", f"s_lshl_b32 s{sT0}, s{sT0}, 13", f"s_add_u32 s{sT0}, s{sT0}, {WS_FLAG + 1024}"]
    f2pub = [f"s_lshr_b32 s{sT0}, s2, 5", f"s_lshl_b32 s{sT0}, s{sT0}, 13", f"s_add_u32 s{sT0}, s{sT0}, {WS_FLAG + 1024}"]
    vP0, vP1 = 228, 229
    def arrive(pub_base, sidx, cnt_idx, nwaves, lbl, slow=False, vp=None):
        a, b = vp if vp else (vP0, vP1)
        e(f"""v_mov_b32 v{a}, {CNT_LDS + 4*cnt_idx}
        v_mov_b32 v{b}, 1
        s_mov_b64 exec, 1
        ds_add_rtn_u32 v{b}, v{a}, v{b}
        s_waitcnt lgkmcnt(0)
        v_readfirstlane_b32 s{sT1}, v{b}
        s_mov_b64 exec, -1
        s_cmp_lg_u32 s{sT1}, {nwaves-1}
        s_cbranch_scc1 L_{lbl}_np""")
        for l in pub_base: e(l)
        e(f"""s_lshl_b32 s{sT1}, s{sidx}, 2
        s_add_u32 s{sT0}, s{sT0}, s{sT1}
        v_mov_b32 v{a}, 0
        v_mov_b32 v{b}, s{11 if slow else 10}
        s_mov_b64 exec, 1""")
        st_ = f"buffer_store_dword v{b}, v{a}, s[{SWS}:{SWS+3}], s{sT0} offen"
        if slow: e(st_ + " sc1")
        else: hstore([st_])
        e("s_mov_b64 exec, -1")
        k.label(f"L_{lbl}_np")
    def poll(poll_base, npoll, lbl): handoff_c(None, 0, poll_base, npoll, lbl)
    def handoff_c(pub_base, sidx, poll_base, npoll, lbl, slow=False):
        if poll_base is None: return
        e(f"""s_cmp_lg_u32 s{sWave}, 0
        s_cbranch_scc1 L_{lbl}_x""")
        for l in poll_base: e(l)
        e(f"""v_min_u32 v{vP0}, {npoll-1}, v{vLane}
        v_lshlrev_b32 v{vP0}, 2, v{vP0}
        s_mov_b32 s{sCnt}, 0""")
        k.label(f"L_{lbl}_p")
        e(f"""buffer_load_dword v{vP1}, v{vP0}, s[{SWS}:{SWS+3}], s{sT0} offen sc1
        s_add_u32 s{sCnt}, s{sCnt}, 1
        s_cmp_ge_u32 s{sCnt}, 0x100000
        s_cbranch_scc1 L_{lbl}_x
        s_waitcnt vmcnt(0)
        v_cmp_ne_u32 vcc, s10, v{vP1}
        s_cbranch_vccz L_{lbl}_x
        s_sleep {int(PARAM.get('sleep', 2))}
        s_branch L_{lbl}_p""")
        k.label(f"L_{lbl}_x")
        e("s_barrier")
    p1_phase(k, locals())
    attention_phase(k, locals())
    e(f"""s_cmp_ge_u32 s{sW8}, 4
    s_cbranch_scc1 L_t_loader""")
    vAa = 6; vWa = [7, 8]; vWb = [9, 10]
    t0, t1, t2, t3 = 12, 13, 14, 15
    RES = 16; BIA = 24
    AF = [32, 48]; WF = [64, 80]; ACC = 96; EP = 112
    HRES = 232; vRM = 231
    def p2(r): return f"v[{r}:{r+1}]"
    def unpack(dst, src):
        e(f"v_lshlrev_b32 v{dst}, 16, v{src}\nv_and_b32 v{dst+1}, 0xffff0000, v{src}")
    def woff(gw):
        x = WBASE + (gw % NWS)*8192
        return x >> 16, x & 65535
    def aoff(c): return (c % NAS)*8192
    def addr35():
        e(f"""s_lshl_b32 s{sT0}, s{sTsub}, 12
        s_add_u32 s{sT0}, s{sT0}, {ABASE}
        v_add_u32 v{vAa}, s{sT0}, v{vL16}
        v_and_b32 v{t0}, 15, v{vLane}
        v_lshrrev_b32 v{t1}, 2, v{t0}
        v_lshl_add_u32 v{t1}, v{vH}, 2, v{t1}
        v_lshlrev_b32 v{t1}, 7, v{t1}
        v_lshrrev_b32 v{t2}, 3, v{t0}
        v_xor_b32 v{t2}, s{sFsub}, v{t2}
        v_lshl_add_u32 v{t1}, v{t2}, 6, v{t1}
        v_bfe_u32 v{t2}, v{vLane}, 4, 1
        v_lshl_add_u32 v{t1}, v{t2}, 5, v{t1}
        v_and_b32 v{t2}, 3, v{t0}
        v_lshl_add_u32 v{vWa[0]}, v{t2}, 3, v{t1}
        v_add_u32 v{vWa[1]}, 65536, v{vWa[0]}""")
        for i in range(16): e(f"v_mov_b32 v{ACC+i}, 0")
    def loop35(NC, gw0, st0):
        def rd(c, s):
            b = c & 1; win, off = woff(gw0 + c)
            e(f"""ds_read_b128 {vr(AF[b]+4*s,4)}, v{vAa} offset:{aoff(c) + s*1024}
            ds_read_b64_tr_b16 {vr(WF[b]+4*s,2)}, v{vWa[win]} offset:{off + s*2048}
            ds_read_b64_tr_b16 {vr(WF[b]+4*s+2,2)}, v{vWa[win]} offset:{off + s*2048 + 1024}""")
        def mm(c, s):
            b = c & 1
            e(f"v_mfma_f32_32x32x16_bf16 {vr(ACC,16)}, {vr(WF[b]+4*s,4)}, {vr(AF[b]+4*s,4)}, {vr(ACC,16)}")
        if 'attst' not in EXP: stamp(k, st0)
        e("s_barrier")
        if 'attst' not in EXP: stamp(k, st0+1)
        for s in range(4): rd(0, s)
        for c in range(NC):
            if c + 1 < NC:
                e(f"s_waitcnt lgkmcnt(0)\ns_barrier")
                mm(c, 0); rd(c+1, 0); rd(c+1, 1)
                mm(c, 1); rd(c+1, 2); rd(c+1, 3)
                mm(c, 2); mm(c, 3)
            else:
                e("s_waitcnt lgkmcnt(0)")
                for s in range(4): mm(c, s)
        if 'attst' not in EXP: stamp(k, st0+2)
    def p5_compute(gw0):
        srd(k, SB, 18, 1024); srd(k, SX, 20, 2*MB)
        e(f"""v_lshlrev_b32 v{t1}, 3, v{vH}
        s_lshl_b32 s{sT0}, s{sCb}, 7
        s_lshl_b32 s{sT1}, s{sFsub}, 6
        s_add_u32 s{sT0}, s{sT0}, s{sT1}""")
        for g in range(4): e(f"buffer_load_dwordx2 {vr(BIA+2*g,2)}, v{t1}, s[{SB}:{SB+3}], s{sT0} offen offset:{16*g}")
        addr35()
        e("s_waitcnt vmcnt(0)")
        for i in range(8): unpack(EP+2*i, HRES+i)
        for i in range(8): unpack(AF[0]+2*i, BIA+i)
        for i in range(16): e(f"v_add_f32 v{ACC+i}, v{EP+i}, v{AF[0]+i}")
        handoff_c(None, 0, fbase(2048), 14, f"h4b{gw0}")
        loop35(28, gw0, 9)
        e("s_nop 7\ns_nop 3")
        for i in range(8): e(f"v_cvt_pk_bf16_f32 v{EP+i}, v{ACC+2*i}, v{ACC+2*i+1}")
        for g in range(4): e(f"buffer_store_dwordx2 {vr(EP+2*g,2)}, v{vRM}, s[{SX}:{SX+3}], 0 offen offset:{16*g}")
        instr_end(k, 0, SWS, AF[0])
        e("s_endpgm")
    e("s_waitcnt vmcnt(0)")
    arrive(f2pub, 76, 0, 8, "h2a", slow=True)
    CS = 160; BL = 192
    srd(k, SB, 14, 3584)
    e(f"""v_lshlrev_b32 v{t3}, 3, v{vH}
    v_lshlrev_b32 v{t2}, 4, v{vH}
    s_lshl_b32 s{sT0}, s{sJ}, 8
    s_lshl_b32 s{sT1}, s{sB_}, 7
    s_add_u32 s{sT0}, s{sT0}, s{sT1}
    s_lshl_b32 s{sT1}, s{sT0}, 1
    s_add_u32 s{sT1}, s{sT1}, {WS_CS}""")
    for fs in range(2):
        for g in range(4):
            e(f"buffer_load_dwordx2 {vr(BL+8*fs+2*g,2)}, v{t3}, s[{SB}:{SB+3}], s{sT0} offen offset:{64*fs + 16*g}")
    e(f"""s_lshl_b32 s{sT0}, s{sRb}, 6
    s_lshl_b32 s{sT1}, s{sTsub}, 5
    s_add_u32 s{sT0}, s{sT0}, s{sT1}
    v_add_u32 v{t0}, s{sT0}, v{vT}
    v_lshlrev_b32 v{t0}, 10, v{t0}
    v_lshlrev_b32 v{t1}, 3, v{vH}
    s_lshl_b32 s{sT0}, s{sCb}, 7
    s_lshl_b32 s{sT1}, s{sFsub}, 6
    s_add_u32 s{sT0}, s{sT0}, s{sT1}
    v_add_u32 v{t1}, s{sT0}, v{t1}
    v_add_u32 v{vRM}, v{t0}, v{t1}""")
    srd(k, SX, 4, 2*MB)
    for g in range(4): e(f"buffer_load_dwordx2 {vr(RES+2*g,2)}, v{vRM}, s[{SX}:{SX+3}], 0 offen offset:{16*g}")
    addr35()
    e(f"""s_lshl_b32 s{sOffA}, s{sCb}, 1
    s_add_u32 s{sOffA}, s{sOffA}, s{sFsub}
    s_lshl_b32 s{sOffA}, s{sOffA}, 11
    s_lshl_b32 s{sT1}, s{sRb}, 6
    s_add_u32 s{sOffA}, s{sOffA}, s{sT1}
    s_lshl_b32 s{sT1}, s{sTsub}, 5
    s_add_u32 s{sOffA}, s{sOffA}, s{sT1}
    s_lshl_b32 s{sOffA}, s{sOffA}, 3
    s_add_u32 s{sOffA}, s{sOffA}, {WS_ST}
    v_lshlrev_b32 v{t3}, 3, v{vT}
    v_lshl_add_u32 v{t3}, v{vH}, 2, v{t3}
    s_waitcnt vmcnt(0)""")
    for i in range(8): unpack(ACC+2*i, RES+i)
    handoff_c(None, 0, f2base, 32, "h2b")
    e(f"""s_cmp_ge_u32 s2, 8
    s_cbranch_scc1 L_t_ngen
    s_cmp_lg_u32 s{sWave}, 2
    s_cbranch_scc1 L_t_ngen
    s_lshl_b32 s{sT0}, s2, 13
    s_add_u32 s{sT0}, s{sT0}, {WS_GEN}
    v_mov_b32 v{vP0}, 0
    v_mov_b32 v{vP1}, s10
    s_mov_b64 exec, 1
    buffer_store_dword v{vP1}, v{vP0}, s[{SWS}:{SWS+3}], s{sT0} offen sc1
    s_mov_b64 exec, -1""")
    k.label("L_t_ngen")
    loop35(8, 0, 0)
    e("s_nop 7\ns_nop 3")
    for i in range(8): e(f"v_cvt_pk_bf16_f32 v{HRES+i}, v{ACC+2*i}, v{ACC+2*i+1}")
    hstore([f"buffer_store_dwordx4 {vr(HRES,4)}, v{vL16}, s[{SWS}:{SWS+3}], s{sHo} offen",
            f"buffer_store_dwordx4 {vr(HRES+4,4)}, v{vL16}, s[{SWS}:{SWS+3}], s{sHo} offen offset:1024"])
    e(f"v_pk_add_f32 {p2(EP)}, {p2(ACC)}, {p2(ACC+2)}\nv_pk_mul_f32 {p2(EP+2)}, {p2(ACC)}, {p2(ACC)}\nv_pk_fma_f32 {p2(EP+2)}, {p2(ACC+2)}, {p2(ACC+2)}, {p2(EP+2)}")
    for i in range(4, 16, 2):
        e(f"v_pk_add_f32 {p2(EP)}, {p2(EP)}, {p2(ACC+i)}\nv_pk_fma_f32 {p2(EP+2)}, {p2(ACC+i)}, {p2(ACC+i)}, {p2(EP+2)}")
    e(f"""v_add_f32 v{t0}, v{EP}, v{EP+1}
    v_add_f32 v{t1}, v{EP+2}, v{EP+3}
    s_nop 1
    v_permlane32_swap_b32 v{t0}, v{t1}
    s_nop 1
    v_add_f32 v{t0}, v{t0}, v{t1}""")
    hstore([f"buffer_store_dword v{t0}, v{t3}, s[{SWS}:{SWS+3}], s{sOffA} offen"])
    e("s_waitcnt vmcnt(0)")
    arrive(fbase(0), sJ, 1, 4, "h3a")
    stamp(k, 3)
    e(f"""s_cmp_ge_u32 s{sJ}, 14
    s_cbranch_scc1 L_t_c5b""")
    sTh, sFh = sA, sB_
    u0, u1, u2, u3 = 12, 13, 14, 15
    ACC4 = 96; CS = 160; BL = 192; PK = 208; CC = 216
    e(f"""s_lshl_b32 s{sT0}, s{sTh}, 12
    s_add_u32 s{sT0}, s{sT0}, {ABASE}
    v_add_u32 v{vAa}, s{sT0}, v{vL16}
    v_and_b32 v{u0}, 15, v{vLane}
    v_lshrrev_b32 v{u1}, 2, v{u0}
    v_lshl_add_u32 v{u2}, v{vH}, 2, v{u1}
    v_lshlrev_b32 v{u2}, 8, v{u2}
    v_bfe_u32 v{u3}, v{vLane}, 4, 1
    v_lshl_add_u32 v{u2}, v{u3}, 5, v{u2}
    v_and_b32 v{u3}, 3, v{u0}
    v_lshl_add_u32 v{u2}, v{u3}, 3, v{u2}
    s_lshl_b32 s{sT0}, s{sFh}, 1""")
    vW4 = [vWa, vWb]
    for fs in range(2):
        e(f"""s_add_u32 s{sT1}, s{sT0}, {fs}
        v_xor_b32 v{u3}, s{sT1}, v{u1}
        v_lshl_add_u32 v{vW4[fs][0]}, v{u3}, 6, v{u2}
        v_add_u32 v{vW4[fs][1]}, 65536, v{vW4[fs][0]}""")
    for i in range(64): e(f"v_mov_b32 v{ACC4+i}, 0")
    C0 = -2.0 * LOG2E * math.sqrt(2.0/math.pi)
    C1 = C0 * 0.044715
    e(f"""v_mov_b32 v{CC}, {hex(f2u(C0))}
    v_mov_b32 v{CC+1}, {hex(f2u(C0))}
    v_mov_b32 v{CC+2}, {hex(f2u(C1))}
    v_mov_b32 v{CC+3}, {hex(f2u(C1))}
    v_mov_b32 v{CC+4}, 1.0
    v_mov_b32 v{CC+5}, 1.0
    s_lshl_b32 s{sT0}, s{sTh}, 9
    s_add_u32 s{sT0}, s{sT0}, {SCRB}
    v_lshlrev_b32 v{u0}, 3, v{vT}
    v_add_u32 v{u0}, s{sT0}, v{u0}
    s_lshl_b32 s{sT0}, s{sFh}, 8
    s_add_u32 s{sT0}, s{sT0}, {SCRB + 3072}
    v_lshlrev_b32 v{u1}, 4, v{vH}
    v_add_u32 v{u1}, s{sT0}, v{u1}""")
    GW4 = 8
    SEL = 16; CSA = [20, 24]
    if CSMODE == 'compute':
        e(f"""v_and_b32 v{u2}, 15, v{vLane}
        v_bfe_u32 v{u3}, v{vLane}, 4, 1
        v_cmp_eq_u32 vcc, v{u2}, v{u3}
        v_cmp_gt_u32 s[{sEx}:{sEx+1}], 2, v{u2}
        v_lshrrev_b32 v{u3}, 4, v{vLane}
        v_lshlrev_b32 v{u3}, 4, v{u3}
        v_lshl_add_u32 v{u3}, v{u2}, 6, v{u3}
        s_lshl_b32 s{sT0}, s{sWave}, 8
        s_add_u32 s{sT0}, s{sT0}, {SCRB + 1024}
        v_add_u32 v{u3}, s{sT0}, v{u3}
        v_lshlrev_b32 v{u1}, 4, v{vH}
        v_add_u32 v{u1}, s{sT0}, v{u1}
        v_mov_b32 v28, 0
        v_mov_b32 v29, 0x3f803f80""")
        for i in range(4): e(f"v_cndmask_b32 v{SEL+i}, v28, v29, vcc")
        for i in range(8): e(f"v_mov_b32 v{CSA[0]+i}, 0")
    def cs4(c, s, fs):
        if CSMODE != 'compute': return
        b = c & 1
        e(f"v_mfma_f32_16x16x32_bf16 {vr(CSA[fs],4)}, {vr(WF[b]+8*s+4*fs,4)}, {vr(SEL,4)}, {vr(CSA[fs],4)}")
    def rdA(c, s, ts):
        b = c & 1
        e(f"ds_read_b128 {vr(AF[b]+8*s+4*ts,4)}, v{vAa} offset:{aoff(c) + ts*2048 + s*1024}")
    def rdW(c, s, fs):
        b = c & 1; win, off = woff(GW4 + c)
        e(f"""ds_read_b64_tr_b16 {vr(WF[b]+8*s+4*fs,2)}, v{vW4[fs][win]} offset:{off + s*4096}
        ds_read_b64_tr_b16 {vr(WF[b]+8*s+4*fs+2,2)}, v{vW4[fs][win]} offset:{off + s*4096 + 2048}""")
    def mm4(c, s, ts, fs):
        b = c & 1; a = ACC4 + 32*ts + 16*fs
        e(f"v_mfma_f32_32x32x16_bf16 {vr(a,16)}, {vr(WF[b]+8*s+4*fs,4)}, {vr(AF[b]+8*s+4*ts,4)}, {vr(a,16)}")
    handoff_c(None, 0, fbase(0), 16, "h3b")
    stamp(k, 4)
    e("s_barrier")
    stamp(k, 5)
    for s in range(2):
        for x in range(2): rdA(0, s, x); rdW(0, s, x)
    NC = 16
    for c in range(NC):
        last = c + 1 >= NC
        if not last:
            e(f"s_waitcnt lgkmcnt(0)\ns_barrier")
            if c % 2 == 0 and 'p4st' in EXP: stamp(k, 15 + c//2)
        else:
            e("s_waitcnt lgkmcnt(0)")
            e(f"ds_read_b64 {p2(PK)}, v{u0}\nds_read_b64 {p2(PK+4)}, v{u0} offset:256")
            if CSMODE == 'loader':
                for i in range(8): e(f"ds_read_b128 {vr(CS+4*i,4)}, v{u1} offset:{32*i}")
        if last:
            for s in range(2):
                for fs in range(2): cs4(c, s, fs)
        if last:
            for s in range(2):
                for fs in range(2):
                    for ts in range(2): mm4(c, s, ts, fs)
        else:
            mm4(c, 0, 0, 0); rdA(c+1, 0, 0); rdA(c+1, 0, 1)
            mm4(c, 0, 1, 0); rdW(c+1, 0, 0)
            cs4(c, 0, 0)
            mm4(c, 0, 0, 1); rdW(c+1, 0, 1)
            mm4(c, 0, 1, 1); rdA(c+1, 1, 0); rdA(c+1, 1, 1)
            cs4(c, 0, 1)
            mm4(c, 1, 0, 0); rdW(c+1, 1, 0)
            mm4(c, 1, 1, 0); rdW(c+1, 1, 1)
            cs4(c, 1, 0)
            mm4(c, 1, 0, 1)
            mm4(c, 1, 1, 1)
            cs4(c, 1, 1)
    if CSMODE == 'compute':
        e(f"""s_mov_b64 exec, s[{sEx}:{sEx+1}]
        ds_write_b128 v{u3}, {vr(CSA[0],4)}
        ds_write_b128 v{u3}, {vr(CSA[1],4)} offset:128
        s_mov_b64 exec, -1""")
        for i in range(8): e(f"ds_read_b128 {vr(CS+4*i,4)}, v{u1} offset:{32*i}")
    stamp(k, 6)
    EB = 64
    e("s_waitcnt vmcnt(0) lgkmcnt(0)")
    for ts in range(2):
        e(f"""v_mov_b32 v{PK+4*ts+2}, v{PK+4*ts+1}
        v_mov_b32 v{PK+4*ts+3}, v{PK+4*ts+1}
        v_mov_b32 v{PK+4*ts+1}, v{PK+4*ts}""")
    for i in range(16): unpack(EB+2*i, BL+i)
    TM = AF[0]
    for fs in range(2):
        for ts in range(2):
            a = ACC4 + 32*ts + 16*fs
            tm = TM + 16*ts
            for i in range(0, 16, 2): e(f"v_pk_fma_f32 {p2(tm+i)}, {p2(PK+4*ts+2)}, {p2(CS+16*fs+i)}, {p2(EB+16*fs+i)}")
            for i in range(0, 16, 2): e(f"v_pk_fma_f32 {p2(a+i)}, {p2(a+i)}, {p2(PK+4*ts)}, {p2(tm+i)}")
            for i in range(0, 16, 2): e(f"v_pk_mul_f32 {p2(tm+i)}, {p2(a+i)}, {p2(a+i)}")
            for i in range(0, 16, 2): e(f"v_pk_fma_f32 {p2(tm+i)}, {p2(tm+i)}, {p2(CC+2)}, {p2(CC)}")
            for i in range(0, 16, 2): e(f"v_pk_mul_f32 {p2(tm+i)}, {p2(tm+i)}, {p2(a+i)}")
            for i in range(16): e(f"v_exp_f32 v{tm+i}, v{tm+i}")
            for i in range(0, 16, 2): e(f"v_pk_add_f32 {p2(tm+i)}, {p2(tm+i)}, {p2(CC+4)}")
            for i in range(16): e(f"v_rcp_f32 v{tm+i}, v{tm+i}")
            for i in range(0, 16, 2): e(f"v_pk_mul_f32 {p2(a+i)}, {p2(a+i)}, {p2(tm+i)}")
            for i in range(8): e(f"v_cvt_pk_bf16_f32 v{a+i}, v{a+2*i}, v{a+2*i+1}")
            e(f"s_add_u32 s{sT1}, s{sGo}, {ts*112*1024 + fs*2048}")
            hstore([f"buffer_store_dwordx4 {vr(a,4)}, v{vL16}, s[{SWS}:{SWS+3}], s{sT1} offen",
                    f"buffer_store_dwordx4 {vr(a+4,4)}, v{vL16}, s[{SWS}:{SWS+3}], s{sT1} offen offset:1024"])
    stamp(k, 7)
    e("s_waitcnt vmcnt(0)")
    arrive(fbase(2048), sJ, 2, 4, "h4a")
    stamp(k, 8)
    p5_compute(24)
    k.label("L_t_c5b")
    p5_compute(8)
    k.label("L_t_loader")
    vWo35, vWo4, vOne, vPoll, vSo = 5, 7, 8, 9, 10
    SW3, SW4, SW5 = 32, 36, 40
    e(f"""v_lshrrev_b32 v{t0}, 3, v{vLane}
    v_and_b32 v{t1}, 7, v{vLane}
    v_bfe_u32 v{t2}, v{t0}, 1, 1
    v_lshlrev_b32 v{t2}, 2, v{t2}
    v_xor_b32 v{t2}, v{t2}, v{t1}
    v_lshlrev_b32 v{t2}, 4, v{t2}
    s_lshl_b32 s{sT0}, s{sWave}, 4
    v_add_u32 v{t0}, s{sT0}, v{t0}
    v_lshl_add_u32 v{t2}, v{t0}, 10, v{t2}
    s_lshl_b32 s{sT1}, s{sCb}, 7
    v_add_u32 v{vWo35}, s{sT1}, v{t2}
    v_lshrrev_b32 v{t0}, 4, v{vLane}
    v_and_b32 v{t1}, 15, v{vLane}
    v_lshlrev_b32 v{t2}, 2, v{t0}
    v_xor_b32 v{t2}, v{t2}, v{t1}
    v_lshlrev_b32 v{t2}, 4, v{t2}
    s_lshl_b32 s{sT0}, s{sWave}, 3
    v_add_u32 v{t0}, s{sT0}, v{t0}
    v_mul_u32_u24 v{t0}, 3584, v{t0}
    v_add_u32 v{t2}, v{t2}, v{t0}
    s_lshl_b32 s{sT1}, s{sJ}, 8
    v_add_u32 v{vWo4}, s{sT1}, v{t2}
    v_mov_b32 v{vOne}, 1
    s_lshl_b32 s{sM0W}, s{sWave}, 11""")
    srd(k, SW3, 8, 512*1024); srd(k, SW4, 12, 512*3584); srd(k, SW5, 16, 1792*1024)
    def setupA35(KS, ACT):
        e(f"""s_lshl_b32 s{sA0}, s{sRb}, 1
        s_add_u32 s{sA0}, s{sA0}, s{sTsub}
        s_mul_i32 s{sA0}, s{sA0}, {KS}
        s_lshl_b32 s{sT0}, s{sFsub}, 1
        s_add_u32 s{sA0}, s{sA0}, s{sT0}
        s_lshl_b32 s{sA0}, s{sA0}, 10
        s_add_u32 s{sA0}, s{sA0}, {ACT}
        s_lshl_b32 s{sM0A}, s{sTsub}, 12
        s_lshl_b32 s{sT0}, s{sFsub}, 11
        s_add_u32 s{sM0A}, s{sM0A}, s{sT0}""")
    def setupA4():
        e(f"""s_lshl_b32 s{sA0}, s{sG}, 2
        s_add_u32 s{sA0}, s{sA0}, s{sWave}
        s_lshl_b32 s{sA0}, s{sA0}, 15
        s_add_u32 s{sA0}, s{sA0}, {WS_HF}
        s_lshl_b32 s{sM0A}, s{sWave}, 11""")
    class LS: pass
    vCa = [48, 49, 50, 51]; vCb = [52, 53, 54, 55]; LSEL = 56; LCS = 60; LF = 80
    def colsum_setup():
        e(f"""v_and_b32 v{t0}, 15, v{vLane}
        v_lshrrev_b32 v{t1}, 2, v{t0}
        v_lshl_add_u32 v{t2}, v{vH}, 2, v{t1}
        s_lshl_b32 s{sT0}, s{sWave}, 3
        v_add_u32 v{t2}, s{sT0}, v{t2}
        v_lshlrev_b32 v{t2}, 8, v{t2}
        v_bfe_u32 v{t3}, v{vLane}, 4, 1
        v_lshl_add_u32 v{t2}, v{t3}, 5, v{t2}
        v_cmp_eq_u32 vcc, v{t0}, v{t3}
        v_and_b32 v{t3}, 3, v{t0}
        v_lshl_add_u32 v{t2}, v{t3}, 3, v{t2}""")
        for q in range(4):
            e(f"""v_xor_b32 v{t3}, {q}, v{t1}
            v_lshl_add_u32 v{vCa[q]}, v{t3}, 6, v{t2}
            v_add_u32 v{vCb[q]}, 65536, v{vCa[q]}""")
        e(f"v_mov_b32 v{t0}, 0\nv_mov_b32 v{t1}, 0x3f803f80")
        for i in range(4): e(f"v_cndmask_b32 v{LSEL+i}, v{t0}, v{t1}, vcc")
        for i in range(16): e(f"v_mov_b32 v{LCS+i}, 0")
    def colsum_pairs(st, gw4, waitfor, upto):
        if not hasattr(st, 'csn'):
            st.csn = 0; colsum_setup()
        while st.csn < 16 and gw4 + st.csn + 1 < upto:
            c = st.csn
            e(f"s_waitcnt vmcnt({waitfor([('W', gw4 + c), ('W', gw4 + c + 1)])})")
            for q in range(4):
                for d in range(2):
                    win, off = woff(gw4 + c + d)
                    e(f"ds_read_b64_tr_b16 {vr(LF+4*q+2*d,2)}, v{(vCa, vCb)[win][q]} offset:{off}")
            for q in range(4):
                e(f"s_waitcnt lgkmcnt({6-2*q})")
                e(f"v_mfma_f32_16x16x32_bf16 {vr(LCS+4*q,4)}, {vr(LF+4*q,4)}, {vr(LSEL,4)}, {vr(LCS+4*q,4)}")
            st.csn += 2
    def colsum_publish():
        e(f"""s_lshl_b32 s{sT0}, s{sWave}, 9
        s_add_u32 s{sT0}, s{sT0}, {SCRB + 1024}
        v_and_b32 v{t0}, 15, v{vLane}
        v_lshrrev_b32 v{t1}, 4, v{vLane}
        v_lshlrev_b32 v{t1}, 4, v{t1}
        v_lshl_add_u32 v{t1}, v{t0}, 6, v{t1}
        v_add_u32 v{t1}, s{sT0}, v{t1}
        v_cmp_gt_u32 vcc, 2, v{t0}
        s_nop 4
        s_and_saveexec_b64 s[{sEx}:{sEx+1}], vcc""")
        for q in range(4): e(f"ds_write_b128 v{t1}, {vr(LCS+4*q,4)} offset:{128*q}")
        e(f"s_mov_b64 exec, s[{sEx}:{sEx+1}]\ns_waitcnt lgkmcnt(0)")
    def colsum_combine():
        e(f"""s_lshl_b32 s{sT0}, s{sWave}, 7
        s_add_u32 s{sT0}, s{sT0}, {SCRB + 1024}
        v_lshlrev_b32 v{t0}, 2, v{vT}
        v_add_u32 v{t0}, s{sT0}, v{t0}
        ds_read_b32 v{LF}, v{t0}
        ds_read_b32 v{LF+1}, v{t0} offset:512
        ds_read_b32 v{LF+2}, v{t0} offset:1024
        ds_read_b32 v{LF+3}, v{t0} offset:1536
        s_waitcnt lgkmcnt(0)
        v_add_f32 v{LF}, v{LF}, v{LF+1}
        v_add_f32 v{LF+2}, v{LF+2}, v{LF+3}
        v_add_f32 v{LF}, v{LF}, v{LF+2}
        ds_write_b32 v{t0}, v{LF} offset:2048
        s_waitcnt lgkmcnt(0)""")
    def loader_program(phases, tag):
        st = LS(); st.ops = []; st.issW = 0; st.consW = 0
        wl = []
        for (nm, nc) in phases: wl += [(nm, c) for c in range(nc)]
        def issueW(maxn):
            n = 0
            while st.issW < len(wl) and st.issW - st.consW < NWS and n < maxn:
                nm, c = wl[st.issW]
                slot = st.issW % NWS
                vo, srdw, cs, half = {'p3': (vWo35, SW3, 65536, 8192), 'p4': (vWo4, SW4, 32*3584, 4*3584), 'p5': (vWo35, SW5, 65536, 8192)}[nm]
                e(f"""s_add_u32 m0, s{sM0W}, {WBASE + slot*8192}
                s_mov_b32 s{sOffW}, {c*cs}
                buffer_load_dwordx4 v{vo}, s[{srdw}:{srdw+3}], s{sOffW} offen lds
                s_add_u32 m0, s{sM0W}, {WBASE + slot*8192 + 1024}
                s_mov_b32 s{sOffW}, {c*cs + half}
                buffer_load_dwordx4 v{vo}, s[{srdw}:{srdw+3}], s{sOffW} offen lds""")
                st.ops += [('W', st.issW)]*2; st.issW += 1; n += 1
        def issueA(nm, c):
            stride = 2048 if nm == 'p4' else 4096
            e(f"""s_add_u32 m0, s{sM0A}, {ABASE + (c % NAS)*8192}
            s_add_u32 s{sOffA}, s{sA0}, {c*stride}
            buffer_load_dwordx4 v{vL16}, s[{SWS}:{SWS+3}], s{sOffA} offen sc1 lds
            buffer_load_dwordx4 v{vL16}, s[{SWS}:{SWS+3}], s{sOffA} offen offset:1024 sc1 lds""")
            st.ops += [('A', nm, c)]*2
        def waitfor(keys):
            idx = [i for i, x in enumerate(st.ops) if x in keys]
            n = len(st.ops) - 1 - max(idx) if idx else 63
            return min(n, 63)
        gw = 0
        for pi, (nm, NC) in enumerate(phases):
            if nm == 'p3':
                setupA35(32, WS_OF)
                e("s_waitcnt vmcnt(0)")
                arrive(f2pub, 76, 0, 8, f"h2l{tag}", slow=True, vp=(vOne, vPoll))
                issueW(int(PARAM.get('w0', 8)))
                stamp(k, 4)
                e("s_barrier")
                stamp(k, 5)
            elif nm == 'p4':
                setupA4()
                e("s_barrier")
                st.consW = gw
                stamp(k, 1)
            else:
                setupA35(112, WS_GF)
                e("s_barrier")
                st.consW = gw
                stamp(k, 3)
            issA = 0
            for c in range(int(PARAM.get('a0', 2))):
                issueA(nm, c); issA += 1
                if st.issW <= gw + c: issueW(1)
            def stats_loads():
                e(f"""s_lshl_b32 s{sT0}, s{sG}, 7
                s_lshl_b32 s{sT1}, s{sWave}, 5
                s_add_u32 s{sT0}, s{sT0}, s{sT1}
                s_lshl_b32 s{sT0}, s{sT0}, 3
                s_add_u32 s{sT0}, s{sT0}, {WS_ST}
                v_lshlrev_b32 v{vSo}, 3, v{vT}
                v_lshl_add_u32 v{t0}, v{vH}, 17, v{vSo}""")
                for j in range(8):
                    e(f"s_add_u32 s{sT1}, s{sT0}, {j*16384}")
                    e(f"buffer_load_dwordx2 {vr(32+2*j,2)}, v{t0}, s[{SWS}:{SWS+3}], s{sT1} offen sc1")
                    st.ops.append(('S', j))
            for c in range(NC):
                e(f"s_waitcnt vmcnt({waitfor([('A', nm, c), ('W', gw + c)])})\ns_barrier")
                st.consW = gw + c
                while issA < NC and issA - (c - 1) <= NAS: issueA(nm, issA); issA += 1
                if nm == 'p4' and c == 1: stats_loads()
                side = nm == 'p4' and ((c == 5) or (CSMODE == 'loader' and c in (5, 6, 7, 9)))
                need = max(0, gw + c + int(PARAM.get('wlook', 4)) + 1 - st.issW)
                lim = gw + NC + int(PARAM.get('wahead' + nm[1], 0))
                opt = 0 if side else min(1, max(0, lim - st.issW))
                issueW(max(min(need, max(0, len(wl) - st.issW), max(0, gw + NC - st.issW)), opt))
                if nm == 'p4' and CSMODE == 'loader':
                    if c == 6:
                        colsum_pairs(st, gw, waitfor, upto=st.issW)
                        assert st.csn == 16
                    if c == 7: colsum_publish()
                    if c == 9: colsum_combine()
                if nm == 'p4' and c == 5:
                    b0 = 32
                    e(f"s_waitcnt vmcnt({waitfor([('S', 7)])})")
                    for j in range(1, 8): e(f"v_pk_add_f32 {p2(b0)}, {p2(b0)}, {p2(b0+2*j)}")
                    for q in range(2):
                        e(f"""v_mov_b32 v{t1}, v{b0+q}
                        s_nop 1
                        v_permlane32_swap_b32 v{b0+q}, v{t1}
                        s_nop 1
                        v_add_f32 v{b0+q}, v{b0+q}, v{t1}""")
                    e(f"""v_mul_f32 v{t1}, {1.0/512}, v{b0}
                    v_mul_f32 v{t2}, {1.0/512}, v{b0+1}
                    v_fma_f32 v{t2}, -v{t1}, v{t1}, v{t2}
                    v_max_f32 v{t2}, 0, v{t2}
                    v_add_f32 v{t2}, {1e-5}, v{t2}
                    v_rsq_f32 v{b0+2}, v{t2}
                    s_lshl_b32 s{sT0}, s{sWave}, 8
                    s_add_u32 s{sT0}, s{sT0}, {SCRB}
                    v_mul_f32 v{b0+3}, v{t1}, v{b0+2}
                    v_sub_f32 v{b0+3}, 0, v{b0+3}
                    v_add_u32 v{vSo}, s{sT0}, v{vSo}
                    ds_write_b64 v{vSo}, {p2(b0+2)}
                    s_waitcnt lgkmcnt(0)""")
            gw += NC
            if pi + 1 < len(phases):
                issueW(max(0, gw + int(PARAM.get('wpost' + nm[1], 4 if nm == 'p3' else NWS)) - st.issW))
                if phases[pi+1][0] == 'p4' and CSMODE == 'loader':
                    colsum_pairs(st, gw, waitfor, upto=st.issW)
                st.consW_next = gw
        instr_end(k, 0, SWS, AF[0])
        e("s_endpgm")
    e(f"""s_cmp_ge_u32 s{sJ}, 14
    s_cbranch_scc1 L_t_lb""")
    loader_program([('p3', 8), ('p4', 16), ('p5', 28)], "a")
    k.label("L_t_lb")
    loader_program([('p3', 8), ('p5', 28)], "b")
    k.label("L_t_end")
    e("s_endpgm")
    return k, (256, 512, LDS_ALL)

def main():
    if "--instr" in sys.argv: gen.INSTR = True; sys.argv.remove("--instr")
    for a in list(sys.argv):
        if a.startswith("--exp="): EXP.update(a[6:].split(",")); sys.argv.remove(a)
        if a.startswith("--p="):
            for kv in a[4:].split(","): PARAM[kv.split(":")[0]] = kv.split(":")[1]
            sys.argv.remove(a)
    gen.ZERO_FLAGS1 = WS_FLAG
    import subprocess, re
    fn = sys.argv[1] if len(sys.argv) > 1 else "out5.s"
    for it in range(2):
        ks = [gen_main()]
        hdr = open("cdna_kernels/" + NAME + ".s.ref").read().split("; Override launch")[0]
        out = hdr
        for k, (g, b, lds) in ks:
            out += f"; @launch kernel={k.name} grid=({g},1,1) block=({b},1,1) lds={lds}\n"
        out += '.amdgcn_target "amdgcn-amd-amdhsa--gfx950"\n.text\n'
        for k, _ in ks: out += k.text()
        out += '.section .rodata,"a"\n'
        for k, _ in ks: out += k.kd()
        open(fn, "w").write(out)
        subprocess.check_call(["clang", "-x", "assembler", "-target", "amdgcn-amd-amdhsa", "-mcpu=gfx950", "-c", fn, "-o", "_chk.o"])
        h = subprocess.check_output(["llvm-objdump", "-h", "_chk.o"]).decode()
        sz = int(re.search(r"\.text\s+([0-9a-f]+)", h).group(1), 16)
        if it == 0: gen.CODE_KB = sz // 4096 * 4
    assert sz >= gen.CODE_KB * 1024, ("code prefetch would run past .text", sz)
    print(fn, "text bytes", sz, "prefetch KB", gen.CODE_KB)

if __name__ == "__main__":
    main()
```

```python
import sys, math
import gen
from gen import *

WS_FLAG = 6*MB + 65536

VST = 1056
CNT_LDS = 163840 - 64
WS_GEN = 6*MB + 65536 + 512
XCH_LDS = 65536 + 64*VST + 3072
LDS_MAIN = XCH_LDS + 8*3072

def p1_phase(k, L):
    e = k.e
    SWS, SW, SX, SD_ = L['SWS'], L['SW'], L['SX'], L['SB']
    sW8, sWave, sTsub, sP, sMode, sT0, sT1, sCnt, sEx = L['sW8'], L['sWave'], L['sA'], L['sB_'], L['sMode'], L['sT0'], L['sT1'], L['sCnt'], L['sEx']
    sG, sJ = L['sG'], L['sJ']
    hstore, arrive, poll = L['hstore'], L['arrive'], L['poll']
    sM0, sCC, sOffX, sOffW, sW0, sTile, sHg, sRb, sXcc = 51, 52, 53, 54, 57, 75, 76, 77, 78
    vLane, vT, vH, vL16 = L['vLane'], L['vT'], L['vH'], L['vL16']
    vXo = [5, 6]; vWo = 7
    vXa = [8, 9, 10, 11]; vWa = [12, 13]
    vOnes = 14; vCsV = 15
    vTmp = [20, 21, 22, 23, 24, 25, 26, 27]
    XF = [28, 32]; WF = [[36, 40, 44], [48, 52, 56]]
    ACC = [64, 80, 96]; EP = 112; CSA = [128, 132, 136]; AB = 140; SEL = 148
    DUM = 152
    NC = 8
    STAT = 32768 + 2*24576 + 8192
    SCR = 32768 + 2*24576
    e(f"""s_and_b32 s{sHg}, s2, 7
    s_lshr_b32 s{sRb}, s2, 3
    s_getreg_b32 s{sXcc}, hwreg(HW_REG_XCC_ID)
    s_and_b32 s{sXcc}, s{sXcc}, 15
    s_cmp_ge_u32 s{sW8}, 4
    s_cbranch_scc1 L_p1_helper""")
    r, cp, t0, t1 = vTmp[0], vTmp[1], vTmp[2], vTmp[3]
    def load_tokens():
        e(f"""s_lshl_b32 s{sT0}, s{sHg}, 13
        s_add_u32 s{sT0}, s{sT0}, {WS_GEN}
        s_lshr_b32 s{sT1}, s2, 5
        s_lshl_b32 s{sT1}, s{sT1}, 13
        s_add_u32 s{sT1}, s{sT1}, {WS_GEN}
        s_load_dword s10, s[24:25], s{sT0}
        s_load_dword s11, s[24:25], s{sT1}""")
    e(f"""s_lshl_b32 s{sT0}, s{sTsub}, 5
    v_add_u32 v{t0}, s{sT0}, v{vT}
    v_bfe_u32 v{t1}, v{t0}, 1, 3""")
    for s in range(4):
        e(f"""v_add_u32 v{r}, {2*s}, v{vH}
        v_xor_b32 v{r}, v{r}, v{t1}
        v_lshlrev_b32 v{r}, 4, v{r}
        v_lshl_add_u32 v{vXa[s]}, v{t0}, 7, v{r}""")
    e(f"""v_and_b32 v{t0}, 15, v{vLane}
    v_lshrrev_b32 v{t1}, 2, v{t0}
    v_lshl_add_u32 v{t1}, v{vH}, 3, v{t1}
    v_lshlrev_b32 v{t1}, 7, v{t1}
    v_lshrrev_b32 v{r}, 3, v{t0}
    v_xor_b32 v{r}, s{sP}, v{r}
    v_lshl_add_u32 v{t1}, v{r}, 6, v{t1}
    v_bfe_u32 v{r}, v{vLane}, 4, 1
    v_lshl_add_u32 v{t1}, v{r}, 5, v{t1}
    v_and_b32 v{r}, 3, v{t0}
    v_lshl_add_u32 v{t1}, v{r}, 3, v{t1}
    v_add_u32 v{vWa[0]}, 32768, v{t1}
    v_add_u32 v{vWa[1]}, {32768+49152}, v{t1}
    v_mov_b32 v{vOnes}, 0x3f803f80
    v_bfe_u32 v{t1}, v{vLane}, 4, 1
    v_cmp_eq_u32 vcc, v{t0}, v{t1}
    v_mov_b32 v{t0}, 0
    s_nop 1""")
    for i in range(4): e(f"v_cndmask_b32 v{SEL+i}, v{t0}, v{vOnes}, vcc")
    for i in range(12): e(f"v_mov_b32 v{128+i}, 0")
    for y in range(3):
        for i in range(16): e(f"v_mov_b32 v{ACC[y]+i}, 0")
    a0, a1, a2, a3 = vTmp[0], vTmp[1], vTmp[2], vTmp[3]
    vSt = vL16; vSt2 = vTmp[7]; a4 = vTmp[4]; a5 = vTmp[5]
    e(f"""s_lshl_b32 s{sT0}, s{sWave}, 10
    s_add_u32 s{sT0}, s{sT0}, {SCR}
    v_lshlrev_b32 v{a0}, 2, v{vT}
    s_lshl_b32 s{sT1}, s{sTsub}, 7
    s_add_u32 s{sT1}, s{sT1}, {STAT}
    v_add_u32 v{a4}, s{sT1}, v{a0}
    v_add_u32 v{a0}, s{sT0}, v{a0}
    v_lshlrev_b32 v{a1}, 4, v{vH}
    v_add_u32 v{a5}, s{sT1}, v{a1}
    v_add_u32 v{a1}, s{sT0}, v{a1}
    v_and_b32 v{a2}, 15, v{vLane}
    v_lshrrev_b32 v{a3}, 4, v{vLane}
    v_lshlrev_b32 v{a3}, 4, v{a3}
    v_lshl_add_u32 v{a3}, v{a2}, 6, v{a3}
    v_add_u32 v{a3}, s{sT0}, v{a3}
    v_cmp_gt_u32 s[{sEx}:{sEx+1}], 2, v{a2}
    s_lshl_b32 s{sTile}, s{sHg}, 2
    s_lshl_b32 s{sOffW}, s{sP}, 1
    s_add_u32 s{sTile}, s{sTile}, s{sOffW}
    s_lshl_b32 s{sTile}, s{sTile}, 6
    s_lshl_b32 s{sOffW}, s{sRb}, 1
    s_add_u32 s{sTile}, s{sTile}, s{sOffW}
    s_add_u32 s{sTile}, s{sTile}, s{sTsub}
    s_lshl_b32 s{sOffX}, s{sTile}, 10
    v_lshrrev_b32 v{a2}, 4, v{vT}
    v_lshlrev_b32 v{a2}, 16, v{a2}
    v_lshl_add_u32 v{a2}, v{vH}, 8, v{a2}
    v_and_b32 v{vSt2}, 15, v{vT}
    v_lshl_add_u32 v{vSt2}, v{vSt2}, 4, v{a2}
    v_mov_b32 v{a2}, {CNT_LDS}
    ds_write_b128 v{a2}, {vr(ACC[0],4)}
    s_waitcnt lgkmcnt(0)""")
    srd(k, SWS, 24, WS_SIZE)
    load_tokens()
    e(f"""s_lshr_b32 s{sT0}, s2, 3
    s_cmp_ge_u32 s{sT0}, {gen.CODE_KB//4}
    s_cbranch_scc1 L_p1_npf
    s_lshl_b32 s{sT0}, s{sT0}, 2
    s_add_u32 s{sT0}, s{sT0}, s{sWave}
    s_lshl_b32 s{sT0}, s{sT0}, 10
    s_getpc_b64 s[82:83]""")
    k.label("L_p1_pc")
    e(f"""s_sub_u32 s82, s82, L_p1_pc-{k.name}
    s_subb_u32 s83, s83, 0
    s_add_u32 s82, s82, s{sT0}
    s_addc_u32 s83, s83, 0
    global_load_dwordx4 {vr(DUM,4)}, v{vSt}, s[82:83]""")
    k.label("L_p1_npf")
    e(f"""s_waitcnt lgkmcnt(0)
    s_add_u32 s10, s10, 1
    s_add_u32 s11, s11, 1
    s_cmp_lg_u32 s{sWave}, 0
    s_cbranch_scc1 L_p1_nz
    s_lshl_b32 s{sT0}, s{sHg}, 13
    s_lshl_b32 s{sT1}, s{sRb}, 2
    s_add_u32 s{sT0}, s{sT0}, s{sT1}
    s_add_u32 s{sT0}, s{sT0}, {WS_FLAG + 3584}
    s_lshl_b32 s{sT1}, s10, 4
    s_add_u32 s{sT1}, s{sT1}, s{sXcc}
    v_mov_b32 v{DUM+4}, s{sT1}
    v_mov_b32 v{DUM+5}, 0
    s_mov_b64 exec, 1
    buffer_store_dword v{DUM+4}, v{DUM+5}, s[{SWS}:{SWS+3}], s{sT0} offen sc1
    s_mov_b64 exec, -1""")
    k.label("L_p1_nz")
    def reads(c, s, b):
        slot = c % 4
        out = [f"ds_read_b128 {vr(XF[b],4)}, v{vXa[s]} offset:{slot*8192}"]
        for y in range(3):
            off = (slot & 1)*24576 + y*8192 + s*2048
            out.append(f"ds_read_b64_tr_b16 {vr(WF[b][y],2)}, v{vWa[slot>>1]} offset:{off}")
            out.append(f"ds_read_b64_tr_b16 {vr(WF[b][y]+2,2)}, v{vWa[slot>>1]} offset:{off+512}")
        return out
    bg = []
    def compute(b, ex):
        def x(n):
            for _ in range(n):
                if ex: e(ex.pop(0))
        def y():
            for _ in range(2):
                if bg: e(bg.pop(0))
        e(f"v_mfma_f32_32x32x16_bf16 {vr(ACC[0],16)}, {vr(WF[b][0],4)}, {vr(XF[b],4)}, {vr(ACC[0],16)}"); x(3)
        e(f"v_mfma_f32_32x32x16_bf16 {vr(ACC[1],16)}, {vr(WF[b][1],4)}, {vr(XF[b],4)}, {vr(ACC[1],16)}"); x(3)
        e(f"v_mfma_f32_32x32x16_bf16 {vr(ACC[2],16)}, {vr(XF[b],4)}, {vr(WF[b][2],4)}, {vr(ACC[2],16)}"); x(1); y()
        e(f"v_mfma_f32_16x16x32_bf16 {vr(CSA[0],4)}, {vr(WF[b][0],4)}, {vr(SEL,4)}, {vr(CSA[0],4)}")
        e(f"v_mfma_f32_16x16x32_bf16 {vr(CSA[1],4)}, {vr(WF[b][1],4)}, {vr(SEL,4)}, {vr(CSA[1],4)}")
        e(f"v_mfma_f32_16x16x32_bf16 {vr(CSA[2],4)}, {vr(WF[b][2],4)}, {vr(SEL,4)}, {vr(CSA[2],4)}")
        assert not ex
    e("s_barrier")
    stamp(k, 15)
    for l in reads(0, 0, 0): e(l)
    step = 0
    for c in range(NC):
        if c == int(PARAM.get('ptc', 6)) and 'notouch1' not in EXP:
            for base in (WS_KF, WS_VF, WS_QF):
                for hh in range(2):
                    bg.extend([f"s_add_u32 s{sOffW}, s{sOffX}, {base + 65536*hh}",
                               f"buffer_load_dwordx4 {vr(DUM,4)}, v{vSt}, s[{SWS}:{SWS+3}], s{sOffW} offen"])
            bg.extend([f"s_lshl_b32 s{sOffW}, s{sTile}, 2", f"s_add_u32 s{sOffW}, s{sOffW}, {WS_KN}",
                       f"v_lshlrev_b32 v{DUM+4}, 8, v{vH}", f"buffer_load_dword v{DUM}, v{DUM+4}, s[{SWS}:{SWS+3}], s{sOffW} offen"])
        for s in range(4):
            b = step & 1
            if s < 3:
                e("s_waitcnt lgkmcnt(0)")
                compute(b, reads(c, s+1, b ^ 1))
            elif c + 1 < NC:
                e("s_waitcnt lgkmcnt(0)\ns_barrier")
                compute(b, reads(c+1, 0, b ^ 1))
            else:
                e("s_waitcnt lgkmcnt(0)\ns_barrier")
                compute(b, [])
            step += 1
    assert not bg
    stamp(k, 16)
    def p2(r): return f"v[{r}:{r+1}]"
    e(f"""v_mov_b32 v{a2}, {STAT + 512}
    ds_read_b32 v{DUM+6}, v{a2}
    ds_read_b32 v{AB}, v{a4}
    ds_read_b32 v{AB+2}, v{a4} offset:256""")
    AV = XF[0]
    for g in range(4): e(f"ds_read_b128 {vr(AV+4*g,4)}, v{a5} offset:{32*g}")
    for g in range(4): e(f"ds_read_b128 {vr(AV+16+4*g,4)}, v{a5} offset:{256+32*g}")
    e(f"""s_mov_b64 exec, s[{sEx}:{sEx+1}]
    ds_write_b128 v{a3}, {vr(CSA[0],4)}
    ds_write_b128 v{a3}, {vr(CSA[1],4)} offset:128
    ds_write_b128 v{a3}, {vr(CSA[2],4)} offset:256
    s_mov_b64 exec, -1
    ds_read_b32 v{vCsV}, v{a0} offset:256
    s_waitcnt lgkmcnt(12)
    v_readfirstlane_b32 s{sMode}, v{DUM+6}
    v_mov_b32 v{AB+1}, v{AB}
    v_mov_b32 v{AB+3}, v{AB+2}
    v_mul_f32 v{AB+4}, {QSCALE}, v{AB}
    v_mul_f32 v{AB+5}, {QSCALE}, v{AB}
    v_mul_f32 v{AB+6}, {QSCALE}, v{AB+2}
    v_mul_f32 v{AB+7}, {QSCALE}, v{AB+2}""")
    for g in range(4): e(f"ds_read_b128 {vr(EP+4*g,4)}, v{a1} offset:{32*g}")
    e(f"s_waitcnt lgkmcnt(4)\nv_mov_b32 v{vOnes}, v{vCsV}")
    for i in range(0, 16, 2):
        e(f"v_pk_mul_f32 {p2(AV+16+i)}, {p2(AV+16+i)}, {p2(vOnes)}")
        e(f"v_pk_fma_f32 {p2(ACC[2]+i)}, {p2(ACC[2]+i)}, {p2(AV+i)}, {p2(AV+16+i)}")
    for i in range(8): e(f"v_cvt_pk_bf16_f32 v{ACC[2]+i}, v{ACC[2]+2*i}, v{ACC[2]+2*i+1}")
    for g in range(4): e(f"ds_read_b128 {vr(AV+4*g,4)}, v{a1} offset:{128+32*g}")
    e(f"s_add_u32 s{sOffW}, s{sOffX}, {WS_VF}")
    hstore([f"buffer_store_dwordx4 {vr(ACC[2],4)}, v{vSt2}, s[{SWS}:{SWS+3}], s{sOffW} offen",
            f"buffer_store_dwordx4 {vr(ACC[2]+4,4)}, v{vSt2}, s[{SWS}:{SWS+3}], s{sOffW} offen offset:512"])
    e("s_waitcnt lgkmcnt(0)")
    n0, n1 = 16, 17
    for y in (1, 0):
        cs = AV if y == 1 else EP
        pa, pb = (AB, AB+2) if y == 1 else (AB+4, AB+6)
        for i in range(0, 16, 2):
            e(f"v_pk_mul_f32 {p2(cs+i)}, {p2(cs+i)}, {p2(pb)}")
            e(f"v_pk_fma_f32 {p2(ACC[y]+i)}, {p2(ACC[y]+i)}, {p2(pa)}, {p2(cs+i)}")
        for i in range(8): e(f"v_cvt_pk_bf16_f32 v{ACC[y]+i}, v{ACC[y]+2*i}, v{ACC[y]+2*i+1}")
        base = WS_QF if y == 0 else WS_KF
        e(f"s_add_u32 s{sOffW}, s{sOffX}, {base}\ns_add_u32 s{sW0}, s{sOffX}, {base + 65536}")
        hstore([f"buffer_store_dwordx4 {vr(ACC[y],4)}, v{vSt}, s[{SWS}:{SWS+3}], s{sOffW} offen",
                f"buffer_store_dwordx4 {vr(ACC[y]+4,4)}, v{vSt}, s[{SWS}:{SWS+3}], s{sW0} offen"])
        if y == 1:
            e(f"v_mov_b32 v{n0}, 0\nv_mov_b32 v{n1}, 0")
            for i in range(4):
                e(f"v_dot2_f32_bf16 v{n0}, v{ACC[1]+i}, v{ACC[1]+i}, v{n0}")
                e(f"v_dot2_f32_bf16 v{n1}, v{ACC[1]+4+i}, v{ACC[1]+4+i}, v{n1}")
            e(f"""s_nop 3
            v_permlane32_swap_b32 v{n0}, v{n1}
            s_nop 1
            v_add_f32 v{n0}, v{n0}, v{n1}
            s_nop 1
            v_max_f32_dpp v{n0}, v{n0}, v{n0} row_shr:1 row_mask:0xf bank_mask:0xf
            s_nop 1
            v_max_f32_dpp v{n0}, v{n0}, v{n0} row_shr:2 row_mask:0xf bank_mask:0xf
            s_nop 1
            v_max_f32_dpp v{n0}, v{n0}, v{n0} row_shr:4 row_mask:0xf bank_mask:0xf
            s_nop 1
            v_max_f32_dpp v{n0}, v{n0}, v{n0} row_shr:8 row_mask:0xf bank_mask:0xf
            s_nop 1
            v_max_f32_dpp v{n0}, v{n0}, v{n0} row_bcast:15 row_mask:0xa bank_mask:0xf
            v_lshlrev_b32 v{n1}, 8, v{vH}
            s_lshl_b32 s{sOffW}, s{sTile}, 2
            s_add_u32 s{sOffW}, s{sOffW}, {WS_KN}
            s_mov_b32 exec_lo, 0x80000000
            s_mov_b32 exec_hi, 0x80000000""")
            hstore([f"buffer_store_dword v{n0}, v{n1}, s[{SWS}:{SWS+3}], s{sOffW} offen"])
            e("s_mov_b64 exec, -1")
    f1base = [f"s_lshl_b32 s{sT0}, s{sHg}, 13", f"s_add_u32 s{sT0}, s{sT0}, {WS_FLAG + 3072}"]
    stamp(k, 17)
    e("s_waitcnt vmcnt(0)")
    arrive(f1base, sRb, 3, 4, "h1a")
    stamp(k, 18)
    e("s_barrier")
    e("s_branch L_p1_done")
    k.label("L_p1_helper")
    e(f"""v_lshrrev_b32 v{r}, 3, v{vLane}
    v_and_b32 v{cp}, 7, v{vLane}
    s_lshl_b32 s{sT0}, s{sRb}, 6
    s_lshl_b32 s{sT1}, s{sWave}, 4
    s_add_u32 s{sT0}, s{sT0}, s{sT1}
    s_add_u32 s{sCC}, s{sHg}, s{sRb}""")
    for par in range(2):
        e(f"""v_lshrrev_b32 v{t0}, 1, v{r}
        v_add_u32 v{t0}, {4*par}, v{t0}
        v_xor_b32 v{t0}, v{t0}, v{cp}
        v_lshlrev_b32 v{t0}, 4, v{t0}
        v_add_u32 v{t1}, {8*par}, v{r}
        v_add_u32 v{t1}, s{sT0}, v{t1}
        v_lshl_add_u32 v{vXo[par]}, v{t1}, 10, v{t0}""")
    e(f"""v_bfe_u32 v{t0}, v{r}, 1, 1
    v_lshlrev_b32 v{t0}, 2, v{t0}
    v_xor_b32 v{t0}, v{t0}, v{cp}
    v_lshlrev_b32 v{t0}, 4, v{t0}
    v_add_u32 v{t1}, s{sT1}, v{r}
    v_mul_u32_u24 v{t1}, 3072, v{t1}
    v_add_u32 v{t0}, v{t0}, v{t1}
    s_lshl_b32 s{sT1}, s{sHg}, 7
    v_add_u32 v{vWo}, s{sT1}, v{t0}
    s_lshl_b32 s{sM0}, s{sWave}, 11
    s_waitcnt lgkmcnt(0)""")
    srd(k, SX, 4, 2*MB); srd(k, SW, 6, 512*3072)
    def dma_chunk(c):
        slot = c % 4
        out = [f"s_and_b32 s{sCC}, s{sCC}, 7", f"s_lshl_b32 s{sOffX}, s{sCC}, 7", f"s_mul_i32 s{sW0}, s{sCC}, {64*3072}"]
        for par in range(2):
            out += [f"s_add_u32 m0, s{sM0}, {slot*8192 + par*1024}", f"s_nop 0",
                    f"buffer_load_dwordx4 v{vXo[par]}, s[{SX}:{SX+3}], s{sOffX} offen lds"]
            for y in range(3):
                out += [f"s_add_u32 m0, s{sM0}, {32768 + slot*24576 + y*8192 + par*1024}",
                        f"s_add_u32 s{sOffW}, s{sW0}, {y*1024 + par*8*3072}",
                        f"buffer_load_dwordx4 v{vWo}, s[{SW}:{SW+3}], s{sOffW} offen lds"]
        out.append(f"s_add_u32 s{sCC}, s{sCC}, 1")
        return out
    for c in range(2):
        for l in dma_chunk(c): e(l)
    issued = 2
    srd(k, SWS, 24, WS_SIZE)
    load_tokens()
    vSa = 8; SD = 28; ST = [16, 17, 18, 19]; UN = [40, 41, 42, 43]; vD, vDo = 44, 45
    e(f"""v_lshlrev_b32 v{vSa}, 5, v{vLane}
    v_add_u32 v{vSa}, s{sM0}, v{vSa}
    v_lshlrev_b32 v{vDo}, 2, v{vT}
    s_lshl_b32 s{sTile}, s{sHg}, 13
    s_add_u32 s{sTile}, s{sTile}, {WS_FLAG + 3584}
    s_waitcnt lgkmcnt(0)
    s_add_u32 s10, s10, 1
    s_add_u32 s11, s11, 1""")
    for i in range(4): e(f"v_mov_b32 v{ST[i]}, 0")
    for c in range(NC):
        extra = 1 if c in (6, 7) else 0
        e(f"s_waitcnt vmcnt({8*(issued-1-c) + extra})\ns_barrier")
        slot = c % 4
        e(f"""ds_read_b128 {vr(SD,4)}, v{vSa} offset:{slot*8192}
        ds_read_b128 {vr(SD+4,4)}, v{vSa} offset:{slot*8192+16}""")
        n = 0; dl = []
        while issued < NC and issued - (c-1) <= 4 and n < (2 if c == 0 else 1):
            dl += dma_chunk(issued); issued += 1; n += 1
        if c == 5:
            assert issued == NC
            e(f"""s_cmp_lg_u32 s{sWave}, 0
            s_cbranch_scc1 L_p1_d1
            buffer_load_dword v{vD}, v{vDo}, s[{SWS}:{SWS+3}], s{sTile} offen sc1
            s_branch L_p1_d2""")
            k.label("L_p1_d1")
            e(f"buffer_load_dword v{vD}, v{vDo}, s[{SX}:{SX+3}], 0 offen")
            k.label("L_p1_d2")
        va = []
        for i in range(8):
            lo, hi = UN[2*(i&1)], UN[2*(i&1)+1]
            va.append([f"v_lshlrev_b32 v{lo}, 16, v{SD+i}", f"v_and_b32 v{hi}, 0xffff0000, v{SD+i}", f"v_add_f32 v{ST[0]}, v{ST[0]}, v{lo}",
                       f"v_add_f32 v{ST[1]}, v{ST[1]}, v{hi}", f"v_fmac_f32 v{ST[2]}, v{lo}, v{lo}", f"v_fmac_f32 v{ST[3]}, v{hi}, v{hi}"])
        nld = 0; waited = False
        for l in dl:
            e(l)
            if "buffer_load" in l:
                nld += 1
                if nld >= 2 and va:
                    if not waited: e("s_waitcnt lgkmcnt(0)"); waited = True
                    for x_ in va.pop(0): e(x_)
        if not waited: e("s_waitcnt lgkmcnt(0)")
        for grp in va:
            for x_ in grp: e(x_)
    e(f"""v_add_f32 v{ST[0]}, v{ST[0]}, v{ST[1]}
    v_add_f32 v{ST[2]}, v{ST[2]}, v{ST[3]}
    s_nop 1
    v_add_f32_dpp v{ST[0]}, v{ST[0]}, v{ST[0]} quad_perm:[1,0,3,2] row_mask:0xf bank_mask:0xf
    v_add_f32_dpp v{ST[2]}, v{ST[2]}, v{ST[2]} quad_perm:[1,0,3,2] row_mask:0xf bank_mask:0xf
    s_nop 1
    v_add_f32_dpp v{ST[0]}, v{ST[0]}, v{ST[0]} quad_perm:[2,3,0,1] row_mask:0xf bank_mask:0xf
    v_add_f32_dpp v{ST[2]}, v{ST[2]}, v{ST[2]} quad_perm:[2,3,0,1] row_mask:0xf bank_mask:0xf
    s_nop 0
    v_mul_f32 v{ST[0]}, {1.0/512}, v{ST[0]}
    v_mul_f32 v{ST[2]}, {1.0/512}, v{ST[2]}
    v_fma_f32 v{ST[2]}, -v{ST[0]}, v{ST[0]}, v{ST[2]}
    v_max_f32 v{ST[2]}, 0, v{ST[2]}
    v_add_f32 v{ST[2]}, {1e-5}, v{ST[2]}
    v_rsq_f32 v{ST[1]}, v{ST[2]}
    v_lshrrev_b32 v{t0}, 2, v{vLane}
    v_lshlrev_b32 v{t0}, 2, v{t0}
    s_lshl_b32 s{sT0}, s{sWave}, 6
    s_add_u32 s{sT0}, s{sT0}, {STAT}
    v_add_u32 v{t0}, s{sT0}, v{t0}
    v_mul_f32 v{ST[3]}, v{ST[0]}, v{ST[1]}
    v_sub_f32 v{ST[3]}, 0, v{ST[3]}
    ds_write_b32 v{t0}, v{ST[1]}
    ds_write_b32 v{t0}, v{ST[3]} offset:256
    s_mov_b32 s{sCnt}, 0
    s_mov_b32 s{sMode}, 0
    s_cmp_lg_u32 s{sWave}, 0
    s_cbranch_scc1 L_p1_xskip
    s_branch L_p1_xchk""")
    k.label("L_p1_xpoll")
    e(f"""s_sleep 4
    buffer_load_dword v{vD}, v{vDo}, s[{SWS}:{SWS+3}], s{sTile} offen sc1
    s_add_u32 s{sCnt}, s{sCnt}, 1
    s_cmp_ge_u32 s{sCnt}, 0x40000
    s_cbranch_scc1 L_p1_xdone""")
    k.label("L_p1_xchk")
    e(f"""s_waitcnt vmcnt(0)
    s_lshl_b32 s{sT0}, s10, 4
    v_and_b32 v{t0}, -16, v{vD}
    v_cmp_ne_u32 vcc, s{sT0}, v{t0}
    s_cbranch_vccnz L_p1_xpoll
    s_add_u32 s{sT0}, s{sT0}, s{sXcc}
    v_cmp_ne_u32 vcc, s{sT0}, v{vD}
    s_cbranch_vccnz L_p1_xdone
    s_mov_b32 s{sMode}, 1""")
    k.label("L_p1_xdone")
    if 'forceslow' in EXP: e(f"s_mov_b32 s{sMode}, 0")
    e(f"""v_mov_b32 v{t0}, {STAT + 512}
    v_mov_b32 v{t1}, s{sMode}
    ds_write_b32 v{t0}, v{t1}""")
    k.label("L_p1_xskip")
    e(f"""v_mov_b32 v{t0}, {STAT + 512}
    s_waitcnt lgkmcnt(0)
    s_barrier
    ds_read_b32 v{t1}, v{t0}
    s_waitcnt lgkmcnt(0)
    v_readfirstlane_b32 s{sMode}, v{t1}""")
    poll(f1base, 32, "h1b")
    k.label("L_p1_done")
    stamp(k, 19)

def attention_phase(k, L):
    e = k.e
    SWS, SPF = L['SWS'], L['SW']
    sW8, sWave, sMode, sT0, sT1, sHo, sGo, sCnt = L['sW8'], L['sWave'], L['sMode'], L['sT0'], L['sT1'], L['sHo'], L['sGo'], L['sCnt']
    hstore = L['hstore']
    sHead, sQt, sOff, sLoop, sKh, sG0, sM0, sM0V, sXb, sXcc, sOo = 76, 77, 78, 79, 80, 81, 82, 83, 53, 54, 75
    vLane, vL16 = L['vLane'], L['vL16']
    vKa, vVa, vVb, vT0, vT1, vT2, vT3, vT4 = 5, 46, 47, 6, 7, 44, 45, 43
    QF = [8, 12]; KF = 16; VA = 20; VB = 24; P2 = [28, 112]; S = [48, 64]; O = [80, 128]; CI = [96, 144]
    PFD = 120
    vXp = 127
    e(f"""s_and_b32 s{sHead}, s2, 7
    s_lshl_b32 s{sXb}, s{sHead}, 13
    s_add_u32 s{sXb}, s{sXb}, {WS_FLAG + 3072}
    s_lshl_b32 s{sHead}, s{sHead}, 2
    s_bfe_u32 s{sT0}, s2, 0x20003
    s_add_u32 s{sHead}, s{sHead}, s{sT0}
    s_lshr_b32 s{sQt}, s2, 5
    s_lshl_b32 s{sQt}, s{sQt}, 3
    s_lshl_b32 s{sT0}, s{sWave}, 1
    s_add_u32 s{sQt}, s{sQt}, s{sT0}
    s_lshr_b32 s{sKh}, s{sW8}, 2
    s_lshl_b32 s{sT0}, s{sKh}, 5
    s_add_u32 s{sT0}, s{sT0}, s{sWave}
    s_lshl_b32 s{sM0}, s{sT0}, 10
    s_mul_i32 s{sM0V}, s{sT0}, {VST}
    s_lshl_b32 s{sG0}, s{sHead}, 16
    s_add_u32 s{sG0}, s{sG0}, s{sM0}
    s_lshl_b32 s{sT0}, s{sHead}, 6
    s_add_u32 s{sT1}, s{sT0}, s{sQt}
    s_lshl_b32 s{sT1}, s{sT1}, 10
    v_lshlrev_b32 v{vT0}, 2, v{vLane}
""")
    def dma(p, y):
        if y == 0: e(f"s_add_u32 m0, s{sM0}, {p*4096}")
        else: e(f"s_add_u32 m0, s{sM0V}, {65536 + p*4*VST}")
        e(f"""s_add_u32 s{sOff}, s{sG0}, {(WS_KF if y == 0 else WS_VF) + p*4096}
        buffer_load_dwordx4 v{vL16}, s[{SWS}:{SWS+3}], s{sOff} offen sc1 lds""")
    e(f"""buffer_load_dwordx4 {vr(QF[0],4)}, v{vL16}, s[{SWS}:{SWS+3}], s{sT1} offen sc1
    buffer_load_dwordx4 {vr(QF[1],4)}, v{vL16}, s[{SWS}:{SWS+3}], s{sT1} offen offset:1024 sc1
    s_lshl_b32 s{sT1}, s{sT0}, 2
    s_add_u32 s{sT1}, s{sT1}, {WS_KN}
    buffer_load_dword v{vT1}, v{vT0}, s[{SWS}:{SWS+3}], s{sT1} offen sc1""")
    dma(0, 0); dma(0, 1); dma(1, 0); dma(1, 1)
    e(f"""v_mov_b32 v{PFD}, 0x3f803f80
    v_mov_b32 v{PFD+1}, 0x3f803f80
    v_mov_b32 v{PFD+2}, 0x3f803f80
    v_mov_b32 v{PFD+3}, 0x3f803f80
    v_mul_u32_u24 v{vT2}, {VST}, v{vLane}
    v_add_u32 v{vT2}, {65536+1024}, v{vT2}
    ds_write_b128 v{vT2}, {vr(PFD,4)}
    v_mov_b32 v{PFD+4}, 0
    v_mov_b32 v{PFD+5}, 0
    v_mov_b32 v{PFD+6}, 0
    v_mov_b32 v{PFD+7}, 0
    ds_write_b128 v{vT2}, {vr(PFD+4,4)} offset:16
    v_bfe_u32 v{vT0}, v{vLane}, 5, 1
    v_and_b32 v{vT2}, 15, v{vLane}
    v_lshlrev_b32 v{vT2}, 4, v{vT2}
    v_lshl_add_u32 v{vT2}, v{vT0}, 8, v{vT2}
    v_add_u32 v{vT2}, 65536, v{vT2}
    v_add_u32 v{vT3}, 512, v{vT2}
    v_bfe_u32 v{vT0}, v{vLane}, 4, 1
    v_cmp_eq_u32 vcc, 1, v{vT0}
    v_mov_b32 v{vT0}, {65536+1024+16}
    s_nop 0
    v_cndmask_b32 v{vT2}, v{vT2}, v{vT0}, vcc
    v_cndmask_b32 v{vT3}, v{vT3}, v{vT0}, vcc
    v_and_b32 v{vT0}, 27, v{vLane}
    v_cmp_eq_u32 vcc, 16, v{vT0}
    v_mov_b32 v{vT0}, {65536+1024}
    s_nop 0
    v_cndmask_b32 v{vT2}, v{vT2}, v{vT0}, vcc
    v_cndmask_b32 v{vT3}, v{vT3}, v{vT0}, vcc
    s_lshl_b32 s{sT0}, s{sKh}, 15
    s_mul_i32 s{sT1}, s{sKh}, {32*VST}
    v_add_u32 v{vKa}, s{sT0}, v{vL16}
    v_add_u32 v{vVa}, s{sT1}, v{vT2}
    v_add_u32 v{vVb}, s{sT1}, v{vT3}""")
    for q in range(2):
        for i in range(16): e(f"v_mov_b32 v{O[q]+i}, 0")
    for i in range(4): e(f"v_mov_b32 v{P2[1]+4+i}, 0")
    for i in range(4): e(f"v_mov_b32 v{VB+i}, 0")
    e(f"""s_waitcnt vmcnt(4)
    v_mov_b32 v{vT0}, 0
    v_mov_b32 v{vT4}, 0
    v_max_f32_dpp v{vT1}, v{vT1}, v{vT1} row_shr:1 row_mask:0xf bank_mask:0xf
    v_dot2_f32_bf16 v{vT0}, v{QF[0]}, v{QF[0]}, v{vT0}
    v_dot2_f32_bf16 v{vT4}, v{QF[1]}, v{QF[1]}, v{vT4}
    v_max_f32_dpp v{vT1}, v{vT1}, v{vT1} row_shr:2 row_mask:0xf bank_mask:0xf
    v_dot2_f32_bf16 v{vT0}, v{QF[0]+1}, v{QF[0]+1}, v{vT0}
    v_dot2_f32_bf16 v{vT4}, v{QF[1]+1}, v{QF[1]+1}, v{vT4}
    v_max_f32_dpp v{vT1}, v{vT1}, v{vT1} row_shr:4 row_mask:0xf bank_mask:0xf
    v_dot2_f32_bf16 v{vT0}, v{QF[0]+2}, v{QF[0]+2}, v{vT0}
    v_dot2_f32_bf16 v{vT4}, v{QF[1]+2}, v{QF[1]+2}, v{vT4}
    v_max_f32_dpp v{vT1}, v{vT1}, v{vT1} row_shr:8 row_mask:0xf bank_mask:0xf
    v_dot2_f32_bf16 v{vT0}, v{QF[0]+3}, v{QF[0]+3}, v{vT0}
    v_dot2_f32_bf16 v{vT4}, v{QF[1]+3}, v{QF[1]+3}, v{vT4}
    v_max_f32_dpp v{vT1}, v{vT1}, v{vT1} row_bcast:15 row_mask:0xa bank_mask:0xf
    s_nop 1
    v_max_f32_dpp v{vT1}, v{vT1}, v{vT1} row_bcast:31 row_mask:0xc bank_mask:0xf
    v_mov_b32 v{CI[0]}, v{vT0}
    v_mov_b32 v{CI[1]}, v{vT4}
    s_nop 0
    v_readlane_b32 s{sT0}, v{vT1}, 63
    v_permlane32_swap_b32 v{vT0}, v{CI[0]}
    v_permlane32_swap_b32 v{vT4}, v{CI[1]}
    s_nop 1
    v_add_f32 v{vT0}, v{vT0}, v{CI[0]}
    v_add_f32 v{vT4}, v{vT4}, v{CI[1]}
    v_mul_f32 v{vT0}, s{sT0}, v{vT0}
    v_mul_f32 v{vT4}, s{sT0}, v{vT4}
    v_sqrt_f32 v{vT0}, v{vT0}
    v_sqrt_f32 v{vT4}, v{vT4}
    s_nop 0
    v_sub_f32 v{vT0}, 0, v{vT0}
    v_sub_f32 v{vT4}, 0, v{vT4}""")
    for i in range(16): e(f"v_mov_b32 v{CI[0]+i}, v{vT0}\nv_mov_b32 v{CI[1]+i}, v{vT4}")
    e(f"""s_waitcnt vmcnt(2) lgkmcnt(0)
    s_barrier""")
    stamp(k, 12)
    def rdK(t): e(f"ds_read_b128 {vr(KF,4)}, v{vKa} offset:{t*1024}")
    def rdVa(t): e(f"ds_read_b128 {vr(VA,4)}, v{vVa} offset:{t*VST}")
    def rdVb(t): e(f"ds_read_b128 {vr(VB,4)}, v{vVb} offset:{t*VST}")
    def unit(t, q, extra=None):
        s = S[q]; pc = P2[q]; pp = P2[q ^ 1]
        extra = list(extra or [])
        def x():
            if extra: e(extra.pop(0))
        e(f"v_exp_f32 v{s}, v{s}")
        e(f"v_exp_f32 v{s+1}, v{s+1}")
        e(f"v_mfma_f32_32x32x16_bf16 {vr(O[q^1],16)}, {vr(VB,4)}, {vr(pp+4,4)}, {vr(O[q^1],16)}")
        for j in range(2, 16):
            e(f"v_exp_f32 v{s+j}, v{s+j}")
            if q == 0:
                if j == 2: rdVb(t)
                if j == 7: rdK(t+1)
                if j == 11: e("s_waitcnt lgkmcnt(2)")
            else:
                if j == 5: e("s_waitcnt lgkmcnt(0)")
                if j == 13: rdVa(t+1)
            if j in (8, 9, 10): x()
            if j >= 3 and j % 2 == 1: e(f"v_cvt_pk_bf16_f32 v{pc+(j-3)//2}, v{s+j-3}, v{s+j-2}")
            if j == 6: e(f"v_mfma_f32_32x32x16_bf16 {vr(S[q^1],16)}, {vr(KF,4)}, {vr(QF[q^1],4)}, {vr(CI[q^1],16)}")
            if j == 12: e(f"v_mfma_f32_32x32x16_bf16 {vr(O[q],16)}, {vr(VA,4)}, {vr(pc,4)}, {vr(O[q],16)}")
        if q == 0: e("s_waitcnt lgkmcnt(1)")
        else: e("s_nop 0")
        e(f"v_cvt_pk_bf16_f32 v{pc+7}, v{s+14}, v{s+15}")
        while extra: x()
    def dma_lines(p, y):
        n0 = len(k.lines); dma(p, y); l = k.lines[n0:]; del k.lines[n0:]; return [x.strip() for x in l]
    rdK(0); rdVa(0)
    e(f"""s_waitcnt lgkmcnt(1)
    v_mfma_f32_32x32x16_bf16 {vr(S[0],16)}, {vr(KF,4)}, {vr(QF[0],4)}, {vr(CI[0],16)}
    s_nop 7
    s_nop 7""")
    NPEEL = 4
    pn = [0]
    def prio(p):
        n = pn[0]; pn[0] += 1
        e(f"s_cmp_eq_u32 s{sKh}, 0\ns_cbranch_scc1 L_a_pr{n}\ns_setprio {p}")
        k.label(f"L_a_pr{n}")
    nd = 0
    for t in range(NPEEL):
        if t == 3:
            assert nd == 12
            e("s_waitcnt vmcnt(0)\ns_barrier")
        for q in range(2):
            if q == 0 and t in (0, 3): prio(1)
            if q == 1 and t == 2: prio(0)
            ex = []
            for _ in range(3):
                if nd < 12: ex += dma_lines(2 + nd//2, nd & 1); nd += 1
            unit(t, q, ex)
    e(f"""v_add_u32 v{vKa}, {NPEEL*1024}, v{vKa}
    v_add_u32 v{vVa}, {NPEEL*VST}, v{vVa}
    v_add_u32 v{vVb}, {NPEEL*VST}, v{vVb}
    s_mov_b32 s{sLoop}, 0""")
    e(f"""s_lshl_b32 s{sT0}, s2, 3
    s_add_u32 s{sT0}, s{sT0}, s{sW8}
    s_lshl_b32 s{sT0}, s{sT0}, 10""")
    loc = PARAM.get('l2pf', '')
    for nm_, (lo, size) in (('1', (12, 512*3584)), ('2', (16, 1792*1024)), ('o', (8, 512*1024))):
        srd(k, SPF, lo, size)
        if nm_ in loc:
            n = size // 1024 // 256
            e(f"""s_lshr_b32 s{sT1}, s2, 3
            s_lshl_b32 s{sT1}, s{sT1}, 3
            s_add_u32 s{sT1}, s{sT1}, s{sW8}
            s_mul_i32 s{sT1}, s{sT1}, {n*1024}""")
            for i in range(n):
                e(f"buffer_load_dwordx4 {vr(PFD,4)}, v{vL16}, s[{SPF}:{SPF+3}], s{sT1} offen")
                if i + 1 < n: e(f"s_add_u32 s{sT1}, s{sT1}, 1024")
        else:
            e(f"buffer_load_dwordx4 {vr(PFD,4)}, v{vL16}, s[{SPF}:{SPF+3}], s{sT0} offen")
    e(f"""s_add_u32 s{sOo}, s{sQt}, s{sKh}
    s_lshl_b32 s{sOo}, s{sOo}, 5
    s_add_u32 s{sOo}, s{sOo}, s{sHead}
    s_lshl_b32 s{sOo}, s{sOo}, 10
    s_add_u32 s{sOo}, s{sOo}, {WS_OF}
    s_cmp_ge_u32 s{sW8}, 4
    s_cbranch_scc1 L_a_ntouch
    v_and_b32 v{PFD+4}, 15, v{vLane}
    v_lshlrev_b32 v{PFD+4}, 7, v{PFD+4}
    buffer_load_dword v{PFD+6}, v{PFD+4}, s[{SWS}:{SWS+3}], s{sHo} offen
    v_and_b32 v{PFD+4}, 31, v{vLane}
    v_lshlrev_b32 v{PFD+4}, 7, v{PFD+4}
    v_lshrrev_b32 v{PFD+5}, 5, v{vLane}
    v_mul_u32_u24 v{PFD+5}, {112*1024}, v{PFD+5}
    v_add_u32 v{PFD+4}, v{PFD+4}, v{PFD+5}
    buffer_load_dword v{PFD+6}, v{PFD+4}, s[{SWS}:{SWS+3}], s{sGo} offen""")
    k.label("L_a_ntouch")
    k.label("L_a_loop")
    NB = 4
    if 'noprio' not in EXP:
        e(f"s_cmp_lg_u32 s{sLoop}, {int(PARAM.get('prsw', 6))}\ns_cbranch_scc1 L_a_prl\ns_setprio 0")
        k.label("L_a_prl")
    for t in range(NB):
        for q in range(2): unit(t, q)
    e(f"""v_add_u32 v{vKa}, {NB*1024}, v{vKa}
    v_add_u32 v{vVa}, {NB*VST}, v{vVa}
    v_add_u32 v{vVb}, {NB*VST}, v{vVb}
    s_add_u32 s{sLoop}, s{sLoop}, 1
    s_cmp_lt_u32 s{sLoop}, {(32-NPEEL)//NB}
    s_cbranch_scc1 L_a_loop
    v_mfma_f32_32x32x16_bf16 {vr(O[1],16)}, {vr(VB,4)}, {vr(P2[1]+4,4)}, {vr(O[1],16)}
    s_mul_i32 s{sT0}, s{sW8}, 3072
    s_add_u32 s{sT0}, s{sT0}, {XCH_LDS}
    s_xor_b32 s{sT1}, s{sW8}, 4
    s_mul_i32 s{sT1}, s{sT1}, 3072
    s_add_u32 s{sT1}, s{sT1}, {XCH_LDS}
    v_add_u32 v{vT0}, s{sT0}, v{vL16}
    v_add_u32 v{vT1}, s{sT1}, v{vL16}
    s_waitcnt lgkmcnt(0)
    s_nop 7""")
    stamp(k, 13)
    e(f"""s_cmp_lg_u32 s{sKh}, 0
    s_cbranch_scc1 L_a_x1""")
    for g in range(3): e(f"ds_write_b128 v{vT0}, {vr(O[1]+4*g,4)} offset:{1024*g}")
    e("s_branch L_a_x2")
    k.label("L_a_x1")
    for g in range(3): e(f"ds_write_b128 v{vT0}, {vr(O[0]+4*g,4)} offset:{1024*g}")
    e("s_nop 1")
    for i in range(9): e(f"v_mov_b32 v{O[0]+i}, v{O[1]+i}")
    for i in range(4): e(f"v_mov_b32 v{QF[0]+i}, v{QF[1]+i}")
    k.label("L_a_x2")
    e("s_waitcnt lgkmcnt(0)\ns_barrier")
    for g in range(3): e(f"ds_read_b128 {vr(S[0]+4*g,4)}, v{vT1} offset:{1024*g}")
    e("s_waitcnt lgkmcnt(0)")
    Oo = O[0]
    for i in range(9): e(f"v_add_f32 v{Oo+i}, v{Oo+i}, v{S[0]+i}")
    thr = 2.0**-64 if 'forcefb' not in EXP else 1e30
    e(f"""v_cmp_nle_f32 vcc, {hex(f2u(thr))}, v{Oo+8}
    s_cbranch_vccnz L_a_fallback
    v_mov_b32 v{vT1}, 0x7f000000
    v_cmp_nlt_f32 vcc, v{Oo+8}, v{vT1}
    s_cbranch_vccz L_a_out""")
    k.label("L_a_fallback")
    k.c("fallback (rare): the bound was too loose -> exact row max over all keys, then a plain two-pass softmax for this q-tile")
    C0 = CI[0]
    for i in range(16): e(f"v_mov_b32 v{C0+i}, 0")
    e(f"""v_mov_b32 v{vT0}, 0xff7fffff
    v_mov_b32 v{vKa}, v{vL16}
    s_mov_b32 s{sLoop}, 0""")
    k.label("L_a_fb1")
    e(f"""ds_read_b128 {vr(KF,4)}, v{vKa}
    s_waitcnt lgkmcnt(0)
    v_mfma_f32_32x32x16_bf16 {vr(S[0],16)}, {vr(KF,4)}, {vr(QF[0],4)}, {vr(C0,16)}
    s_nop 15
    s_nop 3""")
    for j in range(8): e(f"v_max3_f32 v{vT0}, v{vT0}, v{S[0]+2*j}, v{S[0]+2*j+1}")
    e(f"""v_add_u32 v{vKa}, 1024, v{vKa}
    s_add_u32 s{sLoop}, s{sLoop}, 1
    s_cmp_lt_u32 s{sLoop}, 64
    s_cbranch_scc1 L_a_fb1
    v_mov_b32 v{vT1}, v{vT0}
    s_nop 1
    v_permlane32_swap_b32 v{vT0}, v{vT1}
    s_nop 1
    v_max_f32 v{vT0}, v{vT0}, v{vT1}
    v_sub_f32 v{vT0}, 0, v{vT0}""")
    for i in range(16): e(f"v_mov_b32 v{C0+i}, v{vT0}\nv_mov_b32 v{Oo+i}, 0")
    e(f"""v_mov_b32 v{vKa}, v{vL16}
    v_mov_b32 v{vVa}, v{vT2}
    v_mov_b32 v{vVb}, v{vT3}
    s_mov_b32 s{sLoop}, 0""")
    k.label("L_a_fb2")
    e(f"""ds_read_b128 {vr(KF,4)}, v{vKa}
    ds_read_b128 {vr(VA,4)}, v{vVa}
    ds_read_b128 {vr(VB,4)}, v{vVb}
    s_waitcnt lgkmcnt(0)
    v_mfma_f32_32x32x16_bf16 {vr(S[0],16)}, {vr(KF,4)}, {vr(QF[0],4)}, {vr(C0,16)}
    s_nop 15
    s_nop 3""")
    for j in range(16): e(f"v_exp_f32 v{S[0]+j}, v{S[0]+j}")
    e("s_nop 0")
    for j in range(8): e(f"v_cvt_pk_bf16_f32 v{P2[0]+j}, v{S[0]+2*j}, v{S[0]+2*j+1}")
    e(f"""s_nop 1
    v_mfma_f32_32x32x16_bf16 {vr(Oo,16)}, {vr(VA,4)}, {vr(P2[0],4)}, {vr(Oo,16)}
    v_mfma_f32_32x32x16_bf16 {vr(Oo,16)}, {vr(VB,4)}, {vr(P2[0]+4,4)}, {vr(Oo,16)}
    v_add_u32 v{vKa}, 1024, v{vKa}
    v_add_u32 v{vVa}, {VST}, v{vVa}
    v_add_u32 v{vVb}, {VST}, v{vVb}
    s_add_u32 s{sLoop}, s{sLoop}, 1
    s_cmp_lt_u32 s{sLoop}, 64
    s_cbranch_scc1 L_a_fb2
    s_nop 15
    s_nop 3""")
    k.label("L_a_out")
    e(f"v_rcp_f32 v{vT0}, v{Oo+8}\ns_nop 0")
    for i in range(8): e(f"v_mul_f32 v{Oo+i}, v{Oo+i}, v{vT0}")
    for i in range(4): e(f"v_cvt_pk_bf16_f32 v{P2[0]+i}, v{Oo+2*i}, v{Oo+2*i+1}")
    e(f"buffer_store_dwordx4 {vr(P2[0],4)}, v{vL16}, s[{SWS}:{SWS+3}], s{sOo} offen sc1")
    e("s_barrier")
    stamp(k, 14)

LDS_ALL = 163840

def gen_main():
    NWS = int(PARAM.get('nws', 13)); NAS = 19 - NWS
    CSMODE = PARAM.get('cs', 'compute')
    WBASE, ABASE, SCRB = 0, NWS*8192, 19*8192
    k = K("sequential_preLN__mha_block__dense_activation_gelu__prompt_kernel", vgprs=240)
    e = k.e
    SWS, SW, SX, SB = 28, 32, 36, 40
    sWave, sA, sB_, sG, sJ, sRb, sCb = 44, 45, 46, 47, 48, 49, 50
    sM0A, sM0W, sOffA, sOffW, sT0, sT1, sA0, sHo, sGo, sCnt = 51, 52, 53, 54, 55, 56, 57, 58, 59, 26
    sEx = 84
    sW8, sMode = 27, 3
    vLane, vT, vH, vL16, vWo, vFl = 1, 2, 3, 4, 5, 6
    e(f"""s_cmp_ge_u32 s2, 256
    s_cbranch_scc1 L_t_end""")
    instr_start(k)
    e(f"""s_load_dwordx16 s[4:19], s[0:1], 0
    s_load_dwordx4 s[20:23], s[0:1], 64
    s_load_dwordx2 s[24:25], s[0:1], 80
    v_and_b32 v{vLane}, 63, v0
    v_lshrrev_b32 v10, 6, v0
    v_and_b32 v{vT}, 31, v0
    v_bfe_u32 v{vH}, v0, 5, 1
    v_readfirstlane_b32 s{sT1}, v10
    v_lshlrev_b32 v{vL16}, 4, v{vLane}
    s_and_b32 s{sG}, s2, 7
    s_lshl_b32 s{sG}, s{sG}, 1
    s_bfe_u32 s{sT0}, s2, 0x10003
    s_add_u32 s{sG}, s{sG}, s{sT0}
    s_lshr_b32 s{sJ}, s2, 4
    s_lshl_b32 s{sRb}, s{sG}, 1
    s_and_b32 s{sT0}, s{sJ}, 1
    s_add_u32 s{sRb}, s{sRb}, s{sT0}
    s_lshr_b32 s{sCb}, s{sJ}, 1
    s_mov_b32 s{sW8}, s{sT1}
    s_and_b32 s{sWave}, s{sT1}, 3
    s_and_b32 s{sA}, s{sWave}, 1
    s_lshr_b32 s{sB_}, s{sWave}, 1""")
    sTsub, sFsub = sA, sB_
    hs_n = [0]
    def hstore(lines):
        n = hs_n[0]; hs_n[0] += 1
        e(f"s_cmp_eq_u32 s{sMode}, 0\ns_cbranch_scc1 L_hs{n}_slow")
        for l in lines: e(l)
        e(f"s_branch L_hs{n}_done")
        k.label(f"L_hs{n}_slow")
        for l in lines: e(l + " sc1" if l.startswith("buffer_store") else l)
        k.label(f"L_hs{n}_done")
    e(f"""s_lshl_b32 s{sHo}, s{sRb}, 1
    s_add_u32 s{sHo}, s{sHo}, s{sTsub}
    s_lshl_b32 s{sHo}, s{sHo}, 5
    s_lshl_b32 s{sT0}, s{sCb}, 2
    s_add_u32 s{sHo}, s{sHo}, s{sT0}
    s_lshl_b32 s{sT0}, s{sFsub}, 1
    s_add_u32 s{sHo}, s{sHo}, s{sT0}
    s_lshl_b32 s{sHo}, s{sHo}, 10
    s_add_u32 s{sHo}, s{sHo}, {WS_HF}
    s_lshl_b32 s{sGo}, s{sG}, 2
    s_lshl_b32 s{sT1}, s{sA}, 1
    s_add_u32 s{sGo}, s{sGo}, s{sT1}
    s_mul_i32 s{sGo}, s{sGo}, 112
    s_lshl_b32 s{sT1}, s{sJ}, 3
    s_add_u32 s{sGo}, s{sGo}, s{sT1}
    s_lshl_b32 s{sT1}, s{sB_}, 2
    s_add_u32 s{sGo}, s{sGo}, s{sT1}
    s_lshl_b32 s{sGo}, s{sGo}, 10
    s_add_u32 s{sGo}, s{sGo}, {WS_GF}""")
    def fbase(off): return [f"s_lshl_b32 s{sT0}, s{sG}, 12", f"s_add_u32 s{sT0}, s{sT0}, {WS_FLAG + off}"]
    F2SH = 5
    f2base = [f"s_and_b32 s{sT0}, s2, 7", f"s_lshl_b32 s{sT0}, s{sT0}, 13", f"s_add_u32 s{sT0}, s{sT0}, {WS_FLAG + 65536}"]
    f2pub = [f"s_lshr_b32 s{sT0}, s2, 5", f"s_lshl_b32 s{sT0}, s{sT0}, 13", f"s_add_u32 s{sT0}, s{sT0}, {WS_FLAG + 65536}"]
    vP0, vP1 = 228, 229
    def arrive(pub_base, sidx, cnt_idx, nwaves, lbl, slow=False, vp=None):
        a, b = vp if vp else (vP0, vP1)
        e(f"""v_mov_b32 v{a}, {CNT_LDS + 4*cnt_idx}
        v_mov_b32 v{b}, 1
        s_mov_b64 exec, 1
        ds_add_rtn_u32 v{b}, v{a}, v{b}
        s_waitcnt lgkmcnt(0)
        v_readfirstlane_b32 s{sT1}, v{b}
        s_mov_b64 exec, -1
        s_cmp_lg_u32 s{sT1}, {nwaves-1}
        s_cbranch_scc1 L_{lbl}_np""")
        for l in pub_base: e(l)
        e(f"""s_lshl_b32 s{sT1}, s{sidx}, {F2SH if slow else 2}
        s_add_u32 s{sT0}, s{sT0}, s{sT1}
        v_mov_b32 v{a}, 0
        v_mov_b32 v{b}, s{11 if slow else 10}
        s_mov_b64 exec, 1""")
        st_ = f"buffer_store_dword v{b}, v{a}, s[{SWS}:{SWS+3}], s{sT0} offen"
        if slow: e(st_ + " sc1")
        else: hstore([st_])
        e("s_mov_b64 exec, -1")
        k.label(f"L_{lbl}_np")
    def poll(poll_base, npoll, lbl): handoff_c(None, 0, poll_base, npoll, lbl)
    def handoff_c(pub_base, sidx, poll_base, npoll, lbl, slow=False):
        if poll_base is None: return
        e(f"""s_cmp_lg_u32 s{sWave}, 0
        s_cbranch_scc1 L_{lbl}_x""")
        for l in poll_base: e(l)
        e(f"""v_min_u32 v{vP0}, {npoll-1}, v{vLane}
        v_lshlrev_b32 v{vP0}, {F2SH if lbl == 'h2b' else 2}, v{vP0}
        s_mov_b32 s{sCnt}, 0""")
        k.label(f"L_{lbl}_p")
        e(f"""buffer_load_dword v{vP1}, v{vP0}, s[{SWS}:{SWS+3}], s{sT0} offen sc1
        s_add_u32 s{sCnt}, s{sCnt}, 1
        s_cmp_ge_u32 s{sCnt}, 0x100000
        s_cbranch_scc1 L_{lbl}_x
        s_waitcnt vmcnt(0)
        v_cmp_ne_u32 vcc, s10, v{vP1}
        s_cbranch_vccz L_{lbl}_x
        s_sleep {int(PARAM.get('sleep', 1))}
        s_branch L_{lbl}_p""")
        k.label(f"L_{lbl}_x")
        e("s_barrier")
    p1_phase(k, locals())
    attention_phase(k, locals())
    e(f"""s_cmp_ge_u32 s{sW8}, 4
    s_cbranch_scc1 L_t_loader""")
    vAa = 6; vWa = [7, 8]; vWb = [9, 10]
    t0, t1, t2, t3 = 12, 13, 14, 15
    RES = 16; BIA = 24
    AF = [32, 48]; WF = [64, 80]; ACC = 96; EP = 112
    HRES = 232; vRM = 231
    def p2(r): return f"v[{r}:{r+1}]"
    def unpack(dst, src):
        e(f"v_lshlrev_b32 v{dst}, 16, v{src}\nv_and_b32 v{dst+1}, 0xffff0000, v{src}")
    def woff(gw):
        x = WBASE + (gw % NWS)*8192
        return x >> 16, x & 65535
    def aoff(c): return (c % NAS)*8192
    def addr35():
        e(f"""s_lshl_b32 s{sT0}, s{sTsub}, 12
        s_add_u32 s{sT0}, s{sT0}, {ABASE}
        v_add_u32 v{vAa}, s{sT0}, v{vL16}
        v_and_b32 v{t0}, 15, v{vLane}
        v_lshrrev_b32 v{t1}, 2, v{t0}
        v_lshl_add_u32 v{t1}, v{vH}, 2, v{t1}
        v_lshlrev_b32 v{t1}, 7, v{t1}
        v_lshrrev_b32 v{t2}, 3, v{t0}
        v_xor_b32 v{t2}, s{sFsub}, v{t2}
        v_lshl_add_u32 v{t1}, v{t2}, 6, v{t1}
        v_bfe_u32 v{t2}, v{vLane}, 4, 1
        v_lshl_add_u32 v{t1}, v{t2}, 5, v{t1}
        v_and_b32 v{t2}, 3, v{t0}
        v_lshl_add_u32 v{vWa[0]}, v{t2}, 3, v{t1}
        v_add_u32 v{vWa[1]}, 65536, v{vWa[0]}""")
        for i in range(16): e(f"v_mov_b32 v{ACC+i}, 0")
    def loop35(NC, gw0, st0):
        def rd(c, s):
            b = c & 1; win, off = woff(gw0 + c)
            e(f"""ds_read_b128 {vr(AF[b]+4*s,4)}, v{vAa} offset:{aoff(c) + s*1024}
            ds_read_b64_tr_b16 {vr(WF[b]+4*s,2)}, v{vWa[win]} offset:{off + s*2048}
            ds_read_b64_tr_b16 {vr(WF[b]+4*s+2,2)}, v{vWa[win]} offset:{off + s*2048 + 1024}""")
        def mm(c, s):
            b = c & 1
            e(f"v_mfma_f32_32x32x16_bf16 {vr(ACC,16)}, {vr(WF[b]+4*s,4)}, {vr(AF[b]+4*s,4)}, {vr(ACC,16)}")
        if 'attst' not in EXP: stamp(k, st0)
        e("s_barrier")
        if 'attst' not in EXP: stamp(k, st0+1)
        for s in range(4): rd(0, s)
        for c in range(NC):
            if c + 1 < NC:
                e(f"s_waitcnt lgkmcnt(0)\ns_barrier")
                mm(c, 0); rd(c+1, 0); rd(c+1, 1)
                mm(c, 1); rd(c+1, 2); rd(c+1, 3)
                mm(c, 2); mm(c, 3)
            else:
                e("s_waitcnt lgkmcnt(0)")
                for s in range(4): mm(c, s)
        if 'attst' not in EXP: stamp(k, st0+2)
    def p5_compute(gw0):
        srd(k, SB, 18, 1024); srd(k, SX, 20, 2*MB)
        e(f"""v_lshlrev_b32 v{t1}, 3, v{vH}
        s_lshl_b32 s{sT0}, s{sCb}, 7
        s_lshl_b32 s{sT1}, s{sFsub}, 6
        s_add_u32 s{sT0}, s{sT0}, s{sT1}""")
        for g in range(4): e(f"buffer_load_dwordx2 {vr(BIA+2*g,2)}, v{t1}, s[{SB}:{SB+3}], s{sT0} offen offset:{16*g}")
        addr35()
        e("s_waitcnt vmcnt(0)")
        for i in range(8): unpack(EP+2*i, HRES+i)
        for i in range(8): unpack(AF[0]+2*i, BIA+i)
        for i in range(16): e(f"v_add_f32 v{ACC+i}, v{EP+i}, v{AF[0]+i}")
        handoff_c(None, 0, fbase(2048), 14, f"h4b{gw0}")
        loop35(28, gw0, 9)
        e("s_nop 7\ns_nop 3")
        for i in range(8): e(f"v_cvt_pk_bf16_f32 v{EP+i}, v{ACC+2*i}, v{ACC+2*i+1}")
        for g in range(4): e(f"buffer_store_dwordx2 {vr(EP+2*g,2)}, v{vRM}, s[{SX}:{SX+3}], 0 offen offset:{16*g}")
        instr_end(k, 0, SWS, AF[0])
        e("s_endpgm")
    e("s_waitcnt vmcnt(0)")
    arrive(f2pub, 76, 0, 8, "h2a", slow=True)
    CS = 160; BL = 192
    srd(k, SB, 14, 3584)
    e(f"""v_lshlrev_b32 v{t3}, 3, v{vH}
    v_lshlrev_b32 v{t2}, 4, v{vH}
    s_lshl_b32 s{sT0}, s{sJ}, 8
    s_lshl_b32 s{sT1}, s{sB_}, 7
    s_add_u32 s{sT0}, s{sT0}, s{sT1}
    s_lshl_b32 s{sT1}, s{sT0}, 1
    s_add_u32 s{sT1}, s{sT1}, {WS_CS}""")
    for fs in range(2):
        for g in range(4):
            e(f"buffer_load_dwordx2 {vr(BL+8*fs+2*g,2)}, v{t3}, s[{SB}:{SB+3}], s{sT0} offen offset:{64*fs + 16*g}")
    e(f"""s_lshl_b32 s{sT0}, s{sRb}, 6
    s_lshl_b32 s{sT1}, s{sTsub}, 5
    s_add_u32 s{sT0}, s{sT0}, s{sT1}
    v_add_u32 v{t0}, s{sT0}, v{vT}
    v_lshlrev_b32 v{t0}, 10, v{t0}
    v_lshlrev_b32 v{t1}, 3, v{vH}
    s_lshl_b32 s{sT0}, s{sCb}, 7
    s_lshl_b32 s{sT1}, s{sFsub}, 6
    s_add_u32 s{sT0}, s{sT0}, s{sT1}
    v_add_u32 v{t1}, s{sT0}, v{t1}
    v_add_u32 v{vRM}, v{t0}, v{t1}""")
    srd(k, SX, 4, 2*MB)
    for g in range(4): e(f"buffer_load_dwordx2 {vr(RES+2*g,2)}, v{vRM}, s[{SX}:{SX+3}], 0 offen offset:{16*g}")
    addr35()
    e(f"""s_lshl_b32 s{sOffA}, s{sCb}, 1
    s_add_u32 s{sOffA}, s{sOffA}, s{sFsub}
    s_lshl_b32 s{sOffA}, s{sOffA}, 11
    s_lshl_b32 s{sT1}, s{sRb}, 6
    s_add_u32 s{sOffA}, s{sOffA}, s{sT1}
    s_lshl_b32 s{sT1}, s{sTsub}, 5
    s_add_u32 s{sOffA}, s{sOffA}, s{sT1}
    s_lshl_b32 s{sOffA}, s{sOffA}, 3
    s_add_u32 s{sOffA}, s{sOffA}, {WS_ST}
    v_lshlrev_b32 v{t3}, 3, v{vT}
    v_lshl_add_u32 v{t3}, v{vH}, 2, v{t3}
    s_waitcnt vmcnt(0)""")
    for i in range(8): unpack(ACC+2*i, RES+i)
    handoff_c(None, 0, f2base, 32, "h2b")
    e(f"""s_cmp_ge_u32 s2, 8
    s_cbranch_scc1 L_t_ngen
    s_cmp_lg_u32 s{sWave}, 2
    s_cbranch_scc1 L_t_ngen
    s_lshl_b32 s{sT0}, s2, 13
    s_add_u32 s{sT0}, s{sT0}, {WS_GEN}
    v_mov_b32 v{vP0}, 0
    v_mov_b32 v{vP1}, s10
    s_mov_b64 exec, 1
    buffer_store_dword v{vP1}, v{vP0}, s[{SWS}:{SWS+3}], s{sT0} offen sc1
    s_mov_b64 exec, -1""")
    k.label("L_t_ngen")
    loop35(8, 0, 0)
    e("s_nop 7\ns_nop 3")
    for i in range(8): e(f"v_cvt_pk_bf16_f32 v{HRES+i}, v{ACC+2*i}, v{ACC+2*i+1}")
    hstore([f"buffer_store_dwordx4 {vr(HRES,4)}, v{vL16}, s[{SWS}:{SWS+3}], s{sHo} offen",
            f"buffer_store_dwordx4 {vr(HRES+4,4)}, v{vL16}, s[{SWS}:{SWS+3}], s{sHo} offen offset:1024"])
    e(f"v_pk_add_f32 {p2(EP)}, {p2(ACC)}, {p2(ACC+2)}\nv_pk_mul_f32 {p2(EP+2)}, {p2(ACC)}, {p2(ACC)}\nv_pk_fma_f32 {p2(EP+2)}, {p2(ACC+2)}, {p2(ACC+2)}, {p2(EP+2)}")
    for i in range(4, 16, 2):
        e(f"v_pk_add_f32 {p2(EP)}, {p2(EP)}, {p2(ACC+i)}\nv_pk_fma_f32 {p2(EP+2)}, {p2(ACC+i)}, {p2(ACC+i)}, {p2(EP+2)}")
    e(f"""v_add_f32 v{t0}, v{EP}, v{EP+1}
    v_add_f32 v{t1}, v{EP+2}, v{EP+3}
    s_nop 1
    v_permlane32_swap_b32 v{t0}, v{t1}
    s_nop 1
    v_add_f32 v{t0}, v{t0}, v{t1}""")
    hstore([f"buffer_store_dword v{t0}, v{t3}, s[{SWS}:{SWS+3}], s{sOffA} offen"])
    e("s_waitcnt vmcnt(0)")
    arrive(fbase(0), sJ, 1, 4, "h3a")
    stamp(k, 3)
    e(f"""s_cmp_ge_u32 s{sJ}, 14
    s_cbranch_scc1 L_t_c5b""")
    sTh, sFh = sA, sB_
    u0, u1, u2, u3 = 12, 13, 14, 15
    ACC4 = 96; CS = 160; BL = 192; PK = 208; CC = 216
    e(f"""s_lshl_b32 s{sT0}, s{sTh}, 12
    s_add_u32 s{sT0}, s{sT0}, {ABASE}
    v_add_u32 v{vAa}, s{sT0}, v{vL16}
    v_and_b32 v{u0}, 15, v{vLane}
    v_lshrrev_b32 v{u1}, 2, v{u0}
    v_lshl_add_u32 v{u2}, v{vH}, 2, v{u1}
    v_lshlrev_b32 v{u2}, 8, v{u2}
    v_bfe_u32 v{u3}, v{vLane}, 4, 1
    v_lshl_add_u32 v{u2}, v{u3}, 5, v{u2}
    v_and_b32 v{u3}, 3, v{u0}
    v_lshl_add_u32 v{u2}, v{u3}, 3, v{u2}
    s_lshl_b32 s{sT0}, s{sFh}, 1""")
    vW4 = [vWa, vWb]
    for fs in range(2):
        e(f"""s_add_u32 s{sT1}, s{sT0}, {fs}
        v_xor_b32 v{u3}, s{sT1}, v{u1}
        v_lshl_add_u32 v{vW4[fs][0]}, v{u3}, 6, v{u2}
        v_add_u32 v{vW4[fs][1]}, 65536, v{vW4[fs][0]}""")
    for i in range(64): e(f"v_mov_b32 v{ACC4+i}, 0")
    C0 = -2.0 * LOG2E * math.sqrt(2.0/math.pi)
    C1 = C0 * 0.044715
    e(f"""v_mov_b32 v{CC}, {hex(f2u(C0))}
    v_mov_b32 v{CC+1}, {hex(f2u(C0))}
    v_mov_b32 v{CC+2}, {hex(f2u(C1))}
    v_mov_b32 v{CC+3}, {hex(f2u(C1))}
    v_mov_b32 v{CC+4}, 1.0
    v_mov_b32 v{CC+5}, 1.0
    s_lshl_b32 s{sT0}, s{sTh}, 9
    s_add_u32 s{sT0}, s{sT0}, {SCRB}
    v_lshlrev_b32 v{u0}, 3, v{vT}
    v_add_u32 v{u0}, s{sT0}, v{u0}
    s_lshl_b32 s{sT0}, s{sFh}, 8
    s_add_u32 s{sT0}, s{sT0}, {SCRB + 3072}
    v_lshlrev_b32 v{u1}, 4, v{vH}
    v_add_u32 v{u1}, s{sT0}, v{u1}""")
    GW4 = 8
    SEL = 16; CSA = [20, 24]
    if CSMODE == 'compute':
        e(f"""v_and_b32 v{u2}, 15, v{vLane}
        v_bfe_u32 v{u3}, v{vLane}, 4, 1
        v_cmp_eq_u32 vcc, v{u2}, v{u3}
        v_cmp_gt_u32 s[{sEx}:{sEx+1}], 2, v{u2}
        v_lshrrev_b32 v{u3}, 4, v{vLane}
        v_lshlrev_b32 v{u3}, 4, v{u3}
        v_lshl_add_u32 v{u3}, v{u2}, 6, v{u3}
        s_lshl_b32 s{sT0}, s{sWave}, 8
        s_add_u32 s{sT0}, s{sT0}, {SCRB + 1024}
        v_add_u32 v{u3}, s{sT0}, v{u3}
        v_lshlrev_b32 v{u1}, 4, v{vH}
        v_add_u32 v{u1}, s{sT0}, v{u1}
        v_mov_b32 v28, 0
        v_mov_b32 v29, 0x3f803f80""")
        for i in range(4): e(f"v_cndmask_b32 v{SEL+i}, v28, v29, vcc")
        for i in range(8): e(f"v_mov_b32 v{CSA[0]+i}, 0")
    def cs4(c, s, fs):
        if CSMODE != 'compute': return
        b = c & 1
        e(f"v_mfma_f32_16x16x32_bf16 {vr(CSA[fs],4)}, {vr(WF[b]+8*s+4*fs,4)}, {vr(SEL,4)}, {vr(CSA[fs],4)}")
    def rdA(c, s, ts):
        b = c & 1
        e(f"ds_read_b128 {vr(AF[b]+8*s+4*ts,4)}, v{vAa} offset:{aoff(c) + ts*2048 + s*1024}")
    def rdW(c, s, fs):
        b = c & 1; win, off = woff(GW4 + c)
        e(f"""ds_read_b64_tr_b16 {vr(WF[b]+8*s+4*fs,2)}, v{vW4[fs][win]} offset:{off + s*4096}
        ds_read_b64_tr_b16 {vr(WF[b]+8*s+4*fs+2,2)}, v{vW4[fs][win]} offset:{off + s*4096 + 2048}""")
    def mm4(c, s, ts, fs):
        b = c & 1; a = ACC4 + 32*ts + 16*fs
        e(f"v_mfma_f32_32x32x16_bf16 {vr(a,16)}, {vr(WF[b]+8*s+4*fs,4)}, {vr(AF[b]+8*s+4*ts,4)}, {vr(a,16)}")
    handoff_c(None, 0, fbase(0), 16, "h3b")
    stamp(k, 4)
    e("s_barrier")
    stamp(k, 5)
    for s in range(2):
        for x in range(2): rdA(0, s, x); rdW(0, s, x)
    NC = 16
    for c in range(NC):
        last = c + 1 >= NC
        if not last:
            e(f"s_waitcnt lgkmcnt(0)\ns_barrier")
            if c % 2 == 0 and 'p4st' in EXP: stamp(k, 15 + c//2)
        else:
            e("s_waitcnt lgkmcnt(0)")
            e(f"ds_read_b64 {p2(PK)}, v{u0}\nds_read_b64 {p2(PK+4)}, v{u0} offset:256")
            if CSMODE == 'loader':
                for i in range(8): e(f"ds_read_b128 {vr(CS+4*i,4)}, v{u1} offset:{32*i}")
        if last:
            for s in range(2):
                for fs in range(2): cs4(c, s, fs)
        if last:
            for s in range(2):
                for fs in range(2):
                    for ts in range(2): mm4(c, s, ts, fs)
        else:
            mm4(c, 0, 0, 0); rdA(c+1, 0, 0); rdA(c+1, 0, 1)
            mm4(c, 0, 1, 0); rdW(c+1, 0, 0)
            cs4(c, 0, 0)
            mm4(c, 0, 0, 1); rdW(c+1, 0, 1)
            mm4(c, 0, 1, 1); rdA(c+1, 1, 0); rdA(c+1, 1, 1)
            cs4(c, 0, 1)
            mm4(c, 1, 0, 0); rdW(c+1, 1, 0)
            mm4(c, 1, 1, 0); rdW(c+1, 1, 1)
            cs4(c, 1, 0)
            mm4(c, 1, 0, 1)
            mm4(c, 1, 1, 1)
            cs4(c, 1, 1)
    if CSMODE == 'compute':
        e(f"""s_mov_b64 exec, s[{sEx}:{sEx+1}]
        ds_write_b128 v{u3}, {vr(CSA[0],4)}
        ds_write_b128 v{u3}, {vr(CSA[1],4)} offset:128
        s_mov_b64 exec, -1""")
        for i in range(8): e(f"ds_read_b128 {vr(CS+4*i,4)}, v{u1} offset:{32*i}")
    stamp(k, 6)
    EB = 64
    e("s_waitcnt vmcnt(0) lgkmcnt(0)")
    for ts in range(2):
        e(f"""v_mov_b32 v{PK+4*ts+2}, v{PK+4*ts+1}
        v_mov_b32 v{PK+4*ts+3}, v{PK+4*ts+1}
        v_mov_b32 v{PK+4*ts+1}, v{PK+4*ts}""")
    for i in range(16): unpack(EB+2*i, BL+i)
    TM = AF[0]
    for fs in range(2):
        for ts in range(2):
            a = ACC4 + 32*ts + 16*fs
            tm = TM + 16*ts
            for i in range(0, 16, 2): e(f"v_pk_fma_f32 {p2(tm+i)}, {p2(PK+4*ts+2)}, {p2(CS+16*fs+i)}, {p2(EB+16*fs+i)}")
            for i in range(0, 16, 2): e(f"v_pk_fma_f32 {p2(a+i)}, {p2(a+i)}, {p2(PK+4*ts)}, {p2(tm+i)}")
            for i in range(0, 16, 2): e(f"v_pk_mul_f32 {p2(tm+i)}, {p2(a+i)}, {p2(a+i)}")
            for i in range(0, 16, 2): e(f"v_pk_fma_f32 {p2(tm+i)}, {p2(tm+i)}, {p2(CC+2)}, {p2(CC)}")
            for i in range(0, 16, 2): e(f"v_pk_mul_f32 {p2(tm+i)}, {p2(tm+i)}, {p2(a+i)}")
            for i in range(16): e(f"v_exp_f32 v{tm+i}, v{tm+i}")
            for i in range(0, 16, 2): e(f"v_pk_add_f32 {p2(tm+i)}, {p2(tm+i)}, {p2(CC+4)}")
            for i in range(16): e(f"v_rcp_f32 v{tm+i}, v{tm+i}")
            for i in range(0, 16, 2): e(f"v_pk_mul_f32 {p2(a+i)}, {p2(a+i)}, {p2(tm+i)}")
            for i in range(8): e(f"v_cvt_pk_bf16_f32 v{a+i}, v{a+2*i}, v{a+2*i+1}")
            e(f"s_add_u32 s{sT1}, s{sGo}, {ts*112*1024 + fs*2048}")
            hstore([f"buffer_store_dwordx4 {vr(a,4)}, v{vL16}, s[{SWS}:{SWS+3}], s{sT1} offen",
                    f"buffer_store_dwordx4 {vr(a+4,4)}, v{vL16}, s[{SWS}:{SWS+3}], s{sT1} offen offset:1024"])
    stamp(k, 7)
    e("s_waitcnt vmcnt(0)")
    arrive(fbase(2048), sJ, 2, 4, "h4a")
    stamp(k, 8)
    p5_compute(24)
    k.label("L_t_c5b")
    p5_compute(8)
    k.label("L_t_loader")
    vWo35, vWo4, vOne, vPoll, vSo = 5, 7, 8, 9, 10
    SW3, SW4, SW5 = 32, 36, 40
    e(f"""v_lshrrev_b32 v{t0}, 3, v{vLane}
    v_and_b32 v{t1}, 7, v{vLane}
    v_bfe_u32 v{t2}, v{t0}, 1, 1
    v_lshlrev_b32 v{t2}, 2, v{t2}
    v_xor_b32 v{t2}, v{t2}, v{t1}
    v_lshlrev_b32 v{t2}, 4, v{t2}
    s_lshl_b32 s{sT0}, s{sWave}, 4
    v_add_u32 v{t0}, s{sT0}, v{t0}
    v_lshl_add_u32 v{t2}, v{t0}, 10, v{t2}
    s_lshl_b32 s{sT1}, s{sCb}, 7
    v_add_u32 v{vWo35}, s{sT1}, v{t2}
    v_lshrrev_b32 v{t0}, 4, v{vLane}
    v_and_b32 v{t1}, 15, v{vLane}
    v_lshlrev_b32 v{t2}, 2, v{t0}
    v_xor_b32 v{t2}, v{t2}, v{t1}
    v_lshlrev_b32 v{t2}, 4, v{t2}
    s_lshl_b32 s{sT0}, s{sWave}, 3
    v_add_u32 v{t0}, s{sT0}, v{t0}
    v_mul_u32_u24 v{t0}, 3584, v{t0}
    v_add_u32 v{t2}, v{t2}, v{t0}
    s_lshl_b32 s{sT1}, s{sJ}, 8
    v_add_u32 v{vWo4}, s{sT1}, v{t2}
    v_mov_b32 v{vOne}, 1
    s_lshl_b32 s{sM0W}, s{sWave}, 11""")
    srd(k, SW3, 8, 512*1024); srd(k, SW4, 12, 512*3584); srd(k, SW5, 16, 1792*1024)
    ROT = PARAM.get('rot', 'p5').split('+')
    ROTW = {'p3': 77, 'p4': 78, 'p5': 79}; ROTA = {'p3': 80, 'p4': 81, 'p5': 82}
    e(f"""s_and_b32 s{sT0}, s{sRb}, 3
    s_lshl_b32 s{sT1}, s{sT0}, 1
    s_add_u32 s77, s{sCb}, s{sT1}
    s_and_b32 s77, s77, 7
    s_mov_b32 s80, s77
    s_and_b32 s{sT1}, s{sG}, 1
    s_lshl_b32 s{sT1}, s{sT1}, 3
    s_add_u32 s78, s{sJ}, s{sT1}
    s_and_b32 s78, s78, 15
    s_mov_b32 s81, s78
    s_mul_i32 s79, s{sCb}, 3
    s_add_u32 s79, s79, s{sT0}
    s_mov_b32 s82, s79""")
    def setupA35(KS, ACT):
        e(f"""s_lshl_b32 s{sA0}, s{sRb}, 1
        s_add_u32 s{sA0}, s{sA0}, s{sTsub}
        s_mul_i32 s{sA0}, s{sA0}, {KS}
        s_lshl_b32 s{sT0}, s{sFsub}, 1
        s_add_u32 s{sA0}, s{sA0}, s{sT0}
        s_lshl_b32 s{sA0}, s{sA0}, 10
        s_add_u32 s{sA0}, s{sA0}, {ACT}
        s_lshl_b32 s{sM0A}, s{sTsub}, 12
        s_lshl_b32 s{sT0}, s{sFsub}, 11
        s_add_u32 s{sM0A}, s{sM0A}, s{sT0}""")
    def setupA4():
        e(f"""s_lshl_b32 s{sA0}, s{sG}, 2
        s_add_u32 s{sA0}, s{sA0}, s{sWave}
        s_lshl_b32 s{sA0}, s{sA0}, 15
        s_add_u32 s{sA0}, s{sA0}, {WS_HF}
        s_lshl_b32 s{sM0A}, s{sWave}, 11""")
    class LS: pass
    vCa = [48, 49, 50, 51]; vCb = [52, 53, 54, 55]; LSEL = 56; LCS = 60; LF = 80
    def colsum_setup():
        e(f"""v_and_b32 v{t0}, 15, v{vLane}
        v_lshrrev_b32 v{t1}, 2, v{t0}
        v_lshl_add_u32 v{t2}, v{vH}, 2, v{t1}
        s_lshl_b32 s{sT0}, s{sWave}, 3
        v_add_u32 v{t2}, s{sT0}, v{t2}
        v_lshlrev_b32 v{t2}, 8, v{t2}
        v_bfe_u32 v{t3}, v{vLane}, 4, 1
        v_lshl_add_u32 v{t2}, v{t3}, 5, v{t2}
        v_cmp_eq_u32 vcc, v{t0}, v{t3}
        v_and_b32 v{t3}, 3, v{t0}
        v_lshl_add_u32 v{t2}, v{t3}, 3, v{t2}""")
        for q in range(4):
            e(f"""v_xor_b32 v{t3}, {q}, v{t1}
            v_lshl_add_u32 v{vCa[q]}, v{t3}, 6, v{t2}
            v_add_u32 v{vCb[q]}, 65536, v{vCa[q]}""")
        e(f"v_mov_b32 v{t0}, 0\nv_mov_b32 v{t1}, 0x3f803f80")
        for i in range(4): e(f"v_cndmask_b32 v{LSEL+i}, v{t0}, v{t1}, vcc")
        for i in range(16): e(f"v_mov_b32 v{LCS+i}, 0")
    def colsum_pairs(st, gw4, waitfor, upto):
        if not hasattr(st, 'csn'):
            st.csn = 0; colsum_setup()
        while st.csn < 16 and gw4 + st.csn + 1 < upto:
            c = st.csn
            e(f"s_waitcnt vmcnt({waitfor([('W', gw4 + c), ('W', gw4 + c + 1)])})")
            for q in range(4):
                for d in range(2):
                    win, off = woff(gw4 + c + d)
                    e(f"ds_read_b64_tr_b16 {vr(LF+4*q+2*d,2)}, v{(vCa, vCb)[win][q]} offset:{off}")
            for q in range(4):
                e(f"s_waitcnt lgkmcnt({6-2*q})")
                e(f"v_mfma_f32_16x16x32_bf16 {vr(LCS+4*q,4)}, {vr(LF+4*q,4)}, {vr(LSEL,4)}, {vr(LCS+4*q,4)}")
            st.csn += 2
    def colsum_publish():
        e(f"""s_lshl_b32 s{sT0}, s{sWave}, 9
        s_add_u32 s{sT0}, s{sT0}, {SCRB + 1024}
        v_and_b32 v{t0}, 15, v{vLane}
        v_lshrrev_b32 v{t1}, 4, v{vLane}
        v_lshlrev_b32 v{t1}, 4, v{t1}
        v_lshl_add_u32 v{t1}, v{t0}, 6, v{t1}
        v_add_u32 v{t1}, s{sT0}, v{t1}
        v_cmp_gt_u32 vcc, 2, v{t0}
        s_nop 4
        s_and_saveexec_b64 s[{sEx}:{sEx+1}], vcc""")
        for q in range(4): e(f"ds_write_b128 v{t1}, {vr(LCS+4*q,4)} offset:{128*q}")
        e(f"s_mov_b64 exec, s[{sEx}:{sEx+1}]\ns_waitcnt lgkmcnt(0)")
    def colsum_combine():
        e(f"""s_lshl_b32 s{sT0}, s{sWave}, 7
        s_add_u32 s{sT0}, s{sT0}, {SCRB + 1024}
        v_lshlrev_b32 v{t0}, 2, v{vT}
        v_add_u32 v{t0}, s{sT0}, v{t0}
        ds_read_b32 v{LF}, v{t0}
        ds_read_b32 v{LF+1}, v{t0} offset:512
        ds_read_b32 v{LF+2}, v{t0} offset:1024
        ds_read_b32 v{LF+3}, v{t0} offset:1536
        s_waitcnt lgkmcnt(0)
        v_add_f32 v{LF}, v{LF}, v{LF+1}
        v_add_f32 v{LF+2}, v{LF+2}, v{LF+3}
        v_add_f32 v{LF}, v{LF}, v{LF+2}
        ds_write_b32 v{t0}, v{LF} offset:2048
        s_waitcnt lgkmcnt(0)""")
    def loader_program(phases, tag):
        st = LS(); st.ops = []; st.issW = 0; st.consW = 0
        wl = []
        for (nm, nc) in phases: wl += [(nm, c) for c in range(nc)]
        def issueW(maxn):
            n = 0
            while st.issW < len(wl) and st.issW - st.consW < NWS and n < maxn:
                nm, c = wl[st.issW]
                slot = st.issW % NWS
                vo, srdw, cs, half = {'p3': (vWo35, SW3, 65536, 8192), 'p4': (vWo4, SW4, 32*3584, 4*3584), 'p5': (vWo35, SW5, 65536, 8192)}[nm]
                if nm in ROT:
                    rw = ROTW[nm]; nn = {'p3': 8, 'p4': 16, 'p5': 28}[nm]
                    e(f"""s_add_u32 m0, s{sM0W}, {WBASE + slot*8192}
                    s_mul_i32 s{sOffW}, s{rw}, {cs}
                    buffer_load_dwordx4 v{vo}, s[{srdw}:{srdw+3}], s{sOffW} offen lds
                    s_add_u32 m0, s{sM0W}, {WBASE + slot*8192 + 1024}
                    s_add_u32 s{sOffW}, s{sOffW}, {half}
                    buffer_load_dwordx4 v{vo}, s[{srdw}:{srdw+3}], s{sOffW} offen lds
                    s_add_u32 s{rw}, s{rw}, 1
                    s_cmp_ge_u32 s{rw}, {nn}
                    s_cselect_b32 s{rw}, 0, s{rw}""")
                else:
                    e(f"""s_add_u32 m0, s{sM0W}, {WBASE + slot*8192}
                    s_mov_b32 s{sOffW}, {c*cs}
                    buffer_load_dwordx4 v{vo}, s[{srdw}:{srdw+3}], s{sOffW} offen lds
                    s_add_u32 m0, s{sM0W}, {WBASE + slot*8192 + 1024}
                    s_mov_b32 s{sOffW}, {c*cs + half}
                    buffer_load_dwordx4 v{vo}, s[{srdw}:{srdw+3}], s{sOffW} offen lds""")
                st.ops += [('W', st.issW)]*2; st.issW += 1; n += 1
        def issueA(nm, c):
            stride = 2048 if nm == 'p4' else 4096
            if nm in ROT:
                ra = ROTA[nm]; nn = {'p3': 8, 'p4': 16, 'p5': 28}[nm]
                e(f"""s_add_u32 m0, s{sM0A}, {ABASE + (c % NAS)*8192}
                s_mul_i32 s{sOffA}, s{ra}, {stride}
                s_add_u32 s{sOffA}, s{sOffA}, s{sA0}
                buffer_load_dwordx4 v{vL16}, s[{SWS}:{SWS+3}], s{sOffA} offen sc1 lds
                buffer_load_dwordx4 v{vL16}, s[{SWS}:{SWS+3}], s{sOffA} offen offset:1024 sc1 lds
                s_add_u32 s{ra}, s{ra}, 1
                s_cmp_ge_u32 s{ra}, {nn}
                s_cselect_b32 s{ra}, 0, s{ra}""")
            else:
                e(f"""s_add_u32 m0, s{sM0A}, {ABASE + (c % NAS)*8192}
                s_add_u32 s{sOffA}, s{sA0}, {c*stride}
                buffer_load_dwordx4 v{vL16}, s[{SWS}:{SWS+3}], s{sOffA} offen sc1 lds
                buffer_load_dwordx4 v{vL16}, s[{SWS}:{SWS+3}], s{sOffA} offen offset:1024 sc1 lds""")
            st.ops += [('A', nm, c)]*2
        def waitfor(keys):
            idx = [i for i, x in enumerate(st.ops) if x in keys]
            n = len(st.ops) - 1 - max(idx) if idx else 63
            return min(n, 63)
        gw = 0
        for pi, (nm, NC) in enumerate(phases):
            if nm == 'p3':
                setupA35(32, WS_OF)
                e("s_waitcnt vmcnt(0)")
                arrive(f2pub, 76, 0, 8, f"h2l{tag}", slow=True, vp=(vOne, vPoll))
                issueW(int(PARAM.get('w0', 8)))
                stamp(k, 4)
                e("s_barrier")
                stamp(k, 5)
            elif nm == 'p4':
                setupA4()
                e("s_barrier")
                st.consW = gw
                stamp(k, 1)
            else:
                setupA35(112, WS_GF)
                e("s_barrier")
                st.consW = gw
                stamp(k, 3)
            issA = 0
            for c in range(int(PARAM.get('a0', 4))):
                issueA(nm, c); issA += 1
                if st.issW <= gw + c: issueW(1)
            def stats_loads():
                e(f"""s_lshl_b32 s{sT0}, s{sG}, 7
                s_lshl_b32 s{sT1}, s{sWave}, 5
                s_add_u32 s{sT0}, s{sT0}, s{sT1}
                s_lshl_b32 s{sT0}, s{sT0}, 3
                s_add_u32 s{sT0}, s{sT0}, {WS_ST}
                v_lshlrev_b32 v{vSo}, 3, v{vT}
                v_lshl_add_u32 v{t0}, v{vH}, 17, v{vSo}""")
                for j in range(8):
                    e(f"s_add_u32 s{sT1}, s{sT0}, {j*16384}")
                    e(f"buffer_load_dwordx2 {vr(32+2*j,2)}, v{t0}, s[{SWS}:{SWS+3}], s{sT1} offen sc1")
                    st.ops.append(('S', j))
            for c in range(NC):
                e(f"s_waitcnt vmcnt({waitfor([('A', nm, c), ('W', gw + c)])})\ns_barrier")
                st.consW = gw + c
                while issA < NC and issA - (c - 1) <= NAS: issueA(nm, issA); issA += 1
                if nm == 'p4' and c == 1: stats_loads()
                side = nm == 'p4' and ((c == 5) or (CSMODE == 'loader' and c in (5, 6, 7, 9)))
                need = max(0, gw + c + int(PARAM.get('wlook', 4)) + 1 - st.issW)
                lim = gw + NC + int(PARAM.get('wahead' + nm[1], 0))
                opt = 0 if side else min(1, max(0, lim - st.issW))
                issueW(max(min(need, max(0, len(wl) - st.issW), max(0, gw + NC - st.issW)), opt))
                if nm == 'p4' and CSMODE == 'loader':
                    if c == 6:
                        colsum_pairs(st, gw, waitfor, upto=st.issW)
                        assert st.csn == 16
                    if c == 7: colsum_publish()
                    if c == 9: colsum_combine()
                if nm == 'p4' and c == 5:
                    b0 = 32
                    e(f"s_waitcnt vmcnt({waitfor([('S', 7)])})")
                    for j in range(1, 8): e(f"v_pk_add_f32 {p2(b0)}, {p2(b0)}, {p2(b0+2*j)}")
                    for q in range(2):
                        e(f"""v_mov_b32 v{t1}, v{b0+q}
                        s_nop 1
                        v_permlane32_swap_b32 v{b0+q}, v{t1}
                        s_nop 1
                        v_add_f32 v{b0+q}, v{b0+q}, v{t1}""")
                    e(f"""v_mul_f32 v{t1}, {1.0/512}, v{b0}
                    v_mul_f32 v{t2}, {1.0/512}, v{b0+1}
                    v_fma_f32 v{t2}, -v{t1}, v{t1}, v{t2}
                    v_max_f32 v{t2}, 0, v{t2}
                    v_add_f32 v{t2}, {1e-5}, v{t2}
                    v_rsq_f32 v{b0+2}, v{t2}
                    s_lshl_b32 s{sT0}, s{sWave}, 8
                    s_add_u32 s{sT0}, s{sT0}, {SCRB}
                    v_mul_f32 v{b0+3}, v{t1}, v{b0+2}
                    v_sub_f32 v{b0+3}, 0, v{b0+3}
                    v_add_u32 v{vSo}, s{sT0}, v{vSo}
                    ds_write_b64 v{vSo}, {p2(b0+2)}
                    s_waitcnt lgkmcnt(0)""")
            gw += NC
            if pi + 1 < len(phases):
                issueW(max(0, gw + int(PARAM.get('wpost' + nm[1], 4 if nm == 'p3' else NWS)) - st.issW))
                if phases[pi+1][0] == 'p4' and CSMODE == 'loader':
                    colsum_pairs(st, gw, waitfor, upto=st.issW)
                st.consW_next = gw
        instr_end(k, 0, SWS, AF[0])
        e("s_endpgm")
    e(f"""s_cmp_ge_u32 s{sJ}, 14
    s_cbranch_scc1 L_t_lb""")
    loader_program([('p3', 8), ('p4', 16), ('p5', 28)], "a")
    k.label("L_t_lb")
    loader_program([('p3', 8), ('p5', 28)], "b")
    k.label("L_t_end")
    e("s_endpgm")
    return k, (256, 512, LDS_ALL)

def main():
    if "--instr" in sys.argv: gen.INSTR = True; sys.argv.remove("--instr")
    for a in list(sys.argv):
        if a.startswith("--exp="): EXP.update(a[6:].split(",")); sys.argv.remove(a)
        if a.startswith("--p="):
            for kv in a[4:].split(","): PARAM[kv.split(":")[0]] = kv.split(":")[1]
            sys.argv.remove(a)
    gen.ZERO_FLAGS1 = WS_FLAG
    import subprocess, re
    fn = sys.argv[1] if len(sys.argv) > 1 else "out11.s"
    for it in range(2):
        ks = [gen_main()]
        hdr = open("cdna_kernels/" + NAME + ".s.ref").read().split("; Override launch")[0]
        out = hdr
        for k, (g, b, lds) in ks:
            out += f"; @launch kernel={k.name} grid=({g},1,1) block=({b},1,1) lds={lds}\n"
        out += '.amdgcn_target "amdgcn-amd-amdhsa--gfx950"\n.text\n'
        for k, _ in ks: out += k.text()
        if it == 1: out += "".join("    s_endpgm\n" for _ in range(((-sz) % 4096)//4))
        out += '.section .rodata,"a"\n'
        for k, _ in ks: out += k.kd()
        open(fn, "w").write(out)
        subprocess.check_call(["clang", "-x", "assembler", "-target", "amdgcn-amd-amdhsa", "-mcpu=gfx950", "-c", fn, "-o", "_chk.o"])
        h = subprocess.check_output(["llvm-objdump", "-h", "_chk.o"]).decode()
        sz = int(re.search(r"\.text\s+([0-9a-f]+)", h).group(1), 16)
        if it == 0: gen.CODE_KB = (sz + 4095) // 4096 * 4
    assert sz >= gen.CODE_KB * 1024, ("code prefetch would run past .text", sz)
    print(fn, "text bytes", sz, "prefetch KB", gen.CODE_KB)

if __name__ == "__main__":
    main()
```
